```python
import torch

def _softmax(x, axis=-1):
    return torch.softmax(x, dim=axis)
def _gelu(x):
    return torch.nn.functional.gelu(x, approximate="tanh")
def _silu(x):
    return torch.nn.functional.silu(x)
def _sigmoid(x):
    return torch.sigmoid(x)
def _layernorm(x, axis=-1, eps=1e-5):
    m = x.mean(dim=axis, keepdim=True)
    v = x.var(dim=axis, keepdim=True, unbiased=False)
    return (x - m) / torch.sqrt(v + eps)
def _scatter_add(tgt, idx, src, axis=0):
    return tgt.clone().index_add_(axis, idx, src)
def _segment_sum(src, seg, n):
    out = torch.zeros((n,) + src.shape[1:], dtype=src.dtype)
    return out.index_add_(0, seg, src)
def _pad(x, pw):
    flat = tuple(v for pair in reversed(pw) for v in pair)
    return torch.nn.functional.pad(x, flat)

kernel_name = 'parallel_sum__ssm_conv_s4d__glu_gated_swiglu__prompt'

def setup_inputs():

    _w = (lambda a: (lambda t: t.to(torch.bfloat16) if t.is_floating_point() else t)(torch.as_tensor(a)))
    def _A_setup():
        Bsz, L, D, N = 1, 2048, 512, 128
        return {
            "u": _w((lambda *s: torch.randn(*s, dtype=torch.bfloat16) * 0.05)(Bsz, L, D)),
            "log_A_real": _w((lambda *s: torch.randn(*s, dtype=torch.bfloat16) * 3.2)(D, N) * 0.5),
            "A_imag": _w((lambda *s: torch.randn(*s, dtype=torch.bfloat16) * 0.05)(D, N) * 3.14),
            "C_real": _w((lambda *s: torch.randn(*s, dtype=torch.bfloat16) * 0.1)(D, N) / N ** 0.5),
            "C_imag": _w((lambda *s: torch.randn(*s, dtype=torch.bfloat16) * 0.2)(D, N) / N ** 0.5),
            "log_dt": _w((lambda *s: torch.randn(*s, dtype=torch.bfloat16) * 0.05)(D) * 0.5 - 4.0),
            "D_skip": _w((lambda *s: torch.randn(*s, dtype=torch.bfloat16) * 0.05)(D)),
        }
    _A_in = _A_setup()

    def _B_setup():
        B, S, D, F = 1, 2048, 512, 1792
        return {
            "x": _w((lambda *s: torch.randn(*s, dtype=torch.bfloat16) * 0.05)(B, S, D)),
            "w1": _w((lambda *s: torch.randn(*s, dtype=torch.bfloat16) * 0.4)(D, F) * (2.0 / D) ** 0.5),
            "w3": _w((lambda *s: torch.randn(*s, dtype=torch.bfloat16) * 0.4)(D, F) * (2.0 / D) ** 0.5),
            "w2": _w((lambda *s: torch.randn(*s, dtype=torch.bfloat16) * 0.4)(F, D) * (2.0 / F) ** 0.5),
        }
    _B_in = _B_setup()

    return {
        "A_u": _A_in["u"],
        "A_log_A_real": _A_in["log_A_real"],
        "A_A_imag": _A_in["A_imag"],
        "A_C_real": _A_in["C_real"],
        "A_C_imag": _A_in["C_imag"],
        "A_log_dt": _A_in["log_dt"],
        "A_D_skip": _A_in["D_skip"],
        "B_x": _B_in["x"],
        "B_w1": _B_in["w1"],
        "B_w3": _B_in["w3"],
        "B_w2": _B_in["w2"],
    }

def reference(A_u, A_log_A_real, A_A_imag, A_C_real, A_C_imag, A_log_dt, A_D_skip, B_x, B_w1, B_w3, B_w2):
    def _A_ref(u, log_A_real, A_imag, C_real, C_imag, log_dt, D_skip):
        L = u.shape[1]
        dt = torch.exp(log_dt)
        A = -torch.exp(log_A_real) + 1j * A_imag
        C = (C_real + 1j * C_imag) * dt[:, None]
        pos = (lambda x, dt: x.to(dt))(torch.arange(L), log_dt.dtype)
        P = torch.exp((A * dt[:, None])[:, :, None] * pos[None, None, :])
        K = 2.0 * torch.einsum("dn,dnl->dl", C, P).real
        L2 = 2 * L
        u_t = (lambda x, *d: x.permute(*d))(u, 0, 2, 1)
        Kf = (lambda x, *a, **k: torch.fft.rfft(x.float(), *a, **k))(K, L2)
        Uf = (lambda x, *a, **k: torch.fft.rfft(x.float(), *a, **k))(u_t, L2)
        y = (lambda x, *a, **k: torch.fft.irfft(x, *a, **k).to(torch.bfloat16))(Uf * Kf[None, :, :], L2)[:, :, :L]
        y = (lambda x, *d: x.permute(*d))(y, 0, 2, 1)
        return y + u * D_skip[None, None, :]

    def _B_ref(x, w1, w3, w2):
        gate = torch.einsum("bsd,df->bsf", x, w1)
        up = torch.einsum("bsd,df->bsf", x, w3)
        h = _silu(gate) * up
        out = torch.einsum("bsf,fd->bsd", h, w2)
        return out

    x = A_u
    xn = _layernorm(x, axis=-1)
    return x + _A_ref(xn, A_log_A_real, A_A_imag, A_C_real, A_C_imag, A_log_dt, A_D_skip) + _B_ref(xn, B_w1, B_w3, B_w2)
```

```python
import re

TRANS = ("v_exp_f32", "v_log_f32", "v_rcp_f32", "v_rsq_f32", "v_sqrt_f32", "v_sin_f32", "v_cos_f32", "v_rcp_iflag_f32",
         "v_exp_f16", "v_rcp_f16")

def _regs(tok):
    tok = tok.strip()
    tok = re.sub(r"^-|^\|", "", tok); tok = tok.rstrip("|")
    m = re.match(r"^abs\((.*)\)$", tok)
    if m: tok = m.group(1)
    m = re.match(r"^([vas])\[(\d+):(\d+)\]$", tok)
    if m: return {(m.group(1), i) for i in range(int(m.group(2)), int(m.group(3)) + 1)}
    m = re.match(r"^([vas])(\d+)$", tok)
    if m: return {(m.group(1), int(m.group(2)))}
    if tok == "vcc": return {("s", 106), ("s", 107)}
    if tok == "vcc_lo": return {("s", 106)}
    if tok == "vcc_hi": return {("s", 107)}
    if tok == "exec": return {("s", 126), ("s", 127)}
    if tok == "m0": return {("s", 124)}
    return set()

class Ins:
    def __init__(self, text):
        self.text = text
        t = text.split(";")[0].strip()
        self.label = t.endswith(":")
        self.op = t.split()[0] if t else ""
        rest = t[len(self.op):].strip()
        ops = []; depth = 0; cur = ""
        for ch in rest:
            if ch in "[(": depth += 1
            if ch in "])": depth -= 1
            if ch == "," and depth == 0: ops.append(cur.strip()); cur = ""
            else: cur += ch
        if cur.strip(): ops.append(cur.strip())
        self.mods = ""
        if ops:
            last = ops[-1]
            depth = 0
            for i, ch in enumerate(last):
                if ch in "[(": depth += 1
                if ch in "])": depth -= 1
                if ch == " " and depth == 0:
                    self.mods = last[i:]; ops[-1] = last[:i]; break
        self.ops = ops
        op = self.op
        self.w = set(); self.r = set()
        self.kind = "other"
        R = [_regs(o) for o in ops]
        if op.startswith("v_mfma"):
            self.kind = "mfma"; self.w = R[0]; self.ra = R[1] | R[2]; self.rc = R[3]; self.r = self.ra | self.rc
            self.passes = 8 if "32x32" in op else 4
            if op.endswith("_f32") and ("32x32x2" in op): self.passes = 16
            if op.endswith("_f32") and ("16x16x4" in op): self.passes = 8
        elif op.startswith("v_"):
            self.kind = "valu"
            if op.startswith("v_cmp"):
                self.w = R[0]; self.r = set().union(*R[1:])
                if op.startswith("v_cmpx"): self.w |= _regs("exec")
            elif op.startswith("v_permlane") and "swap" in op:
                self.w = R[0] | R[1]; self.r = R[0] | R[1]
            elif op.startswith(("v_add_co", "v_sub_co", "v_addc_co", "v_subb_co", "v_div_scale", "v_mad_u64")):
                self.w = R[0] | R[1]; self.r = set().union(*R[2:])
            else:
                self.w = R[0]; self.r = set().union(*R[1:]) if len(R) > 1 else set()
                if op.startswith(("v_fmac", "v_dot2c", "v_pk_fmac")): self.r |= R[0]
                if op.startswith("v_cndmask") and len(ops) == 3: self.r |= _regs("vcc")
                if "dst_sel:WORD" in self.mods or "_d16" in op or "row_mask" in self.mods: self.r |= R[0]
        elif op.startswith("ds_"):
            self.kind = "ds"
            if op.startswith(("ds_read", "ds_bpermute", "ds_permute", "ds_swizzle")):
                self.w = R[0]; self.r = set().union(*R[1:])
            else:
                self.r = set().union(*R)
        elif op.startswith(("buffer_", "global_")):
            self.kind = "vmem"
            if op in ("buffer_inv", "buffer_wbl2"): pass
            elif "load" in op and " lds" not in self.mods and "_lds_" not in op:
                self.w = R[0]; self.r = set().union(*R[1:])
                if "d16" in op: self.r |= R[0]
            else:
                self.r = set().union(*R) if R else set()
                if " lds" in self.mods or "_lds_" in op: self.r |= _regs("m0"); self.ldsdma = True
                if "atomic" in op and "sc0" in self.mods: self.w = R[0]
            self.store_data = set()
            if "store" in op and ("x4" in op or "x3" in op):
                self.store_data = R[0] if op.startswith("buffer") else R[1]
        elif op.startswith("s_"):
            self.kind = "salu"
            if op.startswith(("s_cmp", "s_cbranch", "s_branch", "s_waitcnt", "s_barrier", "s_nop", "s_endpgm", "s_sleep", "s_setprio")):
                self.r = set().union(*R) if R else set()
            else:
                self.w = R[0] if R else set(); self.r = set().union(*R[1:]) if len(R) > 1 else set()
                if "saveexec" in op: self.w |= _regs("exec"); self.r |= _regs("exec")
        self.dpp = any(k in self.mods for k in ("quad_perm", "row_shr", "row_shl", "row_ror", "row_bcast", "row_mirror", "row_half_mirror", "wave_", "row_newbcast"))
        self.states = 1
        if op == "s_nop": self.states = int(ops[0], 0) + 1
        if self.label or not op or op.startswith("."): self.states = 0

def need(prod, cons):
    n = 0
    P, C = prod, cons
    vw = {x for x in P.w if x[0] in "va"}; sw = {x for x in P.w if x[0] == "s"}
    if P.kind == "valu":
        if vw & C.r:
            if C.kind == "mfma": n = max(n, 2)
            if C.dpp: n = max(n, 2)
            if C.op.startswith("v_permlane"): n = max(n, 2)
            if C.op.startswith(("v_readfirstlane", "v_readlane")): n = max(n, 1)
            if P.op.startswith(TRANS) and C.kind in ("valu", "mfma", "ds", "vmem"): n = max(n, 1)
            if P.op.startswith("v_dot") and not (C.op == P.op and not (vw & set().union(*[_regs(o) for o in C.ops[1:3]]))): n = max(n, 3)
            if ("dst_sel:WORD" in P.mods or "op_sel" in P.mods and not P.op.startswith("v_pk")) and C.kind == "valu": n = max(n, 1)
        if P.op.startswith("v_dot") and (vw & C.w) and C.op != P.op: n = max(n, 3)
        if sw & C.r:
            if C.kind == "vmem": n = max(n, 5)
            if C.kind in ("valu",): n = max(n, 4 if C.op.startswith(("v_readlane", "v_writelane", "v_div_fmas")) else 2)
            if C.kind == "salu": n = max(n, 1)
        if (("s", 126) in sw):
            if C.dpp: n = max(n, 5)
            if C.kind == "mfma" or C.op.startswith(("v_permlane", "v_readlane", "v_readfirstlane")): n = max(n, 4)
    if P.kind == "salu":
        if ("s", 124) in P.w and getattr(C, "ldsdma", False): n = max(n, 1)
    if P.kind == "vmem" and getattr(P, "store_data", None):
        if P.store_data & C.w: n = max(n, 2)
    if P.kind == "mfma":
        tab_ab = {4: 8, 8: 12, 16: 20}[P.passes]
        if C.kind == "mfma":
            if P.w & C.ra: n = max(n, tab_ab)
            if P.w & C.rc:
                if P.w == C.rc and P.passes == C.passes: pass
                else: n = max(n, {4: 6, 8: 10, 16: 18}[P.passes])
            elif P.w & C.w: n = max(n, tab_ab)
        else:
            if P.w & (C.r | C.w): n = max(n, tab_ab)
            if C.kind == "valu" and (P.rc & C.w): n = max(n, {4: 3, 8: 7, 16: 15}[P.passes])
    return n

class Asm:
    def __init__(self):
        self.lines = []
    def __call__(self, s):
        for l in s.split("\n"):
            l = l.strip()
            if l: self.lines.append(l)
    def c(self, s): self.lines.append("; " + s)
    PROFILE = False
    def stamp(self, i):
        if not Asm.PROFILE: return
        assert i < 10
        self(f"s_memtime s[{78+2*i}:{79+2*i}]")
        if i == 0: self("s_memrealtime s[98:99]\ns_waitcnt lgkmcnt(0)")
        else: self("s_waitcnt lgkmcnt(0)") if Asm.PROFILE == 2 else None
        self.nst = max(getattr(self, "nst", 0), i + 1)
    def stamp_out(self, tag, tid, role, ws_srd="s[8:11]", base=0x20000, vt=2):
        if not Asm.PROFILE: return
        self("s_memrealtime s[100:101]\ns_waitcnt lgkmcnt(0) vmcnt(0)")
        self(f"v_cmp_eq_u32 vcc, {tid}, v0\ns_and_saveexec_b64 s[70:71], vcc\ns_cbranch_execz {tag}_PEND")
        self(f"s_lshl_b32 s72, s2, 7\ns_add_u32 s72, s72, {base + 64*role}\nv_mov_b32 v{vt+1}, 0")
        for i in range(1, 10):
            self(f"s_sub_u32 s69, s{78+2*i}, s78\nv_mov_b32 v{vt}, s69\nbuffer_store_dword v{vt}, v{vt+1}, {ws_srd}, s72 offen offset:{4*i}\ns_nop 1")
        self(f"s_sub_u32 s69, s100, s98\nv_mov_b32 v{vt}, s69\nbuffer_store_dword v{vt}, v{vt+1}, {ws_srd}, s72 offen offset:0\ns_nop 1")
        self(f"v_mov_b32 v{vt}, s98\nbuffer_store_dword v{vt}, v{vt+1}, {ws_srd}, s72 offen offset:60\ns_nop 1")
        self.label(f"{tag}_PEND")
        self("s_mov_b64 exec, s[70:71]")
    def label(self, s): self.lines.append(s + ":")
    def text(self, autopad=True):
        out = []
        hist = []
        for l in self.lines:
            if l.startswith(";") or l.startswith("."):
                out.append(l); continue
            I = Ins(l)
            if I.label:
                out.append(l); continue
            if autopad:
                dist = 0; pad = 0
                for P in reversed(hist):
                    nd = need(P, I)
                    if nd - dist > pad: pad = nd - dist
                    dist += P.states
                    if dist > 24: break
                while pad > 0:
                    k = min(pad, 16)
                    nop = Ins(f"s_nop {k-1}")
                    out.append(f"    s_nop {k-1} ; auto"); hist.append(nop); pad -= k
            out.append("    " + l); hist.append(I)
            if len(hist) > 40: hist = hist[-40:]
        return "\n".join(out) + "\n"

def kernel_header(name):
    return f".globl {name}\n.p2align 8\n.type {name},@function\n{name}:\n"

def kernel_desc(name, vgpr, accum, sgpr=102):
    return f""".amdhsa_kernel {name}
  .amdhsa_next_free_vgpr {vgpr}
  .amdhsa_next_free_sgpr {sgpr}
  .amdhsa_accum_offset {accum}
  .amdhsa_group_segment_fixed_size 0
  .amdhsa_kernarg_size 112
  .amdhsa_user_sgpr_count 2
  .amdhsa_user_sgpr_kernarg_segment_ptr 1
  .amdhsa_system_sgpr_workgroup_id_x 1
.end_amdhsa_kernel
"""
def vr(b, n): return f"v[{b}:{b+n-1}]" if n > 1 else f"v{b}"
def ar(b, n): return f"a[{b}:{b+n-1}]" if n > 1 else f"a{b}"
def sr(b, n): return f"s[{b}:{b+n-1}]" if n > 1 else f"s{b}"
import struct
def f32(x): return "0x%08x" % struct.unpack("<I", struct.pack("<f", x))[0]

class VM:
    def __init__(self, e): self.e = e; self.n = 0
    def op(self, text, count=1):
        self.e(text); self.n += count; return self.n
    def wait(self, idx, extra=""):
        k = self.n - idx
        assert 0 <= k
        self.e(f"s_waitcnt vmcnt({min(k, 63)}){extra}")
```

```python
import sys, math, os
import numpy as np
from asmlib import *

def env(n, d): return int(os.environ.get(n, str(d)))
DIAG = env('DIAG', 0); PRIO = env('PRIO', 3); PREF = env('PREF', 1); SLEEP = env('SLEEP', 8); ROT = env('ROT', 1); ROT2 = env('ROT2', 1)
APRIO = env('APRIO', 3); W2PF = env('W2PF', 1); N6 = env('N6', 5); N7 = env('N7', 9); PFS = [int(c) for c in os.environ.get('PFS', '023333')]; SPIN = env('SPIN', 20000)
WS_STATS = 0x0
WS_EPW = 0x8000
WS_LNF = 0x40000
WS_HF = 0x50000
WS_AF = 0x80000
WS_XN2 = 0x100000
WS_H = 0x400000
WS_AT = 0xC00000
WS_SIZE = 0x1000000
STG = 49152
SPARE = 153600
KTAB = 2 * STG + 32768
KXB = 2 * STG
UP = 4640; UCH = 4 * UP; UB = STG
KB = UB + 2 * UCH; KS_OFF = 4224; KCH = 147456 - KB
LCS = 163072; LCNT = LCS + 512; LSTAT = 160768
PLANE = 17408

LOG2E = math.log2(math.e)
L2E_HI = float(np.float32(LOG2E)); L2E_LO = float(np.float32(LOG2E - L2E_HI))
I2PI = 1 / (2 * math.pi)
I2PI_HI = float(np.float32(I2PI)); I2PI_LO = float(np.float32(I2PI - I2PI_HI))
LN2 = math.log(2)
DPP = "row_mask:0xf bank_mask:0xf"

def srd(e, d, ptr, nbytes):
    e(f"s_mov_b32 s{d}, s{ptr}\ns_mov_b32 s{d+1}, s{ptr+1}\ns_mov_b32 s{d+2}, {hex(nbytes)}\ns_mov_b32 s{d+3}, 0x00020000")

def poll(e, tag, load, check, sleep=None):
    e(f"s_mov_b32 s39, {SPIN}")
    e.label(f"{tag}_L")
    e(load); e("s_waitcnt vmcnt(0)"); e(check)
    e(f"s_cbranch_vccz {tag}_D\ns_sub_u32 s39, s39, 1\ns_cbranch_scc1 {tag}_D\ns_sleep {sleep or SLEEP}\ns_branch {tag}_L")
    e.label(f"{tag}_D")

def lds_poll(e, tag, vaddr, off, target, vt):
    e(f"s_mov_b32 s39, {SPIN*16}")
    e.label(f"{tag}_L")
    e(f"ds_read_b32 v{vt}, {vaddr} offset:{off}\ns_waitcnt lgkmcnt(0)\nv_cmp_gt_u32 vcc, {target}, v{vt}")
    e(f"s_cbranch_vccz {tag}_D\ns_sub_u32 s39, s39, 1\ns_cbranch_scc1 {tag}_D\ns_sleep 1\ns_branch {tag}_L")
    e.label(f"{tag}_D")

def merged(e, work, fillers, lead=0):
    old = e.lines; e.lines = []; work(); W = e.lines; e.lines = old
    n = len(W); m = len(fillers); k = 0
    for i in range(n + 1):
        while k < m and k * max(n - lead, 1) <= i * m: e(fillers[k]); k += 1
        if i < n: e.lines.append(W[i])
    assert k == m

def rb(e, r): e(f"v_cvt_pk_bf16_f32 v{r}, v{r}, v{r}\nv_lshlrev_b32 v{r}, 16, v{r}")

def gen():
    e = Asm()
    e("s_cmp_ge_u32 s2, 256\ns_cbranch_scc1 END")
    e.label("KSTART")
    e("s_getpc_b64 s[76:77]")
    e("s_load_dwordx16 s[40:55], s[0:1], 0\ns_load_dwordx8 s[56:63], s[0:1], 64\ns_load_dwordx4 s[64:67], s[0:1], 96")
    e.stamp(0)
    e("v_and_b32 v1, 63, v0\nv_lshrrev_b32 v2, 6, v0\nv_readfirstlane_b32 s3, v2\nv_and_b32 v2, 3, v2")
    if PREF:
        e("v_lshlrev_b32 v3, 6, v0\nv_min_u32 v3, KEND-KSTART-8, v3\ns_cmp_ge_u32 s3, 6\ns_cbranch_scc1 NOPF\nglobal_load_dword v31, v3, s[76:77]")
        e.label("NOPF")
    e("s_and_b32 s30, s2, 7\ns_lshr_b32 s31, s2, 3")
    e("s_and_b32 s24, s30, 1\ns_lshl_b32 s24, s24, 2\ns_and_b32 s32, s31, 3\ns_add_u32 s24, s24, s32")
    e("s_lshr_b32 s25, s30, 1\ns_mul_i32 s25, s25, 7\ns_lshr_b32 s27, s31, 2\ns_add_u32 s25, s25, s27")
    e("s_lshl_b32 s26, s30, 2\ns_add_u32 s26, s26, s32")
    e("s_cmp_lt_u32 s2, 224\ns_cselect_b32 s28, 1, 0\ns_and_b32 s29, s3, 3")
    e("s_cmp_ge_u32 s3, 4\ns_cbranch_scc1 ROLE_B")
    e("v_lshrrev_b32 v28, 1, v2\nv_lshlrev_b32 v29, 1, v28\ns_lshl_b32 s36, s2, 2\nv_add_u32 v29, s36, v29")
    e("v_lshlrev_b32 v4, 1, v0\ns_lshl_b32 s36, s2, 9\nv_add_u32 v4, s36, v4\nv_xor_b32 v5, 128, v4")
    e("s_waitcnt lgkmcnt(0)")
    for i, (off, base) in enumerate(((4, 42), (4, 44), (4, 46), (4, 48), (5, 46), (5, 48), (29, 50))):
        e(f"global_load_ushort v{40+i}, v{off}, s[{base}:{base+1}]")
    e("global_load_ushort v30, v29, s[52:53]")
    e("s_branch ROLE_A")
    e.label("ROLE_B")
    e("s_cmp_lt_u32 s3, 6\ns_cbranch_scc1 B_NOX")
    e("v_bfe_u32 v25, v0, 4, 3\nv_lshlrev_b32 v25, 10, v25\nv_and_b32 v16, 15, v1\nv_lshl_add_u32 v25, v16, 4, v25\ns_lshl_b32 s31, s2, 13\nv_add_u32 v25, s31, v25\ns_waitcnt lgkmcnt(0)")
    for i in range(4): e(f"global_load_dwordx4 {vr(128+4*i,4)}, v25, s[40:41] offset:{256*i}")
    e.label("B_NOX")
    gen_B(e)
    e.label("ROLE_A")
    gen_A(e)
    e.label("END")
    e("s_endpgm")
    e.label("KEND")
    return e.text()

def dma_groups():
    L = []
    for i in range(4):
        L.append(("s_add_u32 m0, s36, s35\n" if i == 0 else "") + f"buffer_load_dwordx4 v{12+i}, s[12:15], s33 offen offset:{1024*i} lds")
    for half in range(2):
        for i in range(4):
            pre = "" if i else ("s_add_u32 m0, s36, s34\n" if half == 0 else "s_add_u32 m0, m0, 4096\n")
            L.append(pre + f"buffer_load_dwordx4 v{4+4*half+i}, s[20:23], s32 offen offset:{1024*i} lds")
    L[-1] += (f"\ns_add_u32 s32, s32, 128\ns_add_u32 s33, s33, {64*3584}\ns_add_u32 s37, s37, 1\ns_cmp_eq_u32 s37, 8\ns_cselect_b32 s37, 0, s37"
              f"\ns_cselect_b32 s68, 1024, 0\ns_cselect_b32 s69, {512*3584}, 0\ns_sub_u32 s32, s32, s68\ns_sub_u32 s33, s33, s69"
              f"\ns_add_u32 s36, s36, {STG}\ns_cmp_eq_u32 s36, {3*STG}\ns_cselect_b32 s36, 0, s36")
    return L

def cs_groups(k):
    base = (k % 3) * STG
    a = "v24" if base < 65536 - 8192 else "v26"; off0 = base if base < 65536 - 8192 else 0
    R = [f"ds_read_b128 {vr(240+4*i,4)}, {a} offset:{off0 + 2048*i}" for i in range(4)]
    M = [f"v_mfma_f32_16x16x32_bf16 v[20:23], v[16:19], {vr(240+4*i,4)}, v[20:23]" for i in range(4)]
    return R, M

def gen_B(e):
    vm = VM(e)
    e("v_lshrrev_b32 v3, 3, v1\nv_lshlrev_b32 v3, 10, v3\nv_and_b32 v16, 7, v1\nv_lshrrev_b32 v17, 4, v1\nv_xor_b32 v17, v16, v17")
    e("v_lshl_add_u32 v4, v17, 4, v3\nv_xor_b32 v18, 64, v4")
    for i in range(7, 0, -1):
        e(f"v_add_u32 v{4+i}, {8192*i - 1024*(i&3)}, {'v4' if i % 2 == 0 else 'v18'}")
    e("v_lshrrev_b32 v25, 3, v1\nv_lshrrev_b32 v3, 1, v2\nv_lshl_add_u32 v25, v3, 5, v25\nv_mul_u32_u24 v25, 3584, v25")
    e("v_bfe_u32 v17, v1, 4, 1\nv_and_b32 v19, 1, v2\nv_lshl_add_u32 v17, v19, 1, v17\nv_lshlrev_b32 v17, 1, v17\nv_xor_b32 v17, v16, v17")
    e("v_lshl_add_u32 v12, v17, 4, v25")
    for i in range(1, 4): e(f"v_add_u32 v{12+i}, {8*3584*i - 1024*i}, v12")
    e("s_and_b32 s30, s29, 1")
    e("s_mul_i32 s14, s28, 0x1c0000\ns_mov_b32 s15, 0x00020000\ns_lshl_b32 s22, s28, 21\ns_mov_b32 s23, 0x00020000")
    e("s_lshl_b32 s32, s24, 18\ns_lshl_b32 s31, s29, 16\ns_add_u32 s32, s32, s31\ns_lshl_b32 s33, s25, 7")
    e("s_lshl_b32 s34, s29, 13\ns_lshl_b32 s35, s30, 13\ns_lshr_b32 s31, s29, 1\ns_lshl_b32 s31, s31, 12\ns_add_u32 s35, s35, s31\ns_add_u32 s35, s35, 32768")
    e("s_lshr_b32 s37, s2, 3\ns_and_b32 s37, s37, 3\ns_lshl_b32 s37, s37, 1\ns_add_u32 s37, s37, s27\ns_and_b32 s37, s37, 7" if ROT else "s_mov_b32 s37, 0")
    e(f"s_lshl_b32 s31, s37, 7\ns_add_u32 s32, s32, s31\ns_mul_i32 s31, s37, {64*3584}\ns_add_u32 s33, s33, s31")
    e("s_mov_b32 s36, 0\ns_waitcnt lgkmcnt(0)")
    e("s_cmp_eq_u32 s30, 1\ns_cselect_b32 s12, s58, s56\ns_cselect_b32 s13, s59, s57\ns_mov_b32 s20, s40\ns_mov_b32 s21, s41")
    did = {}
    srd(e, 8, 66, WS_SIZE)
    e("s_mov_b32 s38, 0xffff0000\nv_mov_b32 v54, 0")
    e("s_cmp_ge_u32 s29, 2\ns_cbranch_scc1 B_NOLOAD")
    for st in range(2):
        G = dma_groups()
        for g in G[:-1]: e(g)
        e(G[-1].split("\n")[0])
        e(f"s_add_u32 s32, s32, 0x20000\ns_add_u32 s34, s34, 16384\ns_add_u32 s33, s33, {32*3584}\ns_add_u32 s35, s35, 4096")
        for g in G: e(g)
        e(f"s_sub_u32 s32, s32, 0x20000\ns_sub_u32 s34, s34, 16384\ns_sub_u32 s33, s33, {32*3584}\ns_sub_u32 s35, s35, 4096")
    e("s_branch B_JOIN")
    e.label("B_NOLOAD")
    gen_ln(e)
    for st in range(2): e("\n".join(dma_groups()[-1].split("\n")[1:]))
    e.label("B_JOIN")
    srd(e, 4, 40, 0x200000); srd(e, 16, 60, 0x1c0000)
    e("v_and_b32 v27, 255, v0")
    e("v_and_b32 v24, 3, v1\nv_lshl_add_u32 v24, v3, 2, v24\nv_bfe_u32 v25, v1, 3, 1\nv_lshl_add_u32 v25, v19, 1, v25\nv_lshlrev_b32 v25, 1, v25\nv_xor_b32 v24, v24, v25\nv_lshlrev_b32 v24, 4, v24")
    e(f"v_lshrrev_b32 v25, 2, v1\nv_lshl_add_u32 v24, v25, 7, v24\nv_lshl_add_u32 v24, v19, 13, v24\nv_add_u32 v24, 32768, v24\nv_add_u32 v26, {2*STG}, v24")
    e("v_and_b32 v20, 1, v1\nv_lshlrev_b32 v20, 4, v20\nv_mov_b32 v21, 0x3f80\nv_lshlrev_b32 v21, v20, v21\nv_bfe_u32 v22, v1, 1, 2")
    for j in range(4): e(f"v_cmp_eq_u32 vcc, {j}, v22\nv_cndmask_b32 v{16+j}, 0, v21, vcc")
    for i in range(4): e(f"v_mov_b32 v{20+i}, 0\nv_mov_b32 v{232+i}, 0")
    e(f"v_bfe_u32 v116, v1, 2, 2\nv_mul_u32_u24 v116, 1088, v116\nv_lshrrev_b32 v117, 4, v1\nv_lshl_add_u32 v116, v117, 5, v116\nv_and_b32 v117, 3, v1\nv_lshl_add_u32 v116, v117, 3, v116\nv_lshl_add_u32 v116, v2, 8, v116\nv_add_u32 v116, {SPARE}, v116")
    e(f"v_lshrrev_b32 v117, 1, v1\nv_lshl_add_u32 v117, v2, 6, v117\nv_lshlrev_b32 v117, 13, v117\nv_and_b32 v118, 1, v1\nv_lshl_add_u32 v117, v118, 4, v117")
    e(f"v_lshlrev_b32 v119, 4, v1\nv_lshl_add_u32 v118, v2, 13, v119\nv_add_u32 v118, {KXB}, v118")
    e("s_lshr_b32 s70, s2, 3\ns_lshl_b32 s70, s70, 2\ns_add_u32 s70, s70, s29\ns_mul_i32 s70, s70, 14336")
    pfn = [0]
    def w2pf(n):
        L = []
        for _ in range(n):
            if W2PF and pfn[0] < 14:
                L.append(f"buffer_load_dwordx4 v[236:239], v119, s[16:19], s70 offen\ns_add_u32 s70, s70, 1024"); pfn[0] += 1
        return L
    def stage(k, work=lambda: None, npf=0, fill=None, post=lambda: None):
        R, M = cs_groups(k)
        for r in R: e(r)
        def w2():
            work()
            e("s_waitcnt lgkmcnt(0)")
            for m in M: e(m)
            post()
        F = (dma_groups() if k + 2 < 8 else fill)
        merged(e, w2, F, lead=(6 if fill is None else 0))
        if k + 2 < 8: vm.n += 12; did[k + 2] = vm.n
        for g in w2pf(npf): vm.op(g)
    def endstage(k, idx=None):
        vm.wait(idx if idx is not None else did[k], " lgkmcnt(0)")
        e("s_barrier")
        if DIAG == 1: e.stamp(k + 1)
    if not DIAG: e.stamp(1)
    e("s_waitcnt vmcnt(24) lgkmcnt(0)\ns_barrier")
    if DIAG == 1: e.stamp(1)
    if not DIAG: e.stamp(2)
    if PRIO: e(f"s_setprio {PRIO}")
    D = 208
    for nh in range(2):
        for ti in range(3): e(f"ds_read_b128 {vr(D+8*ti+4*nh,4)}, v118 offset:{3072*nh+1024*ti}")
    for q in range(2):
        for j in range(2): e(f"ds_read_b64_tr_b16 {vr(128+4*q+2*j,2)}, v116 offset:{4352*j+128*q}")
    e(f"s_lshl_b32 s31, s2, 5\ns_add_u32 s31, s31, {WS_XN2}\ns_add_u32 s30, s31, {32*8192}")
    e("s_waitcnt lgkmcnt(0)")
    did[1] = 0
    stage(0, npf=PFS[0])
    vm.op("buffer_store_dwordx4 v[128:131], v117, s[8:11], s31 offen sc1"); vm.op("buffer_store_dwordx4 v[132:135], v117, s[8:11], s30 offen sc1")
    r1 = vm.op("global_load_dword v126, v54, s[64:65] sc1")
    endstage(1)
    def kfin():
        for ti in range(3):
            for q in range(4 if ti < 2 else 2): e(f"v_add_f32 v{D+8*ti+q}, v{D+8*ti+q}, v{D+8*ti+4+q}")
        e("v_and_b32 v48, 15, v1\nv_lshrrev_b32 v49, 4, v1\nv_and_b32 v52, 1, v2\nv_lshl_add_u32 v52, v52, 4, v48")
        e(f"v_and_b32 v53, 1, v49\nv_lshlrev_b32 v53, 2, v53\nv_lshl_add_u32 v53, v52, 3, v53\nv_lshrrev_b32 v56, 1, v49\nv_lshl_add_u32 v53, v56, 8, v53")
        e(f"v_lshlrev_b32 v53, 1, v53\nv_mul_u32_u24 v55, {KCH}, v3\nv_add_u32 v55, {KB}, v55\nv_sub_u32 v53, v55, v53\nv_add_u32 v53, {2*(2040-512)}, v53")
        e(f"v_lshlrev_b32 v56, 3, v52\nv_lshl_add_u32 v56, v49, 8, v56\nv_lshlrev_b32 v56, 1, v56\nv_sub_u32 v56, v55, v56\nv_add_u32 v56, {2*(2040-1024)}, v56")
        for ti in range(2):
            d = D + 8 * ti; o = 72 + 2 * ti
            e(f"v_cvt_pk_bf16_f32 v{o}, v{d+3}, v{d+2}\nv_cvt_pk_bf16_f32 v{o+1}, v{d+1}, v{d}")
        f0, f8 = D + 16, D + 17
        e(f"v_and_b32 v57, 1, v52\nv_cmp_eq_u32 vcc, 1, v57\nv_cndmask_b32 v57, v{f0}, v{f8}, vcc")
        e(f"v_cvt_pk_bf16_f32 v76, v{f8}, v{f8}\nv_cvt_pk_bf16_f32 v77, v{f8}, v57\nv_cvt_pk_bf16_f32 v78, v{f0}, v{f0}\nv_mov_b32 v79, v78")
    def tagchk(r): return f"v_cmp_ne_u64 vcc, v[{r}:{r+1}], v[126:127]"
    stage(1, kfin, PFS[1]); endstage(2)
    stage(2, npf=PFS[2]); endstage(3)
    e("v_cmp_eq_u32 vcc, 0, v126\ns_cbranch_vccz B_RDY_D")
    poll(e, "B_RDY", "global_load_dword v126, v54, s[64:65] sc1", "v_cmp_eq_u32 vcc, 0, v126")
    e("v_not_b32 v127, v126")
    e(f"s_lshl_b32 s31, s2, 7\ns_add_u32 s31, s31, {WS_LNF}\nv_cmp_eq_u32 vcc, 0, v27\ns_and_saveexec_b64 s[74:75], vcc\ns_cbranch_execz B_NOLNF")
    e("buffer_store_dwordx2 v[126:127], v54, s[8:11], s31 offen sc1")
    e.label("B_NOLNF")
    e("s_mov_b64 exec, s[74:75]")
    stage(3, npf=PFS[3]); endstage(4)
    stage(4, npf=PFS[4])
    e(f"s_mov_b32 s72, {WS_LNF}\nv_lshlrev_b32 v122, 7, v27")
    lf = vm.op("buffer_load_dwordx2 v[120:121], v122, s[8:11], s72 offen sc1")
    endstage(5)
    def addr5():
        e("v_and_b32 v50, 127, v27\nv_lshlrev_b32 v51, 5, v50\nv_lshl_add_u32 v51, v3, 4, v51\nv_subrev_u32 v52, 24, v51\nv_max_i32 v52, 0, v52\nv_lshlrev_b32 v57, 3, v27")
        e(f"v_mul_u32_u24 v44, 2731, v27\nv_lshrrev_b32 v44, 16, v44\nv_mul_u32_u24 v49, 24, v44\nv_sub_u32 v49, v27, v49\nv_mul_u32_u24 v44, {UP}, v44\nv_lshl_add_u32 v44, v49, 4, v44")
        e(f"v_lshl_add_u32 v45, v50, 3, v55\nv_mul_u32_u24 v46, {UCH}, v3\nv_lshl_add_u32 v46, v50, 4, v46\nv_add_u32 v46, {UB}, v46")
        e(f"v_and_b32 v48, 3, v1\nv_lshl_add_u32 v48, v3, 2, v48\nv_lshlrev_b32 v48, 5, v48\nv_and_b32 v49, 1, v2\nv_lshl_add_u32 v48, v49, 8, v48\nv_bfe_u32 v49, v1, 4, 1\nv_lshl_add_u32 v48, v49, 4, v48\nv_add_u32 v48, {LCS}, v48")
        e(f"v_mov_b32 v49, {LCNT}\nv_mov_b32 v47, 1\nv_add_u32 v43, {LSTAT}, v57")
        e("v_lshrrev_b32 v40, 3, v1\nv_and_b32 v41, 7, v1\nv_bfe_u32 v42, v1, 4, 1\nv_lshlrev_b32 v42, 2, v42\nv_xor_b32 v41, v41, v42\nv_lshlrev_b32 v40, 10, v40\nv_lshl_add_u32 v40, v41, 4, v40\nv_add_u32 v41, 7168, v40")
        e("v_lshrrev_b32 v38, 5, v1\nv_bfe_u32 v39, v1, 2, 2\nv_lshl_add_u32 v38, v38, 2, v39\nv_lshlrev_b32 v38, 7, v38")
        e("v_lshrrev_b32 v39, 1, v39\nv_lshl_add_u32 v38, v39, 6, v38\nv_bfe_u32 v39, v1, 4, 1\nv_lshl_add_u32 v38, v39, 5, v38\nv_and_b32 v39, 3, v1\nv_lshl_add_u32 v38, v39, 3, v38\nv_xor_b32 v39, 64, v38")
    stage(5, addr5, npf=PFS[5])
    vm.wait(lf)
    e(tagchk(120) + "\ns_cbranch_vccz B_LNF_D")
    poll(e, "B_LNF", "buffer_load_dwordx2 v[120:121], v122, s[8:11], s72 offen sc1", tagchk(120), sleep=16)
    if ROT2: e("s_lshr_b32 s37, s2, 3\ns_and_b32 s37, s37, 3\ns_lshl_b32 s37, s37, 1\ns_add_u32 s37, s37, s27\ns_mul_i32 s37, s37, 7\ns_lshr_b32 s37, s37, 1\ns_cmp_ge_u32 s37, 28\ns_cselect_b32 s31, 28, 0\ns_sub_u32 s37, s37, s31")
    else: e("s_mov_b32 s37, 0")
    e("s_mov_b32 s73, s37\ns_mov_b32 s33, 16384")
    e("s_mul_i32 s32, s29, 458752\ns_lshl_b32 s31, s27, 7\ns_add_u32 s32, s32, s31\ns_lshl_b32 s31, s37, 14\ns_add_u32 s32, s32, s31")
    e(f"s_mul_i32 s35, s29, 12288\ns_add_u32 s34, s35, {2*STG}")
    e("v_mov_b32 v4, v40\nv_mov_b32 v5, v41\nv_add_u32 v6, s34, v38\nv_add_u32 v7, s34, v39\nv_add_u32 v8, s35, v38\nv_add_u32 v9, s35, v39\nv_mov_b32 v14, v126\nv_mov_b32 v15, v127")
    e(f"s_lshl_b32 s36, s2, 13\ns_add_u32 s36, s36, {WS_XN2}\ns_add_u32 s30, s36, 4096\ns_sub_u32 s71, s30, 24\ns_lshl_b32 s70, s24, 11")
    endstage(6)
    if not DIAG: e.stamp(3)
    wid = {}; slot_of = {}
    def w2txt(i, j):
        slot_of[i] = j
        vm.n += 2; wid[i] = vm.n
        return [f"s_add_u32 m0, {'s34' if j < 6 else 's35'}, {2048*(j%6)}\nbuffer_load_dwordx4 v4, s[16:19], s32 offen lds",
                f"buffer_load_dwordx4 v5, s[16:19], s32 offen offset:1024 lds\ns_add_u32 s37, s37, 1\ns_cmp_eq_u32 s37, 28\ns_cselect_b32 s31, {(16384-458752) & 0xffffffff}, s33\ns_add_u32 s32, s32, s31"]
    def w2dma(i, j):
        for t in w2txt(i, j): e(t)
    vm.op(f"buffer_load_dwordx2 v[124:125], v57, s[8:11], s70 offen offset:{WS_STATS} sc1")
    vm.op("buffer_load_dwordx4 v[60:63], v51, s[8:11], s36 offen sc1"); vm.op("buffer_load_dwordx2 v[58:59], v52, s[8:11], s36 offen sc1")
    vm.op("buffer_load_dwordx4 v[68:71], v51, s[8:11], s30 offen sc1"); uid = vm.op("buffer_load_dwordx2 v[66:67], v51, s[8:11], s71 offen sc1")
    stage(6, fill=sum([w2txt(i, i) for i in range(N6)], []))
    endstage(7)
    NR = 12
    ACC = 192; WT = [16, 24]; WR = 96; HR = 32
    def wread(j, dst):
        for dt in range(2):
            for jj in range(2):
                e(f"ds_read_b64_tr_b16 {vr(dst+4*dt+2*jj,2)}, v{(6 if j < 6 else 8)+dt} offset:{2048*(j%6)+1024*jj}")
    vm.wait(uid)
    e(f"ds_write_b64 v43, v[124:125]\nds_write_b64 v49, v[126:127] offset:32")
    def post7():
        e("v_cmp_eq_u32 vcc, 0, v50\nv_cndmask_b32 v58, v58, v232, vcc\nv_cndmask_b32 v59, v59, v232, vcc")
        for h in range(2):
            Dd = 60 + 8 * h
            V1, V2, V3 = 200 + 12 * h, 204 + 12 * h, 208 + 12 * h
            for i in range(4):
                e(f"v_alignbit_b32 v{V1+i}, v{Dd+i}, v{Dd+i-1}, 16\nv_mov_b32 v{V2+i}, v{Dd+i-1}\nv_alignbit_b32 v{V3+i}, v{Dd+i-1}, v{Dd+i-2}, 16")
        e("v_cmp_gt_u32 s[68:69], 192, v27\nv_cmp_gt_u32 s[70:71], 15, v50".replace("192, v27", "s30, v27"))
    e("s_mov_b32 s30, 192")
    stage(7, fill=[])
    for m in ("row_ror:4", "row_ror:8"):
        for i in range(4): e(f"v_add_f32_dpp v{20+i}, v{20+i}, v{20+i} {m} {DPP}")
    e("ds_write_b128 v48, v[20:23]")
    merged(e, post7, sum([w2txt(i, i) for i in range(N6, N7)], []))
    e("s_waitcnt lgkmcnt(0)\ns_barrier")
    if DIAG == 1: e.stamp(9)
    if not DIAG: e.stamp(4)
    if DIAG == 4: e.stamp(1)
    for i in range(N7, 12): w2dma(i, i)
    vm.wait(wid[5])
    for i in range(6): wread(i, WR + 8 * i)
    e("s_waitcnt lgkmcnt(0)")
    if DIAG == 4: e.stamp(2)
    for i in range(12, 18): w2dma(i, i - 12)
    if DIAG == 4: e.stamp(3)
    vm.wait(wid[11])
    for i in range(6, 12): wread(i, WR + 8 * i)
    e("s_waitcnt lgkmcnt(0)")
    if DIAG == 4: e.stamp(4)
    for i in range(18, 24): w2dma(i, i - 12)
    if DIAG == 4: e.stamp(5)
    if not DIAG: e.stamp(5)
    for ti in range(2):
        o = 72 + 2 * ti; off = 1024 if ti == 0 else 0
        e(f"ds_write_b64 v53, {vr(o,2)} offset:{off+8}\nds_write_b64 v53, {vr(o,2)} offset:{off+KS_OFF}")
    e(f"ds_write_b128 v56, v[76:79]\nds_write_b64 v56, v[76:77] offset:{KS_OFF-8}\nds_write_b64 v56, v[78:79] offset:{KS_OFF}")
    for h in range(2):
        for delta, src in ((0, 60 + 8 * h), (1, 200 + 12 * h), (2, 204 + 12 * h), (3, 208 + 12 * h)):
            e(f"ds_write_b128 v46, {vr(src,4)} offset:{(3-delta)*UP + 384 + 2048*h}")
    e(f"s_mov_b64 exec, s[68:69]\nds_write_b128 v44, v[232:235] offset:{UB}")
    e(f"s_mov_b64 exec, s[70:71]\nds_write_b64 v45, v[232:233] offset:4096\nds_write_b64 v45, v[232:233] offset:{KS_OFF+4088}")
    e("s_mov_b64 exec, 1\nds_add_u32 v49, v47\ns_mov_b64 exec, -1")
    if DIAG == 4: e.stamp(6)
    if PRIO: e("s_setprio 0")
    nres_end = 24
    if DIAG == 4: e.stamp(9)
    if not DIAG: e.stamp(6)
    e(f"v_min_u32 v10, 6, v1\nv_lshlrev_b32 v10, 7, v10\ns_mul_i32 s31, s26, {28*128}\ns_mul_i32 s30, s29, {7*128}\ns_add_u32 s31, s31, s30\ns_add_u32 s31, s31, {WS_HF}")
    e(f"s_lshl_b32 s36, s26, 1\ns_mul_i32 s36, s36, 112\ns_mul_i32 s30, s29, 28\ns_add_u32 s36, s36, s30\ns_add_u32 s36, s36, s73\ns_lshl_b32 s36, s36, 10\ns_add_u32 s36, s36, {WS_H}\ns_sub_u32 s70, s36, {28*1024}")
    srd(e, 20, 62, 0x200000)
    poll(e, "B_HF", "buffer_load_dwordx2 v[12:13], v10, s[8:11], s31 offen sc1", "v_cmp_ne_u64 vcc, v[12:13], v[14:15]", sleep=2)
    if not DIAG: e.stamp(7)
    if DIAG == 3: e.stamp(1)
    vm.n = 0
    e(f"v_lshlrev_b32 v10, 4, v1\nv_add_u32 v11, {112*1024}, v10")
    nstream = 28 - nres_end
    order = list(range(NR, NR + nstream)) + list(range(0, NR)) + list(range(NR + nstream, nres_end)) + list(range(nres_end, 28))
    free = [HR + 8 * i for i in range(8)]
    hreg = {}; hid = {}; nxt = [0]
    def hload():
        while nxt[0] < 28 and free:
            i = order[nxt[0]]; nxt[0] += 1
            b = free.pop(0); hreg[i] = b
            e(f"s_cmp_ge_u32 s73, {28-i}\ns_cselect_b32 s31, s70, s36\ns_add_u32 s31, s31, {1024*i}")
            vm.op(f"buffer_load_dwordx4 {vr(b,4)}, v10, s[8:11], s31 offen sc1")
            hid[i] = vm.op(f"buffer_load_dwordx4 {vr(b+4,4)}, v11, s[8:11], s31 offen sc1")
    hload()
    def is_lds(i): return i >= NR
    tcount = [0]; wt_of = {}
    def prefetch_w(pos):
        if pos < 28 and is_lds(order[pos]):
            i = order[pos]
            if i >= nres_end: vm.wait(wid[i])
            wt_of[i] = WT[tcount[0] % 2]; tcount[0] += 1
            wread(slot_of[i], wt_of[i])
    prefetch_w(0)
    streamed = nres_end
    fin = {}
    def at_loads(count):
        e(f"s_lshl_b32 s31, s27, 18\ns_lshl_b32 s30, s26, 7\ns_add_u32 s31, s31, s30\ns_add_u32 s31, s31, {WS_AT}")
        for j in range(4):
            t = f"buffer_load_dwordx2 {vr(fin['A']+2*j,2)}, v{fin['T']+3}, s[8:11], s31 offen sc1\ns_add_u32 s31, s31, 4096"
            if count: vm.op(t)
            else: e(t)
    AFPOS = 19; ATPOS = 24
    for pos, i in enumerate(order):
        if is_lds(i):
            e("s_waitcnt lgkmcnt(0)")
            if streamed < 28:
                w2dma(streamed, slot_of[i]); streamed += 1
        prefetch_w(pos + 1)
        vm.wait(hid[i])
        if DIAG == 3 and pos in (0, 4, 8, 12, 16, 20, 24, 27): e.stamp(2 + (0, 4, 8, 12, 16, 20, 24, 27).index(pos))
        wb = wt_of[i] if is_lds(i) else WR + 8 * i
        b = hreg[i]
        for dt in range(2):
            for mi in range(2):
                a = ACC + 16 * (2 * dt + mi)
                e(f"v_mfma_f32_32x32x16_bf16 {vr(a,16)}, {vr(wb+4*dt,4)}, {vr(b+4*mi,4)}, {'0' if pos == 0 else vr(a,16)}")
        free.append(b)
        if not is_lds(i): free.append(wb)
        hload()
        if pos == AFPOS:
            assert nxt[0] == 28 and len(free) >= 3
            fin['X'] = free.pop(0); fin['A'] = free.pop(0); T = fin['T'] = free.pop(0)
            e(f"v_bfe_u32 v{T}, v0, 4, 4\nv_and_b32 v{T+1}, 15, v0\nv_lshlrev_b32 v{T+2}, 12, v{T}\nv_lshl_add_u32 v{T+2}, v{T+1}, 3, v{T+2}\nv_lshlrev_b32 v{T+3}, 14, v{T+1}\nv_lshl_add_u32 v{T+3}, v{T}, 3, v{T+3}\nv_lshlrev_b32 v{T+4}, 8, v1")
            e(f"s_lshl_b32 s72, s27, 14\ns_lshr_b32 s30, s26, 4\ns_lshl_b32 s30, s30, 7\ns_add_u32 s72, s72, s30\ns_add_u32 s72, s72, {WS_AF}")
            e("s_lshl_b32 s71, s26, 16\ns_lshl_b32 s30, s27, 7\ns_add_u32 s71, s71, s30")
            afid = vm.op(f"buffer_load_dwordx2 v[12:13], v{T+4}, s[8:11], s72 offen sc1")
            for r in range(4): vm.op(f"buffer_load_dwordx2 {vr(fin['X']+2*r,2)}, v{T+2}, s[4:7], s71 offen offset:{1024*r}")
        if pos == ATPOS:
            vm.wait(afid)
            e("v_cmp_ne_u64 s[68:69], v[12:13], v[14:15]")
            at_loads(True)
    if not DIAG: e.stamp(8)
    T = fin['T']
    e(f"v_and_b32 v3, 31, v1\nv_mul_u32_u24 v3, 272, v3\nv_lshrrev_b32 v8, 5, v1\nv_lshl_add_u32 v3, v8, 4, v3\nv_add_u32 v4, s34, v3\nv_add_u32 v3, s35, v3")
    for dt in range(2):
        for mi in range(2):
            a = ACC + 16 * (2 * dt + mi)
            for g in range(4):
                e(f"ds_write_b128 v{3+mi}, {vr(a+4*g,4)} offset:{dt*128 + g*32}")
    e("s_cmp_eq_u64 s[68:69], 0\ns_cbranch_scc1 B_AF_OK")
    poll(e, "B_AF", f"buffer_load_dwordx2 v[12:13], v{T+4}, s[8:11], s72 offen sc1", "v_cmp_ne_u64 vcc, v[12:13], v[14:15]", sleep=2)
    at_loads(False)
    e.label("B_AF_OK")
    e(f"v_and_b32 v3, 7, v{T}\nv_mul_u32_u24 v3, 1088, v3\nv_lshl_add_u32 v3, v{T+1}, 4, v3\nv_lshrrev_b32 v4, 3, v{T}\nv_mul_u32_u24 v4, {2*STG}, v4\nv_add_u32 v3, v3, v4")
    e("s_waitcnt lgkmcnt(0)\ns_barrier")
    Pp = 192
    XR = fin['X']; AR = fin['A']
    for i in range(4):
        for w in range(4):
            e(f"ds_read_b128 {vr(Pp+16*i+4*w,4)}, v3 offset:{272*i + 12288*w}")
    e("s_waitcnt vmcnt(0)")
    XA = 16
    for i in range(4):
        for j in range(4):
            xs = XR + 2 * i + (j >> 1); as_ = AR + 2 * j + (i >> 1)
            e(f"v_lshlrev_b32 v{4+j}, 16, v{xs}" if j % 2 == 0 else f"v_and_b32 v{4+j}, s38, v{xs}")
            e(f"v_lshlrev_b32 v{8+j}, 16, v{as_}" if i % 2 == 0 else f"v_and_b32 v{8+j}, s38, v{as_}")
        e("v_pk_add_f32 v[4:5], v[4:5], v[8:9]\nv_pk_add_f32 v[6:7], v[6:7], v[10:11]")
        e(f"v_cvt_pk_bf16_f32 v8, v4, v5\nv_cvt_pk_bf16_f32 v9, v6, v7")
        for j in range(4):
            e(f"v_lshlrev_b32 v{XA+4*i+j}, 16, v{8+(j>>1)}" if j % 2 == 0 else f"v_and_b32 v{XA+4*i+j}, s38, v{8+(j>>1)}")
    for i in range(4):
        b = Pp + 16 * i
        e(f"s_waitcnt lgkmcnt({12-4*i})")
        for h in range(2):
            e(f"v_pk_add_f32 {vr(b+2*h,2)}, {vr(b+2*h,2)}, {vr(b+4+2*h,2)}")
            e(f"v_pk_add_f32 {vr(b+8+2*h,2)}, {vr(b+8+2*h,2)}, {vr(b+12+2*h,2)}")
        for h in range(2):
            e(f"v_pk_add_f32 {vr(b+2*h,2)}, {vr(b+2*h,2)}, {vr(b+8+2*h,2)}")
        e(f"v_cvt_pk_bf16_f32 v{b+4}, v{b}, v{b+1}\nv_cvt_pk_bf16_f32 v{b+5}, v{b+2}, v{b+3}")
        for j in range(4):
            e(f"v_lshlrev_b32 v{b+8+j}, 16, v{b+4+(j>>1)}" if j % 2 == 0 else f"v_and_b32 v{b+8+j}, s38, v{b+4+(j>>1)}")
        for h in range(2):
            e(f"v_pk_add_f32 {vr(b+8+2*h,2)}, {vr(b+8+2*h,2)}, {vr(XA+4*i+2*h,2)}")
        e(f"v_cvt_pk_bf16_f32 v{b}, v{b+8}, v{b+9}\nv_cvt_pk_bf16_f32 v{b+1}, v{b+10}, v{b+11}")
        e(f"buffer_store_dwordx2 {vr(b,2)}, v{T+2}, s[20:23], s71 offen offset:{1024*i}")
    if not DIAG: e.stamp(9)
    e.stamp_out("PB", env("PBT", 256), 1, vt=100)
    e("s_endpgm")

def gen_ln(e):
    X = 128; A = 160; M = 164; SQ = 166; T = 172; N = 16
    e("s_mov_b32 s30, 0x3f803f80")
    for j in range(4): e(f"v_mov_b32 v{A+j}, 0\nv_mov_b32 v{SQ+j}, 0")
    e(f"v_bfe_u32 v180, v0, 4, 3\nv_and_b32 v181, 15, v1\nv_mul_u32_u24 v182, 1088, v180\nv_lshl_add_u32 v182, v181, 4, v182\nv_add_u32 v182, {SPARE}, v182\nv_lshlrev_b32 v185, 3, v180")
    for i in range(4):
        e(f"s_waitcnt vmcnt({3-i})")
        for j in range(4): e(f"v_dot2_f32_bf16 v{A+j}, v{X+4*i+j}, s30, v{A+j}")
    def red(r):
        e(f"v_add_f32 v{r}, v{r}, v{r+1}\nv_add_f32 v{r+2}, v{r+2}, v{r+3}\nv_add_f32 v{r}, v{r}, v{r+2}")
        for m in ("quad_perm:[1,0,3,2]", "quad_perm:[2,3,0,1]", "row_ror:4", "row_ror:8"):
            e(f"v_add_f32_dpp v{r}, v{r}, v{r} {m} {DPP}")
    red(A)
    e(f"v_mul_f32 v{A}, {f32(1/512)}, v{A}\nv_cvt_pk_bf16_f32 v{M}, v{A}, v{A}\nv_lshlrev_b32 v{M}, 16, v{M}")
    for j0 in range(0, N, 4):
        for j in range(j0, j0 + 4):
            t = T + 2 * (j % 4); e(f"v_lshlrev_b32 v{t}, 16, v{X+j}\nv_and_b32 v{t+1}, s38, v{X+j}")
        for j in range(j0, j0 + 4):
            t = T + 2 * (j % 4); e(f"v_pk_add_f32 {vr(t,2)}, {vr(t,2)}, {vr(M,2)} op_sel_hi:[1,0] neg_lo:[0,1] neg_hi:[0,1]")
        for j in range(j0, j0 + 4):
            t = T + 2 * (j % 4); q = SQ + 2 * (j % 2)
            e(f"v_pk_fma_f32 {vr(q,2)}, {vr(t,2)}, {vr(t,2)}, {vr(q,2)}\nv_cvt_pk_bf16_f32 v{X+j}, v{t}, v{t+1}")
    red(SQ)
    e(f"v_sub_f32 v{A+1}, v{A}, v{M}\nv_mul_f32 v{A+1}, v{A+1}, v{A+1}\nv_mul_f32 v{SQ}, {f32(1/512)}, v{SQ}\nv_sub_f32 v{SQ}, v{SQ}, v{A+1}\nv_max_f32 v{SQ}, 0, v{SQ}")
    rb(e, SQ); e(f"v_add_f32 v{SQ}, {f32(1e-5)}, v{SQ}"); rb(e, SQ); e(f"v_sqrt_f32 v{SQ}, v{SQ}"); rb(e, SQ)
    e(f"v_rcp_f32 v{M+1}, v{SQ}")
    for j0 in range(0, N, 4):
        for j in range(j0, j0 + 4):
            t = T + 2 * (j % 4); e(f"v_lshlrev_b32 v{t}, 16, v{X+j}\nv_and_b32 v{t+1}, s38, v{X+j}")
        for j in range(j0, j0 + 4):
            t = T + 2 * (j % 4); e(f"v_pk_mul_f32 {vr(t,2)}, {vr(t,2)}, {vr(M,2)} op_sel:[0,1] op_sel_hi:[1,1]")
        for j in range(j0, j0 + 4):
            t = T + 2 * (j % 4); e(f"v_cvt_pk_bf16_f32 v{X+j}, v{t}, v{t+1}")
        e(f"ds_write_b128 v182, {vr(X+j0,4)} offset:{64*j0}")
    e(f"s_lshl_b32 s31, s2, 6\nv_cmp_eq_u32 vcc, 0, v181\ns_and_saveexec_b64 s[74:75], vcc")
    e(f"buffer_store_dwordx2 {vr(M,2)}, v185, s[8:11], s31 offen offset:{WS_STATS} sc1\ns_mov_b64 exec, s[74:75]")

TA = 96; RA = 112
def gen_kaddr(e):
    e(f"v_lshlrev_b32 v48, 2, v1\nv_lshlrev_b32 v49, 12, v2\nv_add_u32 v49, {KTAB}, v49\nv_add_u32 v48, v48, v49")
    for r in range(8): e(f"v_xor_b32 v{TA+r}, {r<<5}, v48")
    T0 = [0,1,2,3,4,5,6,7,8,8,9,10,10,10,11,12]; T1 = [0,0,0,1,1,1,2,2,3,3,3,4,4,4,5,5]
    T2 = [6 + 2 * (i >> 2) + (i & 1) for i in range(16)]
    def pack4(L): return sum(v << (4 * i) for i, v in enumerate(L))
    e("v_and_b32 v50, 15, v1\nv_lshrrev_b32 v51, 4, v1\nv_and_b32 v52, 7, v50\nv_lshlrev_b32 v52, 2, v52\nv_cmp_lt_u32 vcc, 7, v50")
    e(f"v_mov_b32 v{RA}, v50")
    for x, T in ((1, T0), (2, T1), (3, T2)):
        e(f"v_mov_b32 v53, {hex(pack4(T[:8]))}\nv_mov_b32 v54, {hex(pack4(T[8:]))}\nv_cndmask_b32 v53, v53, v54, vcc\nv_lshrrev_b32 v53, v52, v53\nv_and_b32 v{RA+x}, 15, v53")
    for x in range(4):
        e(f"v_and_b32 v53, 14, v{RA+x}\nv_xor_b32 v53, v51, v53\nv_lshlrev_b32 v53, 4, v53\nv_lshl_add_u32 v53, v{RA+x}, 8, v53\nv_add_u32 v{RA+x}, v53, v49")
        for q in range(1, 4): e(f"v_xor_b32 v{RA+4+3*x+q-1}, {q<<6}, v{RA+x}")
    e(f"v_and_b32 v53, 1, v2\nv_mul_u32_u24 v53, 3072, v53\nv_lshl_add_u32 v53, v28, 14, v53\nv_lshl_add_u32 v104, v1, 4, v53\nv_add_u32 v104, {KXB}, v104")

def gen_kgen(e):
    P = 40
    for r in range(P, P + 7): e(f"v_lshlrev_b32 v{r}, 16, v{r}")
    def exp_bf(dst, src, t1, t2):
        e(f"v_mul_f32 v{t1}, {f32(L2E_HI)}, v{src}")
        e(f"s_mov_b32 s30, {f32(L2E_HI)}\nv_fma_f32 v{t2}, v{src}, s30, -v{t1}\nv_fmac_f32 v{t2}, {f32(L2E_LO)}, v{src}")
        e(f"v_exp_f32 v{t1}, v{t1}\nv_mul_f32 v{t2}, {f32(LN2)}, v{t2}\nv_fma_f32 v{dst}, v{t1}, v{t2}, v{t1}")
        rb(e, dst)
    exp_bf(46, 46, 48, 49); exp_bf(40, 40, 50, 51)
    e("v_mul_f32 v40, v40, v46\nv_mul_f32 v41, v41, v46")
    e("v_max_f32 v48, abs(v42), abs(v43)\nv_max3_f32 v48, abs(v44), abs(v45), v48")
    for m in ("quad_perm:[1,0,3,2]", "quad_perm:[2,3,0,1]", "row_ror:4", "row_ror:8"):
        e(f"v_max_f32_dpp v48, v48, v48 {m} {DPP}")
    e("v_readlane_b32 s30, v48, 0\nv_readlane_b32 s31, v48, 16\nv_readlane_b32 s71, v48, 32\nv_readlane_b32 s72, v48, 48")
    e("s_max_u32 s30, s30, s31\ns_max_u32 s71, s71, s72\ns_max_u32 s30, s30, s71\ns_and_b32 s30, s30, 0x7f800000\ns_sub_u32 s31, 0x7f000000, s30")
    e("v_mul_f32 v42, s31, v42\nv_mul_f32 v43, s31, v43")
    e("v_mul_f32 v46, s30, v46\nv_add_f32 v46, v46, v46")
    W1, W8, W256, W2_, W4, W16 = 56, 58, 60, 62, 64, 66
    def wexp(dst, p, t):
        e(f"v_mul_f32 v{t}, {f32(-L2E_HI*p)}, v40\nv_exp_f32 v{t}, v{t}")
        e(f"v_mul_f32 v{t+1}, {f32(float(p))}, v41")
        e(f"v_mul_f32 v{t+2}, {f32(I2PI_HI)}, v{t+1}\ns_mov_b32 s30, {f32(I2PI_HI)}\nv_fma_f32 v{t+3}, v{t+1}, s30, -v{t+2}\nv_fmac_f32 v{t+3}, {f32(I2PI_LO)}, v{t+1}")
        e(f"v_fract_f32 v{t+2}, v{t+2}\nv_add_f32 v{t+2}, v{t+2}, v{t+3}")
        e(f"v_cos_f32 v{dst}, v{t+2}\nv_sin_f32 v{dst+1}, v{t+2}")
        e(f"v_mul_f32 v{dst}, v{dst}, v{t}\nv_mul_f32 v{dst+1}, v{dst+1}, v{t}")
    C0 = 42
    old = e.lines; parts = []
    for dst, p, t in ((W8, 8, 48), (W256, 256, 52), (W1, 1, 68)):
        e.lines = []; wexp(dst, p, t); parts.append(e.lines)
    e.lines = old
    for i in range(len(parts[0])):
        for P_ in parts: e.lines.append(P_[i])
    def cm1(d, a, b): return f"v_pk_mul_f32 {vr(d,2)}, {vr(a,2)}, {vr(b,2)} op_sel_hi:[1,0]"
    def cm2(d, a, b): return f"v_pk_fma_f32 {vr(d,2)}, {vr(a,2)}, {vr(b,2)}, {vr(d,2)} op_sel:[1,1,0] op_sel_hi:[0,1,1] neg_lo:[1,0,0]"
    RF = 128; LF = 160; D = 208
    W24, W32, W512 = 68, 70, 72
    Lr = {i: 160 + 2 * i for i in range(27)}; Lr[0] = C0
    PR = 216; PL = 128
    ONE = 74
    e(f"v_mov_b32 v{ONE}, 1.0\nv_mov_b32 v{ONE+1}, 0")
    Rr = {0: ONE, 1: W8, 2: W16, 3: W24}
    for b in range(4, 32): Rr[b] = 76 + 4 * (b % 4) + 2 * ((b // 4) % 2)
    Rr[4] = W32
    G = {1: 8, 2: 13, 3: 16, 4: 19, 5: 21, 6: 23, 7: 25}
    groups = [
        [(W16, W8, W8, ('R', 2)), (Lr[8], C0, W256, ('L', 8)), (W2_, W1, W1, None), (W512, W256, W256, None), (Lr[1], C0, W1, ('L', 1))],
        [(W32, W16, W16, ('R', 4)), (W24, W16, W8, ('R', 3)), (W4, W2_, W2_, None), (Lr[13], Lr[8], W256, ('L', 13)), (Lr[16], Lr[8], W512, ('L', 16)), (Lr[2], C0, W2_, ('L', 2))],
    ]
    rest = [(Lr[19], Lr[13], W512, ('L', 19)), (Lr[21], Lr[16], W512, ('L', 21)), (Lr[3], Lr[1], W2_, ('L', 3)),
            (Lr[4], C0, W4, ('L', 4)), (Lr[5], Lr[1], W4, ('L', 5)), (Lr[6], Lr[2], W4, ('L', 6)),
            (Lr[23], Lr[19], W512, ('L', 23)), (Lr[25], Lr[21], W512, ('L', 25)), (Lr[7], Lr[3], W4, ('L', 7)),
            (Lr[9], Lr[8], W2_, ('L', 9)), (Lr[10], Lr[8], W4, ('L', 10)), (Lr[12], Lr[8], W8, ('L', 12)),
            (Lr[11], Lr[9], W4, ('L', 11)), (Lr[14], Lr[13], W4, ('L', 14)), (Lr[15], Lr[13], W8, ('L', 15)),
            (Lr[17], Lr[16], W4, ('L', 17)), (Lr[18], Lr[16], W8, ('L', 18)), (Lr[20], Lr[19], W8, ('L', 20)),
            (Lr[22], Lr[21], W8, ('L', 22)), (Lr[24], Lr[23], W8, ('L', 24)), (Lr[26], Lr[25], W8, ('L', 26))]
    for j in range(7):
        g = [(Rr[b], Rr[b - 4], W32, ('R', b)) for b in range(4 * j + 4, 4 * j + 8) if b != 4]
        g += rest[3 * j:3 * j + 3]
        groups.append(g)
    done = set()
    def cvt(tag):
        kind, i = tag
        src = Rr[i] if kind == 'R' else Lr[i]; dst = (PR if kind == 'R' else PL) + i
        e(f"v_cvt_pk_f16_f32 v{dst}, v{src}, {'-' if kind == 'L' else ''}v{src+1}"); done.add(tag)
    def fragread(x, dst):
        for q in range(4): e(f"ds_read_b128 {vr(dst+4*q,4)}, v{RA+x if q == 0 else RA+4+3*x+q-1}")
    Q = []
    def wr(kind, base, n, first):
        for r in range(0, n, 2):
            p = (PR if kind == 'R' else PL) + first + r
            if r + 1 < n: Q.append(({(kind, first + r), (kind, first + r + 1)}, f"ds_write2st64_b32 v{TA+r//2}, v{p}, v{p+1} offset0:{r} offset1:{r+1}"))
            else: Q.append(({(kind, first + r)}, f"ds_write_b32 v{TA+r//2}, v{p} offset:{256*r}"))
    RFa, RFb = 32, 92
    wr('R', 0, 16, 0); Q.append((set(), ('fr', 0, 0)))
    wr('R', 0, 16, 16); Q.append((set(), ('fr', 0, 1)))
    wr('L', 0, 13, 0); Q.append((set(), ('fr', 1, 2)))
    wr('L', 0, 14, 13); Q.append((set(), ('fr', 2, 3))); Q.append((set(), ('fr', 3, 4)))
    FD = {0: 216, 1: 232, 2: 160, 3: 176, 4: 192}
    allc = {('L', i) for i in range(27)}
    def drain(maxn=99):
        n = 0
        while Q and n < maxn:
            needs, t = Q[0]
            if isinstance(t, tuple):
                if t[2] >= 2 and not allc <= done: break
                fragread(t[1], FD[t[2]])
            else:
                if not needs <= done: break
                e(t)
            Q.pop(0); n += 1
    for tag in (('R', 0), ('R', 1), ('L', 0)): cvt(tag)
    prev = []
    for g in groups:
        for (d, a, b, tag) in g: e(cm1(d, a, b))
        for tag in prev: cvt(tag)
        drain(3)
        for (d, a, b, tag) in g: e(cm2(d, a, b))
        prev = [tag for (_, _, _, tag) in g if tag]
    for tag in prev: cvt(tag)
    drain()
    assert not Q
    DD = 48
    def kmfma(ti):
        for q in range(4):
            for ct in range(2):
                d = DD + 8 * ti + 4 * ct
                e(f"v_mfma_f32_16x16x32_f16 {vr(d,4)}, {vr(FD[2+ti]+4*q,4)}, {vr(FD[ct]+4*q,4)}, {'0' if q == 0 else vr(d,4)}")
    e("s_waitcnt lgkmcnt(15)")
    kmfma(0)
    e("s_waitcnt lgkmcnt(4)")
    kmfma(1)
    e("s_waitcnt lgkmcnt(0)")
    kmfma(2)
    for ti in range(3):
        for ct in range(2):
            d = DD + 8 * ti + 4 * ct
            for h in range(2): e(f"v_pk_mul_f32 {vr(d+2*h,2)}, {vr(d+2*h,2)}, v[46:47] op_sel_hi:[1,0]")
            e(f"ds_write_b128 v104, {vr(d,4)} offset:{8192*ct+1024*ti}")

def gen_A(e):
    srd(e, 8, 66, WS_SIZE)
    e("s_mov_b32 s38, 0xffff0000")
    e("s_cmp_lg_u32 s2, 255\ns_cbranch_scc1 A_NOZ\ns_cmp_lg_u32 s3, 0\ns_cbranch_scc1 A_NOZ")
    e(f"v_mov_b32 v3, 0\ns_mov_b32 s31, {WS_EPW}\nbuffer_load_dword v4, v3, s[8:11], s31 offen sc1\ns_waitcnt vmcnt(0)")
    e("v_add_u32 v4, 1, v4\nv_max_u32 v4, 1, v4\nv_cmp_eq_u32 vcc, 0, v1\ns_and_saveexec_b64 s[74:75], vcc")
    e("global_store_dword v3, v4, s[64:65] sc1\nbuffer_store_dword v4, v3, s[8:11], s31 offen sc1\ns_mov_b64 exec, s[74:75]\ns_waitcnt vmcnt(0)")
    e.label("A_NOZ")
    e("v_bfe_u32 v3, v1, 4, 1\nv_lshrrev_b32 v12, 5, v1\nv_bfe_u32 v13, v1, 2, 2\nv_and_b32 v15, 3, v1")
    e("v_lshl_add_u32 v12, v12, 3, v13\nv_lshlrev_b32 v12, 7, v12\nv_lshl_add_u32 v12, v3, 13, v12\nv_lshl_add_u32 v12, v15, 3, v12\nv_add_u32 v12, 32768, v12")
    e("v_lshrrev_b32 v13, 1, v13\nv_lshl_add_u32 v13, v3, 1, v13\nv_lshl_add_u32 v20, v13, 5, v12")
    for t in range(1, 4): e(f"v_xor_b32 v{20+t}, {t<<5}, v20")
    e("v_and_b32 v3, 31, v1\nv_lshrrev_b32 v12, 5, v1\nv_bfe_u32 v13, v3, 1, 3\nv_xor_b32 v13, v12, v13")
    e("v_lshl_add_u32 v3, v2, 6, v3\nv_lshlrev_b32 v3, 7, v3\nv_lshl_add_u32 v24, v13, 4, v3")
    for s in range(1, 4): e(f"v_xor_b32 v{24+s}, {s<<5}, v24")
    gen_kaddr(e)
    e(f"v_mov_b32 v6, 0\nv_mov_b32 v7, 0\nv_lshlrev_b32 v5, 3, v2\nds_write_b64 v5, v[6:7] offset:{LCNT-131072}".replace("v_lshlrev_b32 v5, 3, v2", "v_lshlrev_b32 v5, 3, v2\nv_add_u32 v5, 131072, v5"))
    e(f"v_and_b32 v18, 31, v1\nv_lshl_add_u32 v18, v2, 6, v18\nv_lshlrev_b32 v18, 3, v18\nv_add_u32 v18, {LSTAT}, v18\nv_mov_b32 v19, {LCNT}")
    e.stamp(1)
    e("s_waitcnt vmcnt(1)")
    e.stamp(2)
    gen_kgen(e)
    e("s_waitcnt vmcnt(0) lgkmcnt(0)")
    e.stamp(3)
    ACC = 128
    FA = [32, 56]
    e("s_cmp_eq_u32 s28, 1\ns_cbranch_scc1 A_G1")
    for i in range(9): e("s_barrier")
    e("ds_read_b64 v[16:17], v19 offset:32")
    e("s_branch A_CONV")
    e.label("A_G1")
    def reads(buf, s):
        L = []
        for mi in range(2): L.append(f"ds_read_b128 {vr(FA[buf]+16+4*mi,4)}, v{24+s} offset:{4096*mi}")
        for t in range(4):
            for j in range(2): L.append(f"ds_read_b64_tr_b16 {vr(FA[buf]+4*t+2*j,2)}, v{20+t} offset:{2048*s+512*j}")
        return L
    def mfmas(buf, zero=False):
        return [f"v_mfma_f32_32x32x16_bf16 {vr(ACC+16*(2*t+mi),16)}, {vr(FA[buf]+4*t,4)}, {vr(FA[buf]+16+4*mi,4)}, {'0' if zero else vr(ACC+16*(2*t+mi),16)}" for t in range(4) for mi in range(2)]
    def interleave(M, F, per=2):
        k = 0; n = len(F)
        for i, m in enumerate(M):
            e(m)
            cnt = -(-(n - k) // (len(M) - i)) if n - k > per * (len(M) - i) else min(per, n - k)
            for _ in range(cnt): e(F[k]); k += 1
        assert k == n
    e(f"s_mov_b32 s37, 0\ns_mov_b32 s36, 0\ns_mov_b32 s38, {STG}")
    e("s_barrier")
    e.stamp(4)
    for r in reads(0, 0): e(r)
    e("s_waitcnt lgkmcnt(0)")
    interleave(mfmas(0, True), reads(1, 1))
    e("s_branch A_K1")
    e.label("A_LOOP")
    for s in range(3):
        if s == 1: e.label("A_K1")
        e("s_waitcnt lgkmcnt(0)")
        F = reads((s + 1) % 2, s + 1)
        if s == 2:
            F = F + [f"s_cmp_eq_u32 s36, {2*STG}\ns_cselect_b32 s39, {(-2*STG) & 0xffffffff}, s38"] + [f"v_add_u32 v{20+i}, s39, v{20+i}\nv_add_u32 v{21+i}, s39, v{21+i}" for i in range(0, 8, 2)]
        interleave(mfmas(s % 2), F)
    e("s_waitcnt lgkmcnt(0)\ns_barrier")
    interleave(mfmas(1), reads(0, 0) + ["s_add_u32 s36, s36, s39\ns_add_u32 s37, s37, 1\ns_cmp_lt_u32 s37, 8"])
    e("s_cbranch_scc1 A_LOOP")
    e.stamp(5)
    if APRIO: e(f"s_setprio {APRIO}")
    e(f"v_lshrrev_b32 v12, 5, v1\nv_lshlrev_b32 v12, 4, v12\nv_add_u32 v12, {LCS}, v12")
    e("s_waitcnt lgkmcnt(0)")
    CS = 32
    e("ds_read_b64 v[4:5], v18\nds_read_b64 v[6:7], v18 offset:256\nds_read_b64 v[16:17], v19 offset:32")
    for t in range(4):
        for g in range(2):
            e(f"ds_read_b128 {vr(CS+16*t+4*g,4)}, v12 offset:{64*t+32*g}")
            e(f"ds_read_b128 {vr(CS+16*t+8+4*g,4)}, v12 offset:{256+64*t+32*g}")
    e(f"s_lshl_b32 s31, s24, 3\ns_lshl_b32 s30, s29, 1\ns_add_u32 s31, s31, s30\ns_mul_i32 s31, s31, 112\ns_lshl_b32 s30, s25, 2\ns_add_u32 s31, s31, s30\ns_lshl_b32 s31, s31, 10\ns_add_u32 s31, s31, {WS_H}\ns_add_u32 s30, s31, {112*1024}")
    e("v_lshlrev_b32 v3, 4, v1")
    e("s_waitcnt lgkmcnt(0)")
    for mi in range(2):
        b = 8 + 4 * mi; s = 4 + 2 * mi
        e(f"v_sub_f32 v{b}, 0, v{s}\nv_mul_f32 v{b+1}, {f32(-LOG2E)}, v{s+1}\nv_mul_f32 v{b+2}, v{s+1}, v{s+1}\nv_rcp_f32 v{b+2}, v{b+2}")
    TM = 96
    for t in range(4):
        for mi in range(2):
            a = ACC + 16 * (2 * t + mi); b = 8 + 4 * mi
            o = 112 + 4 * ((2 * t + mi) % 4)
            for p in range(4):
                G = a + 2 * p; U = a + 8 + 2 * p; cg = CS + 16 * t + 2 * p; cu = CS + 16 * t + 8 + 2 * p
                z = TM + 2 * p
                e(f"v_pk_fma_f32 {vr(G,2)}, {vr(cg,2)}, {vr(b,2)}, {vr(G,2)} op_sel_hi:[1,0,1]")
                e(f"v_pk_fma_f32 {vr(U,2)}, {vr(cu,2)}, {vr(b,2)}, {vr(U,2)} op_sel_hi:[1,0,1]")
                e(f"v_pk_mul_f32 {vr(z,2)}, {vr(G,2)}, {vr(b,2)} op_sel:[0,1] op_sel_hi:[1,1]")
            for p in range(4):
                z = TM + 2 * p
                e(f"v_exp_f32 v{z}, v{z}\nv_exp_f32 v{z+1}, v{z+1}")
            for p in range(4):
                G = a + 2 * p; U = a + 8 + 2 * p; z = TM + 2 * p
                e(f"v_pk_mul_f32 {vr(G,2)}, {vr(G,2)}, {vr(U,2)}")
                e(f"v_pk_fma_f32 {vr(z,2)}, {vr(z,2)}, {vr(b+2,2)}, {vr(b+2,2)} op_sel_hi:[1,0,0]")
            for p in range(4):
                z = TM + 2 * p
                e(f"v_rcp_f32 v{z}, v{z}\nv_rcp_f32 v{z+1}, v{z+1}")
            for p in range(4):
                G = a + 2 * p; z = TM + 2 * p
                e(f"v_pk_mul_f32 {vr(G,2)}, {vr(G,2)}, {vr(z,2)}")
            for p in range(4):
                G = a + 2 * p
                e(f"v_cvt_pk_bf16_f32 v{o+p}, v{G}, v{G+1}")
            e(f"buffer_store_dwordx4 {vr(o,4)}, v3, s[8:11], {'s31' if mi == 0 else 's30'} offen offset:{1024*t} sc1")
    e.stamp(6)
    e(f"s_lshl_b32 s31, s24, 2\ns_add_u32 s31, s31, s29\ns_mul_i32 s31, s31, 28\ns_add_u32 s31, s31, s25\ns_lshl_b32 s31, s31, 7\ns_add_u32 s31, s31, {WS_HF}")
    e("v_mov_b32 v3, 0\nv_cmp_eq_u32 vcc, 0, v1\ns_waitcnt vmcnt(0)\ns_and_saveexec_b64 s[74:75], vcc")
    e("buffer_store_dwordx2 v[16:17], v3, s[8:11], s31 offen sc1\ns_mov_b64 exec, s[74:75]")
    e.stamp(7)
    if APRIO: e("s_setprio 0")
    e.label("A_CONV")
    e("v_and_b32 v24, 15, v1\nv_lshrrev_b32 v25, 4, v1")
    e(f"v_and_b32 v26, 3, v24\nv_mul_u32_u24 v26, {UP}, v26\nv_lshrrev_b32 v27, 2, v24\nv_lshl_add_u32 v26, v27, 7, v26\nv_lshl_add_u32 v26, v25, 4, v26")
    e(f"v_mul_u32_u24 v27, {UCH}, v28\nv_add_u32 v26, v26, v27\nv_and_b32 v31, 1, v2\nv_lshl_add_u32 v26, v31, 8, v26\nv_add_u32 v26, {UB}, v26")
    e(f"v_mul_u32_u24 v5, {KCH}, v28\nv_add_u32 v5, {KB}, v5")
    e(f"v_lshrrev_b32 v27, 1, v24\nv_sub_u32 v27, v25, v27\nv_add_u32 v27, 7, v27\nv_lshl_add_u32 v27, v27, 4, v5\nv_lshl_add_u32 v27, v31, 8, v27")
    e(f"v_and_b32 v29, 1, v24\nv_xor_b32 v29, 1, v29\nv_mul_u32_u24 v29, {KS_OFF}, v29\nv_add_u32 v27, v27, v29")
    e(f"v_mov_b32 v6, {LCNT}")
    lds_poll(e, "A_KU", "v6", 0, 4, 7)
    CA = 200
    FU = [32, 96]
    def creads(buf, s):
        L = []
        for p in range(8):
            L.append(f"ds_read_b128 {vr(FU[buf]+32+4*p,4)}, v27 offset:{512*(7-p)+64*s}")
            L.append(f"ds_read_b128 {vr(FU[buf]+4*p,4)}, v26 offset:{512*p+64*s}")
        return L
    for r in creads(0, 0): e(r)
    for s in range(4):
        e("s_waitcnt lgkmcnt(0)")
        nxt = creads((s + 1) % 2, s + 1) if s < 3 else []
        k = 0; cnt = 0
        for q in range(8):
            for t in range(q, 8):
                a = CA + 4 * t
                c = "0" if (s == 0 and q == 0) else vr(a, 4)
                e(f"v_mfma_f32_16x16x32_bf16 {vr(a,4)}, {vr(FU[s%2]+4*(t-q),4)}, {vr(FU[s%2]+32+4*q,4)}, {c}")
                cnt += 1
                if k < len(nxt) and cnt % 2 == 0: e(nxt[k]); k += 1
        assert k == len(nxt)
    e.stamp(8)
    e(f"v_mul_u32_u24 v8, {UCH}, v28\nv_lshl_add_u32 v8, v1, 4, v8\nv_add_u32 v8, {UB}, v8\nv_xor_b32 v9, 1, v31\nv_mad_u32_u24 v9, v9, s33, v8\nv_mad_u32_u24 v8, v31, s33, v8".replace("v_mul_u32_u24 v8", f"s_mov_b32 s33, {UP}\nv_mul_u32_u24 v8"))
    e(f"v_lshlrev_b32 v10, 2, v2\nv_add_u32 v10, {LCNT+16}, v10\nv_xor_b32 v11, 4, v10\nv_mov_b32 v12, 1\nv_mov_b32 v13, 2")
    e("ds_write_b32 v10, v12")
    lds_poll(e, "A_P0", "v11", 0, 1, 7)
    e("s_and_b32 s30, s29, 1\ns_cmp_eq_u32 s30, 1\ns_cbranch_scc1 A_ODD")
    for i in range(4): e(f"ds_write_b128 v8, {vr(CA+16+4*i,4)} offset:{1024*i}")
    e("s_branch A_J")
    e.label("A_ODD")
    e("s_nop 7")
    for i in range(4): e(f"ds_write_b128 v8, {vr(CA+4*i,4)} offset:{1024*i}")
    for i in range(16): e(f"v_mov_b32 v{CA+i}, v{CA+16+i}")
    e.label("A_J")
    e("ds_write_b32 v10, v13")
    e(f"v_mul_u32_u24 v26, {UCH}, v28\nv_lshl_add_u32 v26, v1, 3, v26\nv_lshl_add_u32 v26, v31, 11, v26\nv_add_u32 v26, {UB}, v26")
    for i in range(4): e(f"ds_read_b64 {vr(48+2*i,2)}, v26 offset:{3*UP+384+512*i}")
    lds_poll(e, "A_PR", "v11", 0, 2, 7)
    for i in range(4): e(f"ds_read_b128 {vr(32+4*i,4)}, v9 offset:{1024*i}")
    e(f"v_lshlrev_b32 v27, 3, v1\nv_lshl_add_u32 v27, v2, 11, v27\ns_lshl_b32 s31, s2, 13\ns_add_u32 s31, s31, {WS_AT}\ns_mov_b32 s38, 0xffff0000")
    e("s_waitcnt lgkmcnt(0)\nv_lshlrev_b32 v30, 16, v30")
    for i in range(4):
        a = CA + 4 * i; b = 32 + 4 * i; x = 48 + 2 * i; t = 60
        for q in range(4): e(f"v_add_f32 v{a+q}, v{a+q}, v{b+q}")
        e(f"v_cvt_pk_bf16_f32 v{b}, v{a}, v{a+1}\nv_cvt_pk_bf16_f32 v{b+1}, v{a+2}, v{a+3}")
        for q in range(4):
            e(f"v_lshlrev_b32 v{t+q}, 16, v{x+(q>>1)}" if q % 2 == 0 else f"v_and_b32 v{t+q}, s38, v{x+(q>>1)}")
            e(f"v_mul_f32 v{t+q}, v30, v{t+q}")
        e(f"v_cvt_pk_bf16_f32 v{b+2}, v{t}, v{t+1}\nv_cvt_pk_bf16_f32 v{b+3}, v{t+2}, v{t+3}")
        for q in range(4):
            e(f"v_lshlrev_b32 v{t+q}, 16, v{b+(q>>1)}" if q % 2 == 0 else f"v_and_b32 v{t+q}, s38, v{b+(q>>1)}")
            e(f"v_lshlrev_b32 v{t+4+q}, 16, v{b+2+(q>>1)}" if q % 2 == 0 else f"v_and_b32 v{t+4+q}, s38, v{b+2+(q>>1)}")
            e(f"v_add_f32 v{t+q}, v{t+q}, v{t+4+q}")
        e(f"v_cvt_pk_bf16_f32 v{a}, v{t}, v{t+1}\nv_cvt_pk_bf16_f32 v{a+1}, v{t+2}, v{t+3}")
        e(f"buffer_store_dwordx2 {vr(a,2)}, v27, s[8:11], s31 offen offset:{512*i} sc1")
    e(f"s_lshl_b32 s31, s2, 9\ns_lshl_b32 s30, s29, 7\ns_add_u32 s31, s31, s30\ns_add_u32 s31, s31, {WS_AF}")
    e("v_mov_b32 v3, 0\nv_cmp_eq_u32 vcc, 0, v1\ns_waitcnt vmcnt(0)\ns_and_saveexec_b64 s[74:75], vcc")
    e("buffer_store_dwordx2 v[16:17], v3, s[8:11], s31 offen sc1\ns_mov_b64 exec, s[74:75]")
    e.stamp(9)
    e.stamp_out("PA", 0, 0, vt=100)

NAME = "parallel_sum__ssm_conv_s4d__glu_gated_swiglu__prompt_kernel"
if __name__ == "__main__":
    Asm.PROFILE = len(sys.argv) > 2
    out = ["; @launch grid=(256,1,1) block=(512,1,1) lds=163840", '.amdgcn_target "amdgcn-amd-amdhsa--gfx950"\n.text']
    out.append(kernel_header(NAME) + gen())
    out.append('.section .rodata,"a"\n.p2align 6\n' + kernel_desc(NAME, 256, 256))
    open(sys.argv[1], "w").write("\n".join(out))
```

```python
import re

TRANS = ("v_exp_f32", "v_log_f32", "v_rcp_f32", "v_rsq_f32", "v_sqrt_f32", "v_sin_f32", "v_cos_f32", "v_rcp_iflag_f32",
         "v_exp_f16", "v_rcp_f16")

def _regs(tok):
    tok = tok.strip()
    tok = re.sub(r"^-|^\|", "", tok); tok = tok.rstrip("|")
    m = re.match(r"^abs\((.*)\)$", tok)
    if m: tok = m.group(1)
    m = re.match(r"^([vas])\[(\d+):(\d+)\]$", tok)
    if m: return {(m.group(1), i) for i in range(int(m.group(2)), int(m.group(3)) + 1)}
    m = re.match(r"^([vas])(\d+)$", tok)
    if m: return {(m.group(1), int(m.group(2)))}
    if tok == "vcc": return {("s", 106), ("s", 107)}
    if tok == "vcc_lo": return {("s", 106)}
    if tok == "vcc_hi": return {("s", 107)}
    if tok == "exec": return {("s", 126), ("s", 127)}
    if tok == "m0": return {("s", 124)}
    return set()

class Ins:
    def __init__(self, text):
        self.text = text
        t = text.split(";")[0].strip()
        self.label = t.endswith(":")
        self.op = t.split()[0] if t else ""
        rest = t[len(self.op):].strip()
        ops = []; depth = 0; cur = ""
        for ch in rest:
            if ch in "[(": depth += 1
            if ch in "])": depth -= 1
            if ch == "," and depth == 0: ops.append(cur.strip()); cur = ""
            else: cur += ch
        if cur.strip(): ops.append(cur.strip())
        self.mods = ""
        if ops:
            last = ops[-1]
            depth = 0
            for i, ch in enumerate(last):
                if ch in "[(": depth += 1
                if ch in "])": depth -= 1
                if ch == " " and depth == 0:
                    self.mods = last[i:]; ops[-1] = last[:i]; break
        self.ops = ops
        op = self.op
        self.w = set(); self.r = set()
        self.kind = "other"
        R = [_regs(o) for o in ops]
        if op.startswith("v_mfma"):
            self.kind = "mfma"; self.w = R[0]; self.ra = R[1] | R[2]; self.rc = R[3]; self.r = self.ra | self.rc
            self.passes = 8 if "32x32" in op else 4
            if op.endswith("_f32") and ("32x32x2" in op): self.passes = 16
            if op.endswith("_f32") and ("16x16x4" in op): self.passes = 8
        elif op.startswith("v_"):
            self.kind = "valu"
            if op.startswith("v_cmp"):
                self.w = R[0]; self.r = set().union(*R[1:])
                if op.startswith("v_cmpx"): self.w |= _regs("exec")
            elif op.startswith("v_permlane") and "swap" in op:
                self.w = R[0] | R[1]; self.r = R[0] | R[1]
            elif op.startswith(("v_add_co", "v_sub_co", "v_addc_co", "v_subb_co", "v_div_scale", "v_mad_u64")):
                self.w = R[0] | R[1]; self.r = set().union(*R[2:])
            else:
                self.w = R[0]; self.r = set().union(*R[1:]) if len(R) > 1 else set()
                if op.startswith(("v_fmac", "v_dot2c", "v_pk_fmac")): self.r |= R[0]
                if op.startswith("v_cndmask") and len(ops) == 3: self.r |= _regs("vcc")
                if "dst_sel:WORD" in self.mods or "_d16" in op or "row_mask" in self.mods: self.r |= R[0]
        elif op.startswith("ds_"):
            self.kind = "ds"
            if op.startswith(("ds_read", "ds_bpermute", "ds_permute", "ds_swizzle")):
                self.w = R[0]; self.r = set().union(*R[1:])
            else:
                self.r = set().union(*R)
        elif op.startswith(("buffer_", "global_")):
            self.kind = "vmem"
            if op in ("buffer_inv", "buffer_wbl2"): pass
            elif "load" in op and " lds" not in self.mods and "_lds_" not in op:
                self.w = R[0]; self.r = set().union(*R[1:])
                if "d16" in op: self.r |= R[0]
            else:
                self.r = set().union(*R) if R else set()
                if " lds" in self.mods or "_lds_" in op: self.r |= _regs("m0"); self.ldsdma = True
                if "atomic" in op and "sc0" in self.mods: self.w = R[0]
            self.store_data = set()
            if "store" in op and ("x4" in op or "x3" in op):
                self.store_data = R[0] if op.startswith("buffer") else R[1]
        elif op.startswith("s_"):
            self.kind = "salu"
            if op.startswith(("s_cmp", "s_cbranch", "s_branch", "s_waitcnt", "s_barrier", "s_nop", "s_endpgm", "s_sleep", "s_setprio")):
                self.r = set().union(*R) if R else set()
            else:
                self.w = R[0] if R else set(); self.r = set().union(*R[1:]) if len(R) > 1 else set()
                if "saveexec" in op: self.w |= _regs("exec"); self.r |= _regs("exec")
        self.dpp = any(k in self.mods for k in ("quad_perm", "row_shr", "row_shl", "row_ror", "row_bcast", "row_mirror", "row_half_mirror", "wave_", "row_newbcast"))
        self.states = 1
        if op == "s_nop": self.states = int(ops[0], 0) + 1
        if self.label or not op or op.startswith("."): self.states = 0

def need(prod, cons):
    n = 0
    P, C = prod, cons
    vw = {x for x in P.w if x[0] in "va"}; sw = {x for x in P.w if x[0] == "s"}
    if P.kind == "valu":
        if vw & C.r:
            if C.kind == "mfma": n = max(n, 2)
            if C.dpp: n = max(n, 2)
            if C.op.startswith("v_permlane"): n = max(n, 2)
            if C.op.startswith(("v_readfirstlane", "v_readlane")): n = max(n, 1)
            if P.op.startswith(TRANS) and C.kind in ("valu", "mfma", "ds", "vmem"): n = max(n, 1)
            if P.op.startswith("v_dot") and not (C.op == P.op and not (vw & set().union(*[_regs(o) for o in C.ops[1:3]]))): n = max(n, 3)
            if ("dst_sel:WORD" in P.mods or "op_sel" in P.mods and not P.op.startswith("v_pk")) and C.kind == "valu": n = max(n, 1)
        if P.op.startswith("v_dot") and (vw & C.w) and C.op != P.op: n = max(n, 3)
        if sw & C.r:
            if C.kind == "vmem": n = max(n, 5)
            if C.kind in ("valu",): n = max(n, 4 if C.op.startswith(("v_readlane", "v_writelane", "v_div_fmas")) else 2)
            if C.kind == "salu": n = max(n, 1)
        if (("s", 126) in sw):
            if C.dpp: n = max(n, 5)
            if C.kind == "mfma" or C.op.startswith(("v_permlane", "v_readlane", "v_readfirstlane")): n = max(n, 4)
    if P.kind == "salu":
        if ("s", 124) in P.w and getattr(C, "ldsdma", False): n = max(n, 1)
    if P.kind == "vmem" and getattr(P, "store_data", None):
        if P.store_data & C.w: n = max(n, 2)
    if P.kind == "mfma":
        tab_ab = {4: 8, 8: 12, 16: 20}[P.passes]
        if C.kind == "mfma":
            if P.w & C.ra: n = max(n, tab_ab)
            if P.w & C.rc:
                if P.w == C.rc and P.passes == C.passes: pass
                else: n = max(n, {4: 6, 8: 10, 16: 18}[P.passes])
            elif P.w & C.w: n = max(n, tab_ab)
        else:
            if P.w & (C.r | C.w): n = max(n, tab_ab)
            if C.kind == "valu" and (P.rc & C.w): n = max(n, {4: 3, 8: 7, 16: 15}[P.passes])
    return n

class Asm:
    def __init__(self):
        self.lines = []
    def __call__(self, s):
        for l in s.split("\n"):
            l = l.strip()
            if l: self.lines.append(l)
    def c(self, s): self.lines.append("; " + s)
    PROFILE = False
    def stamp(self, i):
        if not Asm.PROFILE: return
        assert i < 10
        self(f"s_memtime s[{78+2*i}:{79+2*i}]")
        if i == 0: self("s_memrealtime s[98:99]\ns_waitcnt lgkmcnt(0)")
        else: self("s_waitcnt lgkmcnt(0)") if Asm.PROFILE == 2 else None
        self.nst = max(getattr(self, "nst", 0), i + 1)
    def stamp_out(self, tag, tid, role, ws_srd="s[8:11]", base=0x20000, vt=2):
        if not Asm.PROFILE: return
        self("s_memrealtime s[100:101]\ns_waitcnt lgkmcnt(0) vmcnt(0)")
        self(f"v_cmp_eq_u32 vcc, {tid}, v0\ns_and_saveexec_b64 s[70:71], vcc\ns_cbranch_execz {tag}_PEND")
        self(f"s_lshl_b32 s72, s2, 7\ns_add_u32 s72, s72, {base + 64*role}\nv_mov_b32 v{vt+1}, 0")
        for i in range(1, 10):
            self(f"s_sub_u32 s69, s{78+2*i}, s78\nv_mov_b32 v{vt}, s69\nbuffer_store_dword v{vt}, v{vt+1}, {ws_srd}, s72 offen offset:{4*i}\ns_nop 1")
        self(f"s_sub_u32 s69, s100, s98\nv_mov_b32 v{vt}, s69\nbuffer_store_dword v{vt}, v{vt+1}, {ws_srd}, s72 offen offset:0\ns_nop 1")
        self(f"v_mov_b32 v{vt}, s98\nbuffer_store_dword v{vt}, v{vt+1}, {ws_srd}, s72 offen offset:60\ns_nop 1")
        self.label(f"{tag}_PEND")
        self("s_mov_b64 exec, s[70:71]")
    def label(self, s): self.lines.append(s + ":")
    def text(self, autopad=True):
        out = []
        hist = []
        for l in self.lines:
            if l.startswith(";") or l.startswith("."):
                out.append(l); continue
            I = Ins(l)
            if I.label:
                out.append(l); continue
            if autopad:
                dist = 0; pad = 0
                for P in reversed(hist):
                    nd = need(P, I)
                    if nd - dist > pad: pad = nd - dist
                    dist += P.states
                    if dist > 24: break
                while pad > 0:
                    k = min(pad, 16)
                    nop = Ins(f"s_nop {k-1}")
                    out.append(f"    s_nop {k-1} ; auto"); hist.append(nop); pad -= k
            out.append("    " + l); hist.append(I)
            if len(hist) > 40: hist = hist[-40:]
        return "\n".join(out) + "\n"

def kernel_header(name):
    return f".globl {name}\n.p2align 8\n.type {name},@function\n{name}:\n"

def kernel_desc(name, vgpr, accum, sgpr=102):
    return f""".amdhsa_kernel {name}
  .amdhsa_next_free_vgpr {vgpr}
  .amdhsa_next_free_sgpr {sgpr}
  .amdhsa_accum_offset {accum}
  .amdhsa_group_segment_fixed_size 0
  .amdhsa_kernarg_size 112
  .amdhsa_user_sgpr_count 2
  .amdhsa_user_sgpr_kernarg_segment_ptr 1
  .amdhsa_system_sgpr_workgroup_id_x 1
.end_amdhsa_kernel
"""
def vr(b, n): return f"v[{b}:{b+n-1}]" if n > 1 else f"v{b}"
def ar(b, n): return f"a[{b}:{b+n-1}]" if n > 1 else f"a{b}"
def sr(b, n): return f"s[{b}:{b+n-1}]" if n > 1 else f"s{b}"
import struct
def f32(x): return "0x%08x" % struct.unpack("<I", struct.pack("<f", x))[0]

class VM:
    def __init__(self, e): self.e = e; self.kinds = []
    def reset(self): self.kinds = []
    def add(self, kind, count=1):
        self.kinds += [kind] * count; return len(self.kinds)
    def op(self, text, kind='v'):
        self.e(text); return self.add(kind)
    def younger(self, idx, kind): return sum(1 for k in self.kinds[idx:] if k == kind)
    def wait(self, idx, extra=""):
        k = self.younger(idx, self.kinds[idx - 1])
        self.e(f"s_waitcnt vmcnt({min(k, 63)}){extra}")
```

```python
import sys, math, os
import numpy as np
from asmlib import *

def env(n, d): return int(os.environ.get(n, str(d)))
DIAG = env('DIAG', 0); PRIO = env('PRIO', 3); PREF = env('PREF', 1); SLEEP = env('SLEEP', 8); ROT = env('ROT', 1); ROT2 = env('ROT2', 1)
APRIO = env('APRIO', 3); W2PF = env('W2PF', 1); XL = 1; HFS = env('HFS', 1); NW0 = env('NW0', 2); RING = env('RING', 4); PACE = env('PACE', 1); PACEM = env('PACEM', 99); HPF = env('HPF', 0); CH = env('CH', 7); N6 = env('N6', 0); N7 = env('N7', 3); PFS = [int(c) for c in os.environ.get('PFS', '011112')]; SPIN = env('SPIN', 20000)
WS_STATS = 0x0
WS_EPW = 0x8000
WS_LNF = 0x40000
WS_HF = 0x50000
WS_AF = 0x80000
WS_XN2 = 0x100000
WS_H = 0x400000
WS_AT = 0xC00000
WS_SIZE = 0x1000000
STG = 49152
SPARE = 153600
KTAB = 2 * STG + 32768
KX = 2 * STG
UP = 4640; UCH = 4 * UP; UB = STG
KB = UB + 2 * UCH; KS_OFF = 4224; KCH = 147456 - KB
LCS = 163072; LCNT = LCS + 512; LSTAT = 160768
PLANE = 17408

LOG2E = math.log2(math.e)
L2E_HI = float(np.float32(LOG2E)); L2E_LO = float(np.float32(LOG2E - L2E_HI))
I2PI = 1 / (2 * math.pi)
I2PI_HI = float(np.float32(I2PI)); I2PI_LO = float(np.float32(I2PI - I2PI_HI))
LN2 = math.log(2)
DPP = "row_mask:0xf bank_mask:0xf"

def srd(e, d, ptr, nbytes):
    e(f"s_mov_b32 s{d}, s{ptr}\ns_mov_b32 s{d+1}, s{ptr+1}\ns_mov_b32 s{d+2}, {hex(nbytes)}\ns_mov_b32 s{d+3}, 0x00020000")

def poll(e, tag, load, check, sleep=None):
    e(f"s_mov_b32 s39, {SPIN}")
    e.label(f"{tag}_L")
    e(load); e("s_waitcnt vmcnt(0)"); e(check)
    e(f"s_cbranch_vccz {tag}_D\ns_sub_u32 s39, s39, 1\ns_cbranch_scc1 {tag}_D\ns_sleep {sleep or SLEEP}\ns_branch {tag}_L")
    e.label(f"{tag}_D")

def lds_poll(e, tag, vaddr, off, target, vt):
    e(f"s_mov_b32 s39, {SPIN*16}")
    e.label(f"{tag}_L")
    e(f"ds_read_b32 v{vt}, {vaddr} offset:{off}\ns_waitcnt lgkmcnt(0)\nv_cmp_gt_u32 vcc, {target}, v{vt}")
    e(f"s_cbranch_vccz {tag}_D\ns_sub_u32 s39, s39, 1\ns_cbranch_scc1 {tag}_D\ns_sleep 1\ns_branch {tag}_L")
    e.label(f"{tag}_D")

def merged(e, work, fillers, lead=0):
    old = e.lines; e.lines = []; work(); W = e.lines; e.lines = old
    n = len(W); m = len(fillers); k = 0
    for i in range(n + 1):
        while k < m and k * max(n - lead, 1) <= i * m: e(fillers[k]); k += 1
        if i < n: e.lines.append(W[i])
    assert k == m

def rb(e, r): e(f"v_cvt_pk_bf16_f32 v{r}, v{r}, v{r}\nv_lshlrev_b32 v{r}, 16, v{r}")

def gen():
    e = Asm()
    e("s_cmp_ge_u32 s2, 256\ns_cbranch_scc1 END")
    e.label("KSTART")
    e("s_getpc_b64 s[76:77]")
    e("s_load_dwordx16 s[40:55], s[0:1], 0\ns_load_dwordx8 s[56:63], s[0:1], 64\ns_load_dwordx4 s[64:67], s[0:1], 96")
    e.stamp(0)
    e("v_and_b32 v1, 63, v0\nv_lshrrev_b32 v2, 6, v0\nv_readfirstlane_b32 s3, v2\nv_and_b32 v2, 3, v2")
    if PREF:
        e("v_lshlrev_b32 v3, 6, v0\nv_min_u32 v3, KEND-KSTART-8, v3\ns_cmp_ge_u32 s3, 6\ns_cbranch_scc1 NOPF\nglobal_load_dword v31, v3, s[76:77]")
        e.label("NOPF")
    e(f"v_mov_b32 v6, 0\nv_mov_b32 v7, 0\nv_lshlrev_b32 v5, 3, v2\nv_add_u32 v5, {LCNT}, v5\nds_write_b64 v5, v[6:7]")
    e("s_and_b32 s30, s2, 7\ns_lshr_b32 s31, s2, 3")
    e("s_and_b32 s24, s30, 1\ns_lshl_b32 s24, s24, 2\ns_and_b32 s32, s31, 3\ns_add_u32 s24, s24, s32")
    e("s_lshr_b32 s25, s30, 1\ns_mul_i32 s25, s25, 7\ns_lshr_b32 s27, s31, 2\ns_add_u32 s25, s25, s27")
    e("s_lshl_b32 s26, s30, 2\ns_add_u32 s26, s26, s32")
    e("s_cmp_lt_u32 s2, 224\ns_cselect_b32 s28, 1, 0\ns_and_b32 s29, s3, 3\ns_lshl_b32 s77, s30, 5\ns_add_u32 s77, s77, s31")
    e("s_cmp_ge_u32 s3, 4\ns_cbranch_scc1 ROLE_B")
    e("v_lshrrev_b32 v28, 1, v2\nv_lshlrev_b32 v29, 1, v28\ns_lshl_b32 s36, s77, 2\nv_add_u32 v29, s36, v29")
    e("v_lshlrev_b32 v4, 1, v0\ns_lshl_b32 s36, s77, 9\nv_add_u32 v4, s36, v4\nv_xor_b32 v5, 128, v4")
    e("s_waitcnt lgkmcnt(0)")
    for i, (off, base) in enumerate(((4, 42), (4, 44), (4, 46), (4, 48), (5, 46), (5, 48), (29, 50))):
        e(f"global_load_ushort v{40+i}, v{off}, s[{base}:{base+1}]")
    e("global_load_ushort v30, v29, s[52:53]")
    e("s_barrier\ns_branch ROLE_A")
    e.label("ROLE_B")
    e("s_cmp_lg_u32 s3, 7\ns_cbranch_scc1 B_NOX")
    e("v_lshrrev_b32 v25, 3, v1\nv_lshlrev_b32 v25, 10, v25\nv_and_b32 v16, 7, v1\nv_lshl_add_u32 v25, v16, 4, v25\ns_lshl_b32 s31, s2, 13\nv_add_u32 v25, s31, v25\ns_waitcnt lgkmcnt(0)")
    for i in range(8): e(f"global_load_dwordx4 {vr(128+4*i,4)}, v25, s[40:41] offset:{128*i}")
    e.label("B_NOX")
    gen_B(e)
    e.label("ROLE_A")
    gen_A(e)
    e.label("END")
    e("s_endpgm")
    e.label("KEND")
    return e.text()

def dma_stage(e):
    for g in range(4):
        e(f"s_add_u32 m0, s36, {4096*g}")
        for i in range(4):
            e(f"buffer_load_dwordx4 v{(4 if g < 2 else 8)+i}, {'s[12:15]' if g < 2 else 's[20:23]'}, s{32+g} offen offset:{1024*i} lds")
    e("s_add_u32 s37, s37, 1\ns_cmp_eq_u32 s37, 8\ns_cselect_b32 s37, 0, s37\ns_cselect_b32 s31, s69, s68")
    for g in range(4): e(f"s_add_u32 s{32+g}, s{32+g}, s31")
    e(f"s_add_u32 s36, s36, {STG}\ns_cmp_ge_u32 s36, {3*STG}\ns_cselect_b32 s31, {3*STG}, 0\ns_sub_u32 s36, s36, s31")

def cs_groups(k):
    base = (k % 3) * STG
    a = "v24" if base < 65536 - 8192 else "v26"; off0 = base if base < 65536 - 8192 else 0
    R = [f"ds_read_b128 {vr(240+4*i,4)}, {a} offset:{off0 + 2048*i}" for i in range(4)]
    M = [f"v_mfma_f32_16x16x32_bf16 v[20:23], v[16:19], {vr(240+4*i,4)}, v[20:23]" for i in range(4)]
    return R, M

def gen_B(e):
    vm = VM(e)
    e("v_lshrrev_b32 v12, 3, v1\nv_and_b32 v16, 7, v1\nv_lshrrev_b32 v17, 4, v1\nv_lshrrev_b32 v3, 1, v2\nv_and_b32 v19, 1, v2")
    e("s_lshr_b32 s37, s2, 3\ns_and_b32 s37, s37, 3\ns_lshl_b32 s37, s37, 1\ns_add_u32 s37, s37, s27\ns_and_b32 s37, s37, 7" if ROT else "s_mov_b32 s37, 0")
    e("s_lshl_b32 s36, s29, 14\ns_mov_b32 s15, 0x00020000\ns_mov_b32 s23, 0x00020000")
    e("s_cmp_eq_u32 s29, 2\ns_cbranch_scc1 B_WOFF")
    e("v_xor_b32 v17, v16, v17\nv_lshlrev_b32 v12, 10, v12\nv_lshl_add_u32 v4, v17, 4, v12\nv_xor_b32 v18, 64, v4")
    for i in range(1, 4): e(f"v_add_u32 v{4+i}, {8192*i - 1024*i}, {'v4' if i % 2 == 0 else 'v18'}")
    for i in range(4): e(f"v_mov_b32 v{8+i}, v{4+i}")
    e(f"s_lshl_b32 s32, s24, 18\ns_lshl_b32 s31, s29, 17\ns_add_u32 s32, s32, s31\ns_lshl_b32 s31, s37, 7\ns_add_u32 s32, s32, s31\ns_add_u32 s33, s32, 32768\ns_add_u32 s34, s32, 65536\ns_add_u32 s35, s32, 98304")
    e(f"s_mov_b32 s68, 128\ns_mov_b32 s69, {(128-1024) & 0xffffffff}\ns_lshl_b32 s14, s28, 21\ns_lshl_b32 s22, s28, 21")
    e("s_waitcnt lgkmcnt(0)\ns_mov_b32 s12, s40\ns_mov_b32 s13, s41\ns_mov_b32 s20, s40\ns_mov_b32 s21, s41\ns_branch B_OFFD")
    e.label("B_WOFF")
    e("v_and_b32 v17, 1, v17\nv_lshlrev_b32 v17, 1, v17\nv_xor_b32 v17, v16, v17\nv_mul_u32_u24 v12, 3584, v12\nv_lshl_add_u32 v4, v17, 4, v12\nv_xor_b32 v17, 4, v17\nv_lshl_add_u32 v8, v17, 4, v12")
    for i in range(1, 4): e(f"v_add_u32 v{4+i}, {8*3584*i - 1024*i}, v4\nv_add_u32 v{8+i}, {8*3584*i - 1024*i}, v8")
    e(f"s_lshl_b32 s32, s25, 7\ns_mul_i32 s31, s37, {64*3584}\ns_add_u32 s32, s32, s31\ns_add_u32 s33, s32, {32*3584}\ns_mov_b32 s34, s32\ns_mov_b32 s35, s33")
    e(f"s_mov_b32 s68, {64*3584}\ns_mov_b32 s69, {(64*3584-512*3584) & 0xffffffff}\ns_mul_i32 s14, s28, 0x1c0000\ns_mul_i32 s22, s28, 0x1c0000")
    e("s_waitcnt lgkmcnt(0)\ns_mov_b32 s12, s56\ns_mov_b32 s13, s57\ns_mov_b32 s20, s58\ns_mov_b32 s21, s59")
    e.label("B_OFFD")
    e("s_barrier")
    srd(e, 8, 66, WS_SIZE); srd(e, 16, 60, 0x1c0000)
    e("s_mov_b32 s38, 0xffff0000\nv_mov_b32 v54, 0")
    e("s_cmp_eq_u32 s29, 3\ns_cbranch_scc1 B_LN")
    e("s_cmp_eq_u32 s28, 1\ns_cbranch_scc1 B_LOAD")
    e("v_lshlrev_b32 v25, 10, v1\ns_lshr_b32 s31, s2, 3\ns_sub_u32 s31, s31, 28\ns_mul_i32 s31, s31, 458752\ns_lshl_b32 s30, s29, 17\ns_add_u32 s31, s31, s30")
    for i in range(2): e("buffer_load_dword v236, v25, s[16:19], s31 offen offset:384\ns_add_u32 s31, s31, 65536")
    e.label("B_LOAD")
    dma_stage(e); dma_stage(e)
    e("s_branch B_JOIN")
    e.label("B_LN")
    gen_ln(e)
    e.label("B_JOIN")
    srd(e, 4, 40, 0x200000)
    e("v_and_b32 v27, 255, v0")
    e("v_and_b32 v24, 3, v1\nv_lshl_add_u32 v24, v3, 2, v24\nv_bfe_u32 v25, v1, 3, 1\nv_lshl_add_u32 v25, v19, 1, v25\nv_lshlrev_b32 v25, 1, v25\nv_xor_b32 v24, v24, v25\nv_lshlrev_b32 v24, 4, v24")
    e(f"v_lshrrev_b32 v25, 2, v1\nv_lshl_add_u32 v24, v25, 7, v24\nv_lshl_add_u32 v24, v19, 13, v24\nv_add_u32 v24, 32768, v24\nv_add_u32 v26, {2*STG}, v24")
    e("v_and_b32 v20, 1, v1\nv_lshlrev_b32 v20, 4, v20\nv_mov_b32 v21, 0x3f80\nv_lshlrev_b32 v21, v20, v21\nv_bfe_u32 v22, v1, 1, 2")
    for j in range(4): e(f"v_cmp_eq_u32 vcc, {j}, v22\nv_cndmask_b32 v{16+j}, 0, v21, vcc")
    for i in range(4): e(f"v_mov_b32 v{20+i}, 0\nv_mov_b32 v{232+i}, 0")
    e("v_lshlrev_b32 v123, 10, v1\ns_lshr_b32 s70, s2, 3\ns_lshl_b32 s70, s70, 16")
    lab = [0]
    def stage(k, aux=lambda: None, work=lambda: None, fill=None):
        R, M = cs_groups(k)
        for r in R: e(r)
        if k + 2 < 8:
            lab[0] += 1; n = lab[0]
            e(f"s_cmp_eq_u32 s29, 3\ns_cbranch_scc1 B_AUX{n}")
            dma_stage(e)
            e(f"s_branch B_AJ{n}")
            e.label(f"B_AUX{n}")
            aux()
            e.label(f"B_AJ{n}")
        def w2():
            work()
            e("s_waitcnt lgkmcnt(0)")
            for m in M: e(m)
        merged(e, w2, fill or [])
    def endstage(k, n=16):
        lab[0] += 1
        e(f"s_cmp_eq_u32 s29, 3\ns_cbranch_scc1 B_NW{lab[0]}\ns_waitcnt vmcnt({n})")
        e.label(f"B_NW{lab[0]}")
        e("s_waitcnt lgkmcnt(0)\ns_barrier")
        if DIAG == 1: e.stamp(k + 1)
    pfl = [0, 1, 2, 4, 5, 6]
    def pf(n):
        for _ in range(n): e(f"buffer_load_dword v236, v123, s[16:19], s70 offen offset:{128*pfl.pop(0)}")
    if not DIAG: e.stamp(1)
    endstage(0)
    if not DIAG: e.stamp(2)
    if PRIO: e(f"s_setprio {PRIO}")
    chk2 = "v_cmp_ne_u64 vcc, v[112:113], v[126:127]\nv_cmp_ne_u64 s[74:75], v[114:115], v[126:127]\ns_or_b64 vcc, vcc, s[74:75]\nv_cmp_ne_u64 s[74:75], v[116:117], v[126:127]\ns_or_b64 vcc, vcc, s[74:75]\nv_cmp_ne_u64 s[74:75], v[118:119], v[126:127]\ns_or_b64 vcc, vcc, s[74:75]"
    lfl = f"s_mov_b32 s72, {WS_LNF}\nv_lshlrev_b32 v122, 4, v1\n" + "\n".join(f"buffer_load_dwordx2 v[{112+2*q}:{113+2*q}], v122, s[8:11], s72 offen offset:{1024*q} sc1" for q in range(4))
    def aux0(): gen_ln_store(e); e("global_load_dword v126, v54, s[64:65] sc1")
    def aux1():
        e("s_waitcnt vmcnt(0)\nv_cmp_eq_u32 vcc, 0, v126\ns_cbranch_vccz B_RDY_D")
        poll(e, "B_RDY", "global_load_dword v126, v54, s[64:65] sc1", "v_cmp_eq_u32 vcc, 0, v126")
        e(f"v_not_b32 v127, v126\ns_lshl_b32 s31, s2, 4\ns_add_u32 s31, s31, {WS_LNF}")
        e("s_mov_b64 exec, 1\nbuffer_store_dwordx2 v[126:127], v54, s[8:11], s31 offen sc1\ns_mov_b64 exec, -1")
        pf(PFS[2])
    def aux4(): e(lfl); pf(PFS[4])
    def aux5():
        e(f"s_waitcnt vmcnt({PFS[4]})\n" + chk2 + "\ns_cbranch_vccz B_LNF_D")
        poll(e, "B_LNF", lfl, chk2, sleep=16)
        e(f"v_mov_b32 v49, {LCNT}\nds_write_b64 v49, v[126:127] offset:32")
        pf(PFS[5])
    stage(0, aux0); endstage(1)
    stage(1, lambda: pf(PFS[1])); endstage(2)
    stage(2, aux1); endstage(3)
    stage(3, lambda: pf(PFS[3])); endstage(4)
    stage(4, aux4); endstage(5)
    def addr5():
        e("v_and_b32 v50, 127, v27\nv_lshlrev_b32 v51, 7, v27\nv_subrev_u32 v52, 120, v51\nv_max_i32 v52, 0, v52\nv_lshlrev_b32 v57, 3, v27")
        e(f"v_mul_u32_u24 v44, 2731, v27\nv_lshrrev_b32 v44, 16, v44\nv_mul_u32_u24 v49, 24, v44\nv_sub_u32 v49, v27, v49\nv_mul_u32_u24 v44, {UP}, v44\nv_lshl_add_u32 v44, v49, 4, v44")
        e(f"v_mul_u32_u24 v55, {KCH}, v3\nv_add_u32 v55, {KB}, v55\nv_lshl_add_u32 v45, v50, 3, v55\nv_lshlrev_b32 v46, 4, v27\nv_add_u32 v46, {UB}, v46")
        e(f"v_and_b32 v48, 3, v1\nv_lshl_add_u32 v48, v3, 2, v48\nv_lshlrev_b32 v48, 5, v48\nv_and_b32 v49, 1, v2\nv_lshl_add_u32 v48, v49, 8, v48\nv_bfe_u32 v49, v1, 4, 1\nv_lshl_add_u32 v48, v49, 4, v48\nv_add_u32 v48, {LCS}, v48")
        e(f"v_mov_b32 v49, {LCNT}\nv_mov_b32 v47, 1\nv_add_u32 v43, {LSTAT}, v57")
        e("v_lshrrev_b32 v40, 3, v1\nv_and_b32 v41, 7, v1\nv_bfe_u32 v42, v1, 4, 1\nv_lshlrev_b32 v42, 2, v42\nv_xor_b32 v41, v41, v42\nv_lshlrev_b32 v40, 10, v40\nv_lshl_add_u32 v40, v41, 4, v40\nv_add_u32 v41, 7168, v40")
        e("v_lshrrev_b32 v38, 5, v1\nv_bfe_u32 v39, v1, 2, 2\nv_lshl_add_u32 v38, v38, 2, v39\nv_lshlrev_b32 v38, 7, v38")
        e("v_lshrrev_b32 v39, 1, v39\nv_lshl_add_u32 v38, v39, 6, v38\nv_bfe_u32 v39, v1, 4, 1\nv_lshl_add_u32 v38, v39, 5, v38\nv_and_b32 v39, 3, v1\nv_lshl_add_u32 v38, v39, 3, v38\nv_xor_b32 v39, 64, v38")
    stage(5, aux5, addr5)
    if env('NTX', 4): e(f"s_xor_b32 s27, s27, {env('NTX', 4)}")
    e("s_mul_i32 s32, s29, 458752\ns_lshl_b32 s31, s27, 7\ns_add_u32 s32, s32, s31")
    NR = 20 - RING; nres_end = min(28, NR + 12); nstream = 28 - nres_end
    order = list(range(NR, NR + nstream)) + list(range(0, NR)) + list(range(NR + nstream, nres_end)) + list(range(nres_end, 28))
    phys = {i: p for p, i in enumerate(order)}
    e(f"s_mul_i32 s35, s29, 12288\ns_add_u32 s34, s35, {2*STG}")
    e("v_mov_b32 v4, v40\nv_mov_b32 v5, v41\nv_add_u32 v6, s34, v38\nv_add_u32 v7, s34, v39\nv_add_u32 v8, s35, v38\nv_add_u32 v9, s35, v39")
    if not XL: e(f"s_lshl_b32 s36, s77, 13\ns_add_u32 s36, s36, {WS_XN2}\ns_add_u32 s30, s36, 4096\ns_sub_u32 s71, s30, 24\ns_lshl_b32 s70, s24, 11")
    if XL: e(f"s_lshr_b32 s36, s77, 2\ns_lshl_b32 s36, s36, 15\ns_and_b32 s30, s77, 3\ns_lshl_b32 s30, s30, 5\ns_add_u32 s36, s36, s30\ns_add_u32 s36, s36, {WS_XN2}\ns_add_u32 s30, s36, 16384\ns_sub_u32 s71, s30, 120\ns_lshl_b32 s70, s24, 11")
    endstage(6)
    if not DIAG: e.stamp(3)
    wid = {}; slot_of = {}
    def w2txt(i, j):
        slot_of[i] = j
        wid[i] = vm.add('d', 2)
        return [f"s_add_u32 m0, {'s34' if j < 6 else 's35'}, {2048*(j%6)}\ns_add_u32 s33, s32, {16384*phys[i]}\nbuffer_load_dwordx4 v4, s[16:19], s33 offen lds",
                f"buffer_load_dwordx4 v5, s[16:19], s33 offen offset:1024 lds"]
    def w2dma(i, j):
        for t in w2txt(i, j): e(t)
    vm.reset()
    e("ds_read_b64 v[14:15], v49 offset:32")
    assert N6 == 0
    R6, M6 = cs_groups(6)
    for r in R6: e(r)
    e("s_cmp_eq_u32 s29, 3\ns_cbranch_scc1 B_K6\ns_waitcnt vmcnt(0)")
    e.label("B_K6")
    sid = vm.op(f"buffer_load_dwordx2 v[124:125], v57, s[8:11], s70 offen offset:{WS_STATS} sc1")
    vm.op("buffer_load_dwordx4 v[60:63], v51, s[8:11], s36 offen sc1"); vm.op("buffer_load_dwordx4 v[68:71], v51, s[8:11], s36 offen offset:16 sc1")
    e("s_mov_b64 exec, 1")
    vm.op("buffer_load_dwordx2 v[58:59], v52, s[8:11], s36 offen sc1"); uid = vm.op("buffer_load_dwordx2 v[66:67], v52, s[8:11], s36 offen offset:16 sc1")
    e("s_mov_b64 exec, -1")
    e("s_waitcnt lgkmcnt(0)")
    for m in M6: e(m)
    endstage(7, 63)
    ACC = 192; WT = [16, 24]; HR = 32
    def wreg(i): return 96 + 8 * i if i < 12 else 88 - 8 * (i - 12)
    def wread(j, dst):
        for dt in range(2):
            for jj in range(2):
                e(f"ds_read_b64_tr_b16 {vr(dst+4*dt+2*jj,2)}, v{(6 if j < 6 else 8)+dt} offset:{2048*(j%6)+1024*jj}")
    vm.wait(sid)
    e(f"ds_write_b64 v43, v[124:125]")
    def post7():
        e("v_cmp_eq_u32 vcc, 0, v27")
        for r in (58, 59, 66, 67):
            e(f"v_cndmask_b32 v{r}, v{r}, v232, vcc\nv_mov_b32_dpp v{r}, v{r+4} wave_shr:1 row_mask:0xf bank_mask:0xf")
        for h in range(2):
            Dd = 60 + 8 * h
            V1, V2, V3 = 200 + 12 * h, 204 + 12 * h, 208 + 12 * h
            for i in range(4):
                e(f"v_alignbit_b32 v{V1+i}, v{Dd+i}, v{Dd+i-1}, 16\nv_mov_b32 v{V2+i}, v{Dd+i-1}\nv_alignbit_b32 v{V3+i}, v{Dd+i-1}, v{Dd+i-2}, 16")
        e("v_cmp_gt_u32 s[68:69], 192, v27\nv_cmp_gt_u32 s[70:71], 15, v50".replace("192, v27", "s30, v27"))
    e("s_mov_b32 s30, 192")
    stage(7)
    for m in ("row_ror:4", "row_ror:8"):
        for i in range(4): e(f"v_add_f32_dpp v{20+i}, v{20+i}, v{20+i} {m} {DPP}")
    e("ds_write_b128 v48, v[20:23]")
    vm.wait(uid)
    merged(e, post7, sum([w2txt(i, i) for i in range(N6, N7)], []))
    e("s_waitcnt lgkmcnt(0)\ns_barrier")
    if DIAG == 1: e.stamp(9)
    if not DIAG: e.stamp(4)
    if DIAG == 4: e.stamp(1)
    for h in range(2):
        for delta, src in ((0, 60 + 8 * h), (1, 200 + 12 * h), (2, 204 + 12 * h), (3, 208 + 12 * h)):
            e(f"ds_write_b128 v46, {vr(src,4)} offset:{(3-delta)*UP + 384 + UCH*h}")
    e(f"s_mov_b64 exec, s[68:69]\nds_write_b128 v44, v[232:235] offset:{UB}")
    e(f"s_mov_b64 exec, s[70:71]\nds_write_b64 v45, v[232:233] offset:4096\nds_write_b64 v45, v[232:233] offset:{KS_OFF+4088}")
    e("s_mov_b64 exec, 1\nds_add_u32 v49, v47\ns_mov_b64 exec, -1")
    for i in range(N7, 12): w2dma(i, i)
    nd = [12]
    def refill(slots):
        for j in slots:
            if nd[0] < nres_end: w2dma(nd[0], j); nd[0] += 1
    vm.wait(wid[5])
    for i in range(6): wread(i, wreg(i))
    e("s_waitcnt lgkmcnt(0)")
    refill(range(6))
    vm.wait(wid[11])
    for i in range(6, 12): wread(i, wreg(i))
    e("s_waitcnt lgkmcnt(0)")
    refill(range(6, 12))
    if not DIAG: e.stamp(5)
    if PRIO: e("s_setprio 0")
    if NR > 12:
        vm.wait(wid[NR - 1], " lgkmcnt(0)")
        for i in range(12, NR): wread(slot_of[i], wreg(i))
        e("s_waitcnt lgkmcnt(0)")
        refill([slot_of[i] for i in range(12, NR)])
    if DIAG == 4: e.stamp(9)
    if not DIAG: e.stamp(6)
    e(f"v_lshrrev_b32 v10, 3, v1\nv_min_u32 v10, 6, v10\nv_lshlrev_b32 v10, 7, v10\ns_mul_i32 s31, s26, {28*128}\ns_mul_i32 s30, s29, {7*128}\ns_add_u32 s31, s31, s30\ns_add_u32 s31, s31, {WS_HF}")
    e(f"s_lshl_b32 s36, s26, 1\ns_mul_i32 s36, s36, 112\ns_mul_i32 s30, s29, 28\ns_add_u32 s36, s36, s30\ns_lshl_b32 s36, s36, 10\ns_add_u32 s36, s36, {WS_H}\ns_lshl_b32 s70, s27, 7\ns_add_u32 s70, s70, s36")
    srd(e, 20, 62, 0x200000)
    e(f"v_lshrrev_b32 v11, 1, v1\nv_lshlrev_b32 v11, 10, v11\nv_and_b32 v12, 1, v1\nv_mul_u32_u24 v12, {112*1024}, v12\nv_add_u32 v11, v11, v12")
    e("s_lshl_b32 s71, s26, 16\ns_lshl_b32 s30, s27, 7\ns_add_u32 s71, s71, s30\nv_bfe_u32 v12, v0, 2, 6\nv_lshlrev_b32 v12, 10, v12\nbuffer_load_dword v3, v12, s[4:7], s71 offen")
    e(f"s_mov_b32 s72, -1\ns_mov_b32 s73, 0xffffff\ns_mov_b32 s39, {SPIN}")
    e("s_waitcnt vmcnt(0)\ns_mov_b32 s33, s31\nv_mov_b32 v4, v10\nv_mov_b32 v5, v11\ns_mov_b64 s[74:75], 0")
    def need(j):
        w_, b_ = (72, 8 * j) if j < 4 else (73, 8 * j - 32)
        e(f"s_bitcmp0_b32 s{w_}, {b_}\ns_cbranch_scc1 B_HF_D{j}")
        e.label(f"B_HF_L{j}")
        e("buffer_load_dwordx2 v[12:13], v4, s[8:11], s33 offen sc1\ns_cmp_eq_u64 s[74:75], 0")
        e(f"s_cbranch_scc1 B_HF_W{j}\ns_mov_b64 exec, s[74:75]\nbuffer_load_dword v3, v5, s[8:11], s70 offen sc1\ns_mov_b64 exec, -1\ns_waitcnt vmcnt(1)\ns_branch B_HF_X{j}")
        e.label(f"B_HF_W{j}")
        e("s_waitcnt vmcnt(0)")
        e.label(f"B_HF_X{j}")
        e("v_cmp_eq_u64 vcc, v[12:13], v[14:15]\ns_and_b64 s[74:75], vcc, s[72:73]\ns_andn2_b64 s[72:73], s[72:73], vcc")
        e(f"s_bitcmp0_b32 s{w_}, {b_}\ns_cbranch_scc1 B_HF_E{j}")
        e(f"s_sub_u32 s39, s39, 1\ns_cbranch_scc1 B_HF_E{j}\ns_sleep {env('HSL', 1)}\ns_branch B_HF_L{j}")
        e.label(f"B_HF_E{j}")
        e(f"s_cmp_eq_u64 s[74:75], 0\ns_cbranch_scc1 B_HF_D{j}\ns_mov_b64 exec, s[74:75]\nbuffer_load_dword v3, v5, s[8:11], s70 offen sc1\ns_mov_b64 exec, -1\ns_mov_b64 s[74:75], 0")
        e.label(f"B_HF_D{j}")
    for j in range(NW0): need(j)
    if not DIAG: e.stamp(7)
    if DIAG == 3: e.stamp(1)
    vm.reset()
    e(f"v_lshlrev_b32 v10, 4, v1\nv_add_u32 v11, {112*1024}, v10")
    free = [HR + 8 * i for i in range(RING)]
    pfc = [0]
    def hpf():
        if pfc[0] * CH < 28:
            e(f"s_mov_b64 exec, {hex((1 << (2*CH)) - 1)}")
            vm.op(f"buffer_load_dword v12, v13, s[8:11], s70 offen sc1\ns_add_u32 s70, s70, {1024*CH}\ns_mov_b64 exec, -1")
            pfc[0] += 1
    hreg = {}; hid = {}; nxt = [0]
    def hload(maxn=99):
        n = 0
        while nxt[0] < 28 and free and n < maxn:
            n += 1
            i = order[nxt[0]]; nxt[0] += 1
            b = free.pop(0); hreg[i] = b
            if phys[i] % 4 == 0 and phys[i] // 4 >= NW0: need(phys[i] // 4)
            e(f"s_add_u32 s31, s36, {1024*phys[i]}")
            vm.op(f"buffer_load_dwordx4 {vr(b,4)}, v10, s[8:11], s31 offen sc1")
            hid[i] = vm.op(f"buffer_load_dwordx4 {vr(b+4,4)}, v11, s[8:11], s31 offen sc1")
    if HPF:
        e(f"v_lshrrev_b32 v13, 1, v1\nv_lshlrev_b32 v13, 10, v13\nv_and_b32 v12, 1, v1\nv_mul_u32_u24 v12, {112*1024}, v12\nv_add_u32 v13, v13, v12")
        for _ in range(HPF): hpf()
    hload()
    def is_lds(i): return i >= NR
    tcount = [0]; wt_of = {}
    def prefetch_w(pos):
        if pos < 28 and is_lds(order[pos]):
            i = order[pos]
            if i >= nres_end: vm.wait(wid[i])
            wt_of[i] = WT[tcount[0] % 2]; tcount[0] += 1
            wread(slot_of[i], wt_of[i])
    prefetch_w(0)
    streamed = nres_end
    fin = {}
    def at_loads(count):
        e(f"s_lshl_b32 s31, s27, 18\ns_lshl_b32 s30, s26, 7\ns_add_u32 s31, s31, s30\ns_add_u32 s31, s31, {WS_AT}")
        for j in range(4):
            t = f"buffer_load_dwordx2 {vr(fin['A']+2*j,2)}, v{fin['T']+3}, s[8:11], s31 offen sc1\ns_add_u32 s31, s31, 4096"
            if count: vm.op(t)
            else: e(t)
    AFPOS = env('AFPOS', 28 - RING - 1); ATPOS = 27
    for pos, i in enumerate(order):
        if is_lds(i):
            e("s_waitcnt lgkmcnt(0)")
            if streamed < 28:
                w2dma(streamed, slot_of[i]); streamed += 1
        prefetch_w(pos + 1)
        vm.wait(hid[i])
        if DIAG == 3 and pos in (0, 4, 8, 12, 16, 20, 24, 27): e.stamp(2 + (0, 4, 8, 12, 16, 20, 24, 27).index(pos))
        wb = wt_of[i] if is_lds(i) else wreg(i)
        b = hreg[i]
        for dt in range(2):
            for mi in range(2):
                a = ACC + 16 * (2 * dt + mi)
                e(f"v_mfma_f32_32x32x16_bf16 {vr(a,16)}, {vr(wb+4*dt,4)}, {vr(b+4*mi,4)}, {'0' if pos == 0 else vr(a,16)}")
        free.append(b)
        if not is_lds(i): free.append(wb)
        hload(PACE if pos % PACEM else PACE + 1)
        if pos == AFPOS:
            assert len(free) >= 4
            fin['X'] = free.pop(); fin['A'] = free.pop(); T = fin['T'] = free.pop(0)
            e(f"v_bfe_u32 v{T}, v0, 4, 4\nv_and_b32 v{T+1}, 15, v0\nv_lshlrev_b32 v{T+2}, 12, v{T}\nv_lshl_add_u32 v{T+2}, v{T+1}, 3, v{T+2}\nv_lshlrev_b32 v{T+3}, 14, v{T+1}\nv_lshl_add_u32 v{T+3}, v{T}, 3, v{T+3}\nv_lshrrev_b32 v{T+4}, 1, v1\nv_lshlrev_b32 v{T+4}, 7, v{T+4}\nv_and_b32 v{T+5}, 1, v1\nv_lshl_add_u32 v{T+4}, v{T+5}, 4, v{T+4}")
            e(f"s_lshl_b32 s37, s27, 12\ns_lshr_b32 s30, s26, 4\ns_lshl_b32 s30, s30, 3\ns_add_u32 s37, s37, s30\ns_add_u32 s37, s37, {WS_AF}")
            e("s_lshl_b32 s71, s26, 16\ns_lshl_b32 s30, s27, 7\ns_add_u32 s71, s71, s30")
            afid = vm.op(f"buffer_load_dwordx2 v[12:13], v{T+4}, s[8:11], s37 offen sc1")
            for r in range(4): vm.op(f"buffer_load_dwordx2 {vr(fin['X']+2*r,2)}, v{T+2}, s[4:7], s71 offen offset:{1024*r}")
        if pos == ATPOS:
            vm.wait(afid)
            e("v_cmp_ne_u64 s[68:69], v[12:13], v[14:15]")
            at_loads(True)
    if not DIAG: e.stamp(8)
    T = fin['T']
    e(f"v_and_b32 v3, 31, v1\nv_mul_u32_u24 v3, 272, v3\nv_lshrrev_b32 v8, 5, v1\nv_lshl_add_u32 v3, v8, 4, v3\nv_add_u32 v4, s34, v3\nv_add_u32 v3, s35, v3")
    for dt in range(2):
        for mi in range(2):
            a = ACC + 16 * (2 * dt + mi)
            for g in range(4):
                e(f"ds_write_b128 v{3+mi}, {vr(a+4*g,4)} offset:{dt*128 + g*32}")
    e("s_cmp_eq_u64 s[68:69], 0\ns_cbranch_scc1 B_AF_OK")
    poll(e, "B_AF", f"buffer_load_dwordx2 v[12:13], v{T+4}, s[8:11], s37 offen sc1", "v_cmp_ne_u64 vcc, v[12:13], v[14:15]", sleep=2)
    at_loads(False)
    e.label("B_AF_OK")
    e(f"v_and_b32 v3, 7, v{T}\nv_mul_u32_u24 v3, 1088, v3\nv_lshl_add_u32 v3, v{T+1}, 4, v3\nv_lshrrev_b32 v4, 3, v{T}\nv_mul_u32_u24 v4, {2*STG}, v4\nv_add_u32 v3, v3, v4")
    e("s_waitcnt lgkmcnt(0)\ns_barrier")
    Pp = 192
    XR = fin['X']; AR = fin['A']
    for i in range(4):
        for w in range(4):
            e(f"ds_read_b128 {vr(Pp+16*i+4*w,4)}, v3 offset:{272*i + 12288*w}")
    e("s_waitcnt vmcnt(0)")
    XA = 16
    for i in range(4):
        for j in range(4):
            xs = XR + 2 * i + (j >> 1); as_ = AR + 2 * j + (i >> 1)
            e(f"v_lshlrev_b32 v{4+j}, 16, v{xs}" if j % 2 == 0 else f"v_and_b32 v{4+j}, s38, v{xs}")
            e(f"v_lshlrev_b32 v{8+j}, 16, v{as_}" if i % 2 == 0 else f"v_and_b32 v{8+j}, s38, v{as_}")
        e("v_pk_add_f32 v[4:5], v[4:5], v[8:9]\nv_pk_add_f32 v[6:7], v[6:7], v[10:11]")
        e(f"v_cvt_pk_bf16_f32 v8, v4, v5\nv_cvt_pk_bf16_f32 v9, v6, v7")
        for j in range(4):
            e(f"v_lshlrev_b32 v{XA+4*i+j}, 16, v{8+(j>>1)}" if j % 2 == 0 else f"v_and_b32 v{XA+4*i+j}, s38, v{8+(j>>1)}")
    for i in range(4):
        b = Pp + 16 * i
        e(f"s_waitcnt lgkmcnt({12-4*i})")
        for h in range(2):
            e(f"v_pk_add_f32 {vr(b+2*h,2)}, {vr(b+2*h,2)}, {vr(b+4+2*h,2)}")
            e(f"v_pk_add_f32 {vr(b+8+2*h,2)}, {vr(b+8+2*h,2)}, {vr(b+12+2*h,2)}")
        for h in range(2):
            e(f"v_pk_add_f32 {vr(b+2*h,2)}, {vr(b+2*h,2)}, {vr(b+8+2*h,2)}")
        e(f"v_cvt_pk_bf16_f32 v{b+4}, v{b}, v{b+1}\nv_cvt_pk_bf16_f32 v{b+5}, v{b+2}, v{b+3}")
        for j in range(4):
            e(f"v_lshlrev_b32 v{b+8+j}, 16, v{b+4+(j>>1)}" if j % 2 == 0 else f"v_and_b32 v{b+8+j}, s38, v{b+4+(j>>1)}")
        for h in range(2):
            e(f"v_pk_add_f32 {vr(b+8+2*h,2)}, {vr(b+8+2*h,2)}, {vr(XA+4*i+2*h,2)}")
        e(f"v_cvt_pk_bf16_f32 v{b}, v{b+8}, v{b+9}\nv_cvt_pk_bf16_f32 v{b+1}, v{b+10}, v{b+11}")
        e(f"buffer_store_dwordx2 {vr(b,2)}, v{T+2}, s[20:23], s71 offen offset:{1024*i}")
    if not DIAG: e.stamp(9)
    e.stamp_out("PB", env("PBT", 256), 1, vt=100)
    e("s_endpgm")

def gen_ln(e):
    X = 128; A = 160; M = 164; SQ = 166; T = 172
    e("s_mov_b32 s30, 0x3f803f80")
    for j in range(4): e(f"v_mov_b32 v{A+j}, 0\nv_mov_b32 v{SQ+j}, 0")
    e(f"v_lshrrev_b32 v180, 3, v1\nv_and_b32 v181, 7, v1\nv_mul_u32_u24 v182, 1088, v180\nv_lshl_add_u32 v182, v181, 4, v182\nv_add_u32 v182, {SPARE}, v182")
    e(f"v_bfe_u32 v183, v1, 2, 2\nv_mul_u32_u24 v183, 1088, v183\nv_lshrrev_b32 v184, 4, v1\nv_lshl_add_u32 v183, v184, 5, v183\nv_and_b32 v184, 3, v1\nv_lshl_add_u32 v183, v184, 3, v183\nv_add_u32 v183, {SPARE}, v183")
    for i in range(8):
        e(f"s_waitcnt vmcnt({7-i})")
        for j in range(4): e(f"v_dot2_f32_bf16 v{A+j}, v{X+4*i+j}, s30, v{A+j}")
    def red(r):
        e(f"v_add_f32 v{r}, v{r}, v{r+1}\nv_add_f32 v{r+2}, v{r+2}, v{r+3}\nv_add_f32 v{r}, v{r}, v{r+2}")
        for m in ("quad_perm:[1,0,3,2]", "quad_perm:[2,3,0,1]", "row_half_mirror"):
            e(f"v_add_f32_dpp v{r}, v{r}, v{r} {m} {DPP}")
    red(A)
    e(f"v_mul_f32 v{A}, {f32(1/512)}, v{A}\nv_cvt_pk_bf16_f32 v{M}, v{A}, v{A}\nv_lshlrev_b32 v{M}, 16, v{M}")
    for j0 in range(0, 32, 4):
        for j in range(j0, j0 + 4):
            t = T + 2 * (j % 4); e(f"v_lshlrev_b32 v{t}, 16, v{X+j}\nv_and_b32 v{t+1}, s38, v{X+j}")
        for j in range(j0, j0 + 4):
            t = T + 2 * (j % 4); e(f"v_pk_add_f32 {vr(t,2)}, {vr(t,2)}, {vr(M,2)} op_sel_hi:[1,0] neg_lo:[0,1] neg_hi:[0,1]")
        for j in range(j0, j0 + 4):
            t = T + 2 * (j % 4); q = SQ + 2 * (j % 2)
            e(f"v_pk_fma_f32 {vr(q,2)}, {vr(t,2)}, {vr(t,2)}, {vr(q,2)}\nv_cvt_pk_bf16_f32 v{X+j}, v{t}, v{t+1}")
    red(SQ)
    e(f"v_sub_f32 v{A+1}, v{A}, v{M}\nv_mul_f32 v{A+1}, v{A+1}, v{A+1}\nv_mul_f32 v{SQ}, {f32(1/512)}, v{SQ}\nv_sub_f32 v{SQ}, v{SQ}, v{A+1}\nv_max_f32 v{SQ}, 0, v{SQ}")
    rb(e, SQ); e(f"v_add_f32 v{SQ}, {f32(1e-5)}, v{SQ}"); rb(e, SQ); e(f"v_sqrt_f32 v{SQ}, v{SQ}"); rb(e, SQ)
    e(f"v_rcp_f32 v{M+1}, v{SQ}")
    for j0 in range(0, 32, 4):
        for j in range(j0, j0 + 4):
            t = T + 2 * (j % 4); e(f"v_lshlrev_b32 v{t}, 16, v{X+j}\nv_and_b32 v{t+1}, s38, v{X+j}")
        for j in range(j0, j0 + 4):
            t = T + 2 * (j % 4); e(f"v_pk_mul_f32 {vr(t,2)}, {vr(t,2)}, {vr(M,2)} op_sel:[0,1] op_sel_hi:[1,1]")
        for j in range(j0, j0 + 4):
            t = T + 2 * (j % 4); e(f"v_cvt_pk_bf16_f32 v{X+j}, v{t}, v{t+1}")
        e(f"ds_write_b128 v182, {vr(X+j0,4)} offset:{32*j0}")
    for q in range(8):
        for j in range(2): e(f"ds_read_b64_tr_b16 {vr(X+4*q+2*j,2)}, v183 offset:{4352*j+128*q}")

def gen_ln_store(e):
    X = 128; M = 164
    e("v_lshrrev_b32 v180, 3, v1\nv_and_b32 v181, 7, v1")
    if XL: e("v_lshlrev_b32 v184, 15, v180\nv_lshl_add_u32 v184, v181, 4, v184\nv_lshlrev_b32 v185, 3, v180")
    else: e("v_lshrrev_b32 v184, 1, v1\nv_lshlrev_b32 v184, 13, v184\nv_and_b32 v185, 1, v1\nv_lshl_add_u32 v184, v185, 4, v184\nv_lshlrev_b32 v185, 3, v180")
    e(f"s_lshl_b32 s31, s2, 6\nv_cmp_eq_u32 vcc, 0, v181\ns_and_saveexec_b64 s[74:75], vcc")
    e(f"buffer_store_dwordx2 {vr(M,2)}, v185, s[8:11], s31 offen offset:{WS_STATS} sc1\ns_mov_b64 exec, s[74:75]")
    e(f"s_lshl_b32 s31, s2, {7 if XL else 5}\ns_add_u32 s31, s31, {WS_XN2}")
    for q in range(8):
        e(f"buffer_store_dwordx4 {vr(X+4*q,4)}, v184, s[8:11], s31 offen sc1\ns_add_u32 s31, s31, {32*8192}")

TA = 96; RA = 112
def gen_kaddr(e):
    e(f"v_lshlrev_b32 v48, 2, v1\nv_lshlrev_b32 v49, 12, v2\nv_add_u32 v49, {KTAB}, v49\nv_add_u32 v48, v48, v49")
    for r in range(8): e(f"v_xor_b32 v{TA+r}, {r<<5}, v48")
    T0 = [0,1,2,3,4,5,6,7,8,8,9,10,10,10,11,12]; T1 = [0,0,0,1,1,1,2,2,3,3,3,4,4,4,5,5]
    T2 = [6 + 2 * (i >> 2) + (i & 1) for i in range(16)]
    def pack4(L): return sum(v << (4 * i) for i, v in enumerate(L))
    e("v_and_b32 v50, 15, v1\nv_lshrrev_b32 v51, 4, v1\nv_and_b32 v52, 7, v50\nv_lshlrev_b32 v52, 2, v52\nv_cmp_lt_u32 vcc, 7, v50")
    e(f"v_mov_b32 v{RA}, v50")
    for x, T in ((1, T0), (2, T1), (3, T2)):
        e(f"v_mov_b32 v53, {hex(pack4(T[:8]))}\nv_mov_b32 v54, {hex(pack4(T[8:]))}\nv_cndmask_b32 v53, v53, v54, vcc\nv_lshrrev_b32 v53, v52, v53\nv_and_b32 v{RA+x}, 15, v53")
    for x in range(4):
        e(f"v_and_b32 v53, 14, v{RA+x}\nv_xor_b32 v53, v51, v53\nv_lshlrev_b32 v53, 4, v53\nv_lshl_add_u32 v53, v{RA+x}, 8, v53\nv_add_u32 v{RA+x}, v53, v49")
        for q in range(1, 4): e(f"v_xor_b32 v{RA+4+3*x+q-1}, {q<<6}, v{RA+x}")

def gen_kgen(e):
    P = 40
    for r in range(P, P + 7): e(f"v_lshlrev_b32 v{r}, 16, v{r}")
    def exp_bf(dst, src, t1, t2):
        e(f"v_mul_f32 v{t1}, {f32(L2E_HI)}, v{src}")
        e(f"s_mov_b32 s30, {f32(L2E_HI)}\nv_fma_f32 v{t2}, v{src}, s30, -v{t1}\nv_fmac_f32 v{t2}, {f32(L2E_LO)}, v{src}")
        e(f"v_exp_f32 v{t1}, v{t1}\nv_mul_f32 v{t2}, {f32(LN2)}, v{t2}\nv_fma_f32 v{dst}, v{t1}, v{t2}, v{t1}")
        rb(e, dst)
    exp_bf(46, 46, 48, 49); exp_bf(40, 40, 50, 51)
    e("v_mul_f32 v40, v40, v46\nv_mul_f32 v41, v41, v46")
    e("v_max_f32 v48, abs(v42), abs(v43)\nv_max3_f32 v48, abs(v44), abs(v45), v48")
    for m in ("quad_perm:[1,0,3,2]", "quad_perm:[2,3,0,1]", "row_ror:4", "row_ror:8"):
        e(f"v_max_f32_dpp v48, v48, v48 {m} {DPP}")
    e("v_readlane_b32 s30, v48, 0\nv_readlane_b32 s31, v48, 16\nv_readlane_b32 s71, v48, 32\nv_readlane_b32 s72, v48, 48")
    e("s_max_u32 s30, s30, s31\ns_max_u32 s71, s71, s72\ns_max_u32 s30, s30, s71\ns_and_b32 s30, s30, 0x7f800000\ns_sub_u32 s31, 0x7f000000, s30")
    e("v_mul_f32 v42, s31, v42\nv_mul_f32 v43, s31, v43")
    e("v_mul_f32 v46, s30, v46\nv_add_f32 v46, v46, v46")
    W1, W8, W256, W2_, W4, W16 = 56, 58, 60, 62, 64, 66
    def wexp(dst, p, t):
        e(f"v_mul_f32 v{t}, {f32(-L2E_HI*p)}, v40\nv_exp_f32 v{t}, v{t}")
        e(f"v_mul_f32 v{t+1}, {f32(float(p))}, v41")
        e(f"v_mul_f32 v{t+2}, {f32(I2PI_HI)}, v{t+1}\ns_mov_b32 s30, {f32(I2PI_HI)}\nv_fma_f32 v{t+3}, v{t+1}, s30, -v{t+2}\nv_fmac_f32 v{t+3}, {f32(I2PI_LO)}, v{t+1}")
        e(f"v_fract_f32 v{t+2}, v{t+2}\nv_add_f32 v{t+2}, v{t+2}, v{t+3}")
        e(f"v_cos_f32 v{dst}, v{t+2}\nv_sin_f32 v{dst+1}, v{t+2}")
        e(f"v_mul_f32 v{dst}, v{dst}, v{t}\nv_mul_f32 v{dst+1}, v{dst+1}, v{t}")
    C0 = 42
    old = e.lines; parts = []
    for dst, p, t in ((W8, 8, 48), (W256, 256, 52), (W1, 1, 68)):
        e.lines = []; wexp(dst, p, t); parts.append(e.lines)
    e.lines = old
    for i in range(len(parts[0])):
        for P_ in parts: e.lines.append(P_[i])
    def cm1(d, a, b): return f"v_pk_mul_f32 {vr(d,2)}, {vr(a,2)}, {vr(b,2)} op_sel_hi:[1,0]"
    def cm2(d, a, b): return f"v_pk_fma_f32 {vr(d,2)}, {vr(a,2)}, {vr(b,2)}, {vr(d,2)} op_sel:[1,1,0] op_sel_hi:[0,1,1] neg_lo:[1,0,0]"
    RF = 128; LF = 160; D = 208
    W24, W32, W512 = 68, 70, 72
    Lr = {i: 160 + 2 * i for i in range(27)}; Lr[0] = C0
    PR = 216; PL = 128
    ONE = 74
    e(f"v_mov_b32 v{ONE}, 1.0\nv_mov_b32 v{ONE+1}, 0")
    Rr = {0: ONE, 1: W8, 2: W16, 3: W24}
    for b in range(4, 32): Rr[b] = 76 + 4 * (b % 4) + 2 * ((b // 4) % 2)
    Rr[4] = W32
    G = {1: 8, 2: 13, 3: 16, 4: 19, 5: 21, 6: 23, 7: 25}
    groups = [
        [(W16, W8, W8, ('R', 2)), (Lr[8], C0, W256, ('L', 8)), (W2_, W1, W1, None), (W512, W256, W256, None), (Lr[1], C0, W1, ('L', 1))],
        [(W32, W16, W16, ('R', 4)), (W24, W16, W8, ('R', 3)), (W4, W2_, W2_, None), (Lr[13], Lr[8], W256, ('L', 13)), (Lr[16], Lr[8], W512, ('L', 16)), (Lr[2], C0, W2_, ('L', 2))],
    ]
    rest = [(Lr[19], Lr[13], W512, ('L', 19)), (Lr[21], Lr[16], W512, ('L', 21)), (Lr[3], Lr[1], W2_, ('L', 3)),
            (Lr[4], C0, W4, ('L', 4)), (Lr[5], Lr[1], W4, ('L', 5)), (Lr[6], Lr[2], W4, ('L', 6)),
            (Lr[23], Lr[19], W512, ('L', 23)), (Lr[25], Lr[21], W512, ('L', 25)), (Lr[7], Lr[3], W4, ('L', 7)),
            (Lr[9], Lr[8], W2_, ('L', 9)), (Lr[10], Lr[8], W4, ('L', 10)), (Lr[12], Lr[8], W8, ('L', 12)),
            (Lr[11], Lr[9], W4, ('L', 11)), (Lr[14], Lr[13], W4, ('L', 14)), (Lr[15], Lr[13], W8, ('L', 15)),
            (Lr[17], Lr[16], W4, ('L', 17)), (Lr[18], Lr[16], W8, ('L', 18)), (Lr[20], Lr[19], W8, ('L', 20)),
            (Lr[22], Lr[21], W8, ('L', 22)), (Lr[24], Lr[23], W8, ('L', 24)), (Lr[26], Lr[25], W8, ('L', 26))]
    for j in range(7):
        g = [(Rr[b], Rr[b - 4], W32, ('R', b)) for b in range(4 * j + 4, 4 * j + 8) if b != 4]
        g += rest[3 * j:3 * j + 3]
        groups.append(g)
    done = set()
    def cvt(tag):
        kind, i = tag
        src = Rr[i] if kind == 'R' else Lr[i]; dst = (PR if kind == 'R' else PL) + i
        e(f"v_cvt_pk_f16_f32 v{dst}, v{src}, {'-' if kind == 'L' else ''}v{src+1}"); done.add(tag)
    def fragread(x, dst):
        for q in range(4): e(f"ds_read_b128 {vr(dst+4*q,4)}, v{RA+x if q == 0 else RA+4+3*x+q-1}")
    Q = []
    def wr(kind, base, n, first):
        for r in range(0, n, 2):
            p = (PR if kind == 'R' else PL) + first + r
            if r + 1 < n: Q.append(({(kind, first + r), (kind, first + r + 1)}, f"ds_write2st64_b32 v{TA+r//2}, v{p}, v{p+1} offset0:{r} offset1:{r+1}"))
            else: Q.append(({(kind, first + r)}, f"ds_write_b32 v{TA+r//2}, v{p} offset:{256*r}"))
    RFa, RFb = 32, 92
    wr('R', 0, 16, 0); Q.append((set(), ('fr', 0, 0)))
    wr('R', 0, 16, 16); Q.append((set(), ('fr', 0, 1)))
    wr('L', 0, 13, 0); Q.append((set(), ('fr', 1, 2)))
    wr('L', 0, 14, 13); Q.append((set(), ('fr', 2, 3))); Q.append((set(), ('fr', 3, 4)))
    FD = {0: 216, 1: 232, 2: 160, 3: 176, 4: 192}
    allc = {('L', i) for i in range(27)}
    def drain(maxn=99):
        n = 0
        while Q and n < maxn:
            needs, t = Q[0]
            if isinstance(t, tuple):
                if t[2] >= 2 and not allc <= done: break
                fragread(t[1], FD[t[2]])
            else:
                if not needs <= done: break
                e(t)
            Q.pop(0); n += 1
    for tag in (('R', 0), ('R', 1), ('L', 0)): cvt(tag)
    prev = []
    for g in groups:
        for (d, a, b, tag) in g: e(cm1(d, a, b))
        for tag in prev: cvt(tag)
        drain(3)
        for (d, a, b, tag) in g: e(cm2(d, a, b))
        prev = [tag for (_, _, _, tag) in g if tag]
    for tag in prev: cvt(tag)
    drain()
    assert not Q
    DD = KD
    def kmfma(ti):
        for q in range(4):
            for ct in range(2):
                d = DD + 8 * ti + 4 * ct
                e(f"v_mfma_f32_16x16x32_f16 {vr(d,4)}, {vr(FD[2+ti]+4*q,4)}, {vr(FD[ct]+4*q,4)}, {'0' if q == 0 else vr(d,4)}")
    e("v_mov_b32 v31, v46\ns_waitcnt lgkmcnt(15)")
    kmfma(0)
    e("s_waitcnt lgkmcnt(4)")
    kmfma(1)
    e("s_waitcnt lgkmcnt(0)")
    kmfma(2)

KD = 64
def gen_kfin(e):
    D = KD
    e(f"v_mul_u32_u24 v8, 3072, v2\nv_lshl_add_u32 v8, v1, 4, v8\nv_add_u32 v8, {KX}, v8\nv_xor_b32 v9, 1, v2\nv_mul_u32_u24 v9, 3072, v9\nv_lshl_add_u32 v9, v1, 4, v9\nv_add_u32 v9, {KX}, v9")
    e(f"v_lshlrev_b32 v10, 2, v2\nv_add_u32 v10, {LCNT+16}, v10\nv_xor_b32 v11, 4, v10\nv_mov_b32 v12, 1")
    e("s_and_b32 s30, s29, 1\ns_cmp_eq_u32 s30, 1\ns_nop 7\ns_cbranch_scc1 A_KX1")
    for ti in range(3): e(f"ds_write_b128 v8, {vr(D+8*ti+4,4)} offset:{1024*ti}")
    e("s_branch A_KXD")
    e.label("A_KX1")
    for ti in range(3): e(f"ds_write_b128 v8, {vr(D+8*ti,4)} offset:{1024*ti}")
    for ti in range(3):
        for q in range(4 if ti < 2 else 2): e(f"v_mov_b32 v{D+8*ti+q}, v{D+8*ti+4+q}")
    e.label("A_KXD")
    e("ds_write_b32 v10, v12")
    e("v_and_b32 v48, 15, v1\nv_lshrrev_b32 v49, 4, v1\nv_and_b32 v52, 1, v2\nv_lshl_add_u32 v52, v52, 4, v48")
    e(f"v_and_b32 v53, 1, v49\nv_lshlrev_b32 v53, 2, v53\nv_lshl_add_u32 v53, v52, 3, v53\nv_lshrrev_b32 v56, 1, v49\nv_lshl_add_u32 v53, v56, 8, v53")
    e(f"v_lshlrev_b32 v53, 1, v53\nv_mul_u32_u24 v55, {KCH}, v28\nv_add_u32 v55, {KB}, v55\nv_sub_u32 v53, v55, v53\nv_add_u32 v53, {2*(2040-512)}, v53")
    e(f"v_lshlrev_b32 v56, 3, v52\nv_lshl_add_u32 v56, v49, 8, v56\nv_lshlrev_b32 v56, 1, v56\nv_sub_u32 v56, v55, v56\nv_add_u32 v56, {2*(2040-1024)}, v56")
    lds_poll(e, "A_KXP", "v11", 0, 1, 7)
    for ti in range(3): e(f"ds_read_b128 {vr(D+8*ti+4,4)}, v9 offset:{1024*ti}")
    e("s_waitcnt lgkmcnt(0)")
    for ti in range(3):
        for q in range(4 if ti < 2 else 2): e(f"v_add_f32 v{D+8*ti+q}, v{D+8*ti+q}, v{D+8*ti+4+q}\nv_mul_f32 v{D+8*ti+q}, v31, v{D+8*ti+q}")
    for ti in range(2):
        d = D + 8 * ti; o = KP + 2 * ti
        e(f"v_cvt_pk_bf16_f32 v{o}, v{d+3}, v{d+2}\nv_cvt_pk_bf16_f32 v{o+1}, v{d+1}, v{d}")
    f0, f8 = D + 16, D + 17
    e(f"v_and_b32 v57, 1, v52\nv_cmp_eq_u32 vcc, 1, v57\nv_cndmask_b32 v57, v{f0}, v{f8}, vcc")
    e(f"v_cvt_pk_bf16_f32 v{KP+4}, v{f8}, v{f8}\nv_cvt_pk_bf16_f32 v{KP+5}, v{f8}, v57\nv_cvt_pk_bf16_f32 v{KP+6}, v{f0}, v{f0}\nv_mov_b32 v{KP+7}, v{KP+6}")
    e(f"v_mov_b32 v{KP+8}, v53\nv_mov_b32 v{KP+9}, v56")

KP = 112
def gen_kwrite(e):
    for ti in range(2):
        o = KP + 2 * ti; off = 1024 if ti == 0 else 0
        e(f"ds_write_b64 v{KP+8}, {vr(o,2)} offset:{off+8}\nds_write_b64 v{KP+8}, {vr(o,2)} offset:{off+KS_OFF}")
    e(f"ds_write_b128 v{KP+9}, {vr(KP+4,4)}\nds_write_b64 v{KP+9}, {vr(KP+4,2)} offset:{KS_OFF-8}\nds_write_b64 v{KP+9}, {vr(KP+6,2)} offset:{KS_OFF}")
    e(f"v_mov_b32 v6, {LCNT}\nv_mov_b32 v12, 1\ns_mov_b64 exec, 1\nds_add_u32 v6, v12\ns_mov_b64 exec, -1")

def gen_A(e):
    srd(e, 8, 66, WS_SIZE)
    e("s_mov_b32 s38, 0xffff0000")
    e("s_cmp_lg_u32 s2, 255\ns_cbranch_scc1 A_NOZ\ns_cmp_lg_u32 s3, 0\ns_cbranch_scc1 A_NOZ")
    e(f"v_mov_b32 v3, 0\ns_mov_b32 s31, {WS_EPW}\nbuffer_load_dword v4, v3, s[8:11], s31 offen sc1\ns_waitcnt vmcnt(0)")
    e("v_add_u32 v4, 1, v4\nv_max_u32 v4, 1, v4\nv_cmp_eq_u32 vcc, 0, v1\ns_and_saveexec_b64 s[74:75], vcc")
    e("global_store_dword v3, v4, s[64:65] sc1\nbuffer_store_dword v4, v3, s[8:11], s31 offen sc1\ns_mov_b64 exec, s[74:75]\ns_waitcnt vmcnt(0)")
    e.label("A_NOZ")
    e("v_bfe_u32 v3, v1, 4, 1\nv_lshrrev_b32 v12, 5, v1\nv_bfe_u32 v13, v1, 2, 2\nv_and_b32 v15, 3, v1")
    e("v_lshl_add_u32 v12, v12, 3, v13\nv_lshlrev_b32 v12, 7, v12\nv_lshl_add_u32 v12, v3, 13, v12\nv_lshl_add_u32 v12, v15, 3, v12\nv_add_u32 v12, 32768, v12")
    e("v_lshrrev_b32 v13, 1, v13\nv_lshl_add_u32 v13, v3, 1, v13\nv_lshl_add_u32 v20, v13, 5, v12")
    for t in range(1, 4): e(f"v_xor_b32 v{20+t}, {t<<5}, v20")
    e("v_and_b32 v3, 31, v1\nv_lshrrev_b32 v12, 5, v1\nv_bfe_u32 v13, v3, 1, 3\nv_xor_b32 v13, v12, v13")
    e("v_lshl_add_u32 v3, v2, 6, v3\nv_lshlrev_b32 v3, 7, v3\nv_lshl_add_u32 v24, v13, 4, v3")
    for s in range(1, 4): e(f"v_xor_b32 v{24+s}, {s<<5}, v24")
    gen_kaddr(e)
    e(f"v_and_b32 v18, 31, v1\nv_lshl_add_u32 v18, v2, 6, v18\nv_lshlrev_b32 v18, 3, v18\nv_add_u32 v18, {LSTAT}, v18\nv_mov_b32 v19, {LCNT}")
    e.stamp(1)
    e("s_waitcnt vmcnt(1)")
    e.stamp(2)
    gen_kgen(e)
    gen_kfin(e)
    e("s_waitcnt vmcnt(0) lgkmcnt(0)")
    e.stamp(3)
    ACC = 128
    FA = [32, 56]
    e("s_cmp_eq_u32 s28, 1\ns_cbranch_scc1 A_G1")
    for i in range(3): e("s_barrier")
    srd(e, 16, 60, 0x1c0000)
    e("v_lshlrev_b32 v3, 10, v1\ns_lshr_b32 s31, s2, 3\ns_sub_u32 s31, s31, 28\ns_mul_i32 s31, s31, 458752\ns_add_u32 s32, s31, 393216\ns_lshl_b32 s30, s29, 17\ns_add_u32 s31, s31, s30\ns_add_u32 s33, s31, 65536")
    e("s_cmp_eq_u32 s29, 3\ns_cselect_b32 s34, 512, 0\ns_cselect_b32 s33, s32, s33\ns_sub_u32 s33, s33, s34")
    e("buffer_load_dword v15, v3, s[16:19], s33 offen offset:896\nbuffer_load_dword v15, v3, s[16:19], s31 offen offset:896")
    for i in range(6): e("s_barrier")
    e("s_waitcnt vmcnt(0)")
    e("ds_read_b64 v[16:17], v19 offset:32")
    gen_kwrite(e)
    e("s_branch A_CONV")
    e.label("A_G1")
    def reads(buf, s):
        L = []
        for mi in range(2): L.append(f"ds_read_b128 {vr(FA[buf]+16+4*mi,4)}, v{24+s} offset:{4096*mi}")
        for t in range(4):
            for j in range(2): L.append(f"ds_read_b64_tr_b16 {vr(FA[buf]+4*t+2*j,2)}, v{20+t} offset:{2048*s+512*j}")
        return L
    def mfmas(buf, zero=False):
        return [f"v_mfma_f32_32x32x16_bf16 {vr(ACC+16*(2*t+mi),16)}, {vr(FA[buf]+4*t,4)}, {vr(FA[buf]+16+4*mi,4)}, {'0' if zero else vr(ACC+16*(2*t+mi),16)}" for t in range(4) for mi in range(2)]
    def interleave(M, F, per=2):
        k = 0; n = len(F)
        for i, m in enumerate(M):
            e(m)
            cnt = -(-(n - k) // (len(M) - i)) if n - k > per * (len(M) - i) else min(per, n - k)
            for _ in range(cnt): e(F[k]); k += 1
        assert k == n
    e(f"s_mov_b32 s37, 0\ns_mov_b32 s36, 0\ns_mov_b32 s38, {STG}")
    e("s_barrier")
    e.stamp(4)
    for r in reads(0, 0): e(r)
    e("s_waitcnt lgkmcnt(0)")
    interleave(mfmas(0, True), reads(1, 1))
    e("s_branch A_K1")
    e.label("A_LOOP")
    for s in range(3):
        if s == 1: e.label("A_K1")
        e("s_waitcnt lgkmcnt(0)")
        F = reads((s + 1) % 2, s + 1)
        if s == 2:
            F = F + [f"s_cmp_eq_u32 s36, {2*STG}\ns_cselect_b32 s39, {(-2*STG) & 0xffffffff}, s38"] + [f"v_add_u32 v{20+i}, s39, v{20+i}\nv_add_u32 v{21+i}, s39, v{21+i}" for i in range(0, 8, 2)]
        interleave(mfmas(s % 2), F)
    e("s_waitcnt lgkmcnt(0)\ns_barrier")
    interleave(mfmas(1), reads(0, 0) + ["s_add_u32 s36, s36, s39\ns_add_u32 s37, s37, 1\ns_cmp_lt_u32 s37, 8"])
    e("s_cbranch_scc1 A_LOOP")
    e.stamp(5)
    if APRIO: e(f"s_setprio {APRIO}")
    e(f"v_lshrrev_b32 v12, 5, v1\nv_lshlrev_b32 v12, 4, v12\nv_add_u32 v12, {LCS}, v12")
    e("s_waitcnt lgkmcnt(0)")
    CS = 32
    e("ds_read_b64 v[4:5], v18\nds_read_b64 v[6:7], v18 offset:256\nds_read_b64 v[16:17], v19 offset:32")
    for t in range(4):
        for g in range(2):
            e(f"ds_read_b128 {vr(CS+16*t+4*g,4)}, v12 offset:{64*t+32*g}")
            e(f"ds_read_b128 {vr(CS+16*t+8+4*g,4)}, v12 offset:{256+64*t+32*g}")
    e(f"s_lshl_b32 s31, s24, 3\ns_lshl_b32 s30, s29, 1\ns_add_u32 s31, s31, s30\ns_mul_i32 s31, s31, 112\ns_lshl_b32 s30, s25, 2\ns_add_u32 s31, s31, s30\ns_lshl_b32 s31, s31, 10\ns_add_u32 s31, s31, {WS_H}\ns_add_u32 s30, s31, {112*1024}")
    e("v_lshlrev_b32 v3, 4, v1")
    e("s_waitcnt lgkmcnt(0)")
    for mi in range(2):
        b = 8 + 4 * mi; s = 4 + 2 * mi
        e(f"v_sub_f32 v{b}, 0, v{s}\nv_mul_f32 v{b+1}, {f32(-LOG2E)}, v{s+1}\nv_mul_f32 v{b+2}, v{s+1}, v{s+1}\nv_rcp_f32 v{b+2}, v{b+2}")
    TM = 96
    for t in range(4):
        for mi in range(2):
            a = ACC + 16 * (2 * t + mi); b = 8 + 4 * mi
            o = a + 8
            for p in range(4):
                G = a + 2 * p; U = a + 8 + 2 * p; cg = CS + 16 * t + 2 * p; cu = CS + 16 * t + 8 + 2 * p
                z = TM + 2 * p
                e(f"v_pk_fma_f32 {vr(G,2)}, {vr(cg,2)}, {vr(b,2)}, {vr(G,2)} op_sel_hi:[1,0,1]")
                e(f"v_pk_fma_f32 {vr(U,2)}, {vr(cu,2)}, {vr(b,2)}, {vr(U,2)} op_sel_hi:[1,0,1]")
                e(f"v_pk_mul_f32 {vr(z,2)}, {vr(G,2)}, {vr(b,2)} op_sel:[0,1] op_sel_hi:[1,1]")
            for p in range(4):
                z = TM + 2 * p
                e(f"v_exp_f32 v{z}, v{z}\nv_exp_f32 v{z+1}, v{z+1}")
            for p in range(4):
                G = a + 2 * p; U = a + 8 + 2 * p; z = TM + 2 * p
                e(f"v_pk_mul_f32 {vr(G,2)}, {vr(G,2)}, {vr(U,2)}")
                e(f"v_pk_fma_f32 {vr(z,2)}, {vr(z,2)}, {vr(b+2,2)}, {vr(b+2,2)} op_sel_hi:[1,0,0]")
            for p in range(4):
                z = TM + 2 * p
                e(f"v_rcp_f32 v{z}, v{z}\nv_rcp_f32 v{z+1}, v{z+1}")
            for p in range(4):
                G = a + 2 * p; z = TM + 2 * p
                e(f"v_pk_mul_f32 {vr(G,2)}, {vr(G,2)}, {vr(z,2)}")
            for p in range(4):
                G = a + 2 * p
                e(f"v_cvt_pk_bf16_f32 v{o+p}, v{G}, v{G+1}")
            e(f"buffer_store_dwordx4 {vr(o,4)}, v3, s[8:11], {'s31' if mi == 0 else 's30'} offen offset:{1024*t} sc1")
    e.stamp(6)
    gen_kwrite(e)
    e(f"s_lshl_b32 s31, s24, 2\ns_add_u32 s31, s31, s29\ns_mul_i32 s31, s31, 28\ns_add_u32 s31, s31, s25\ns_lshl_b32 s31, s31, 7\ns_add_u32 s31, s31, {WS_HF}")
    e("s_mov_b32 s35, s31")
    if APRIO: e("s_setprio 0")
    e.label("A_CONV")
    e("v_and_b32 v24, 15, v1\nv_lshrrev_b32 v25, 4, v1")
    e(f"v_and_b32 v26, 3, v24\nv_mul_u32_u24 v26, {UP}, v26\nv_lshrrev_b32 v27, 2, v24\nv_lshl_add_u32 v26, v27, 7, v26\nv_lshl_add_u32 v26, v25, 4, v26")
    e(f"v_mul_u32_u24 v27, {UCH}, v28\nv_add_u32 v26, v26, v27\nv_and_b32 v31, 1, v2\nv_lshl_add_u32 v26, v31, 8, v26\nv_add_u32 v26, {UB}, v26")
    e(f"v_mul_u32_u24 v5, {KCH}, v28\nv_add_u32 v5, {KB}, v5")
    e(f"v_lshrrev_b32 v27, 1, v24\nv_sub_u32 v27, v25, v27\nv_add_u32 v27, 7, v27\nv_lshl_add_u32 v27, v27, 4, v5\nv_lshl_add_u32 v27, v31, 8, v27")
    e(f"v_and_b32 v29, 1, v24\nv_xor_b32 v29, 1, v29\nv_mul_u32_u24 v29, {KS_OFF}, v29\nv_add_u32 v27, v27, v29")
    e(f"v_mov_b32 v6, {LCNT}")
    lds_poll(e, "A_KU", "v6", 0, 8, 7)
    CA = 200
    FU = [32, 96]
    def creads(buf, s):
        L = []
        for p in range(8):
            L.append(f"ds_read_b128 {vr(FU[buf]+32+4*p,4)}, v27 offset:{512*(7-p)+64*s}")
            L.append(f"ds_read_b128 {vr(FU[buf]+4*p,4)}, v26 offset:{512*p+64*s}")
        return L
    for r in creads(0, 0): e(r)
    for s in range(4):
        if s == HFS:
            e("s_cmp_eq_u32 s28, 0\ns_cbranch_scc1 A_NOHF\nv_mov_b32 v3, 0\ns_waitcnt vmcnt(0)\ns_mov_b64 exec, 1\nbuffer_store_dwordx2 v[16:17], v3, s[8:11], s35 offen sc1\ns_mov_b64 exec, -1")
            e.label("A_NOHF")
            e.stamp(7)
        e("s_waitcnt lgkmcnt(0)")
        nxt = creads((s + 1) % 2, s + 1) if s < 3 else []
        k = 0; cnt = 0
        for q in range(8):
            for t in range(q, 8):
                a = CA + 4 * t
                c = "0" if (s == 0 and q == 0) else vr(a, 4)
                e(f"v_mfma_f32_16x16x32_bf16 {vr(a,4)}, {vr(FU[s%2]+4*(t-q),4)}, {vr(FU[s%2]+32+4*q,4)}, {c}")
                cnt += 1
                if k < len(nxt) and cnt % 2 == 0: e(nxt[k]); k += 1
        assert k == len(nxt)
    e.stamp(8)
    e(f"v_mul_u32_u24 v8, {UCH}, v28\nv_lshl_add_u32 v8, v1, 4, v8\nv_add_u32 v8, {UB}, v8\nv_xor_b32 v9, 1, v31\nv_mad_u32_u24 v9, v9, s33, v8\nv_mad_u32_u24 v8, v31, s33, v8".replace("v_mul_u32_u24 v8", f"s_mov_b32 s33, {UP}\nv_mul_u32_u24 v8"))
    e(f"v_lshlrev_b32 v10, 2, v2\nv_add_u32 v10, {LCNT+16}, v10\nv_xor_b32 v11, 4, v10\nv_mov_b32 v12, 2\nv_mov_b32 v13, 3")
    e("ds_write_b32 v10, v12")
    lds_poll(e, "A_P0", "v11", 0, 2, 7)
    e("s_and_b32 s30, s29, 1\ns_cmp_eq_u32 s30, 1\ns_cbranch_scc1 A_ODD")
    for i in range(4): e(f"ds_write_b128 v8, {vr(CA+16+4*i,4)} offset:{1024*i}")
    e("s_branch A_J")
    e.label("A_ODD")
    e("s_nop 7")
    for i in range(4): e(f"ds_write_b128 v8, {vr(CA+4*i,4)} offset:{1024*i}")
    for i in range(16): e(f"v_mov_b32 v{CA+i}, v{CA+16+i}")
    e.label("A_J")
    e("ds_write_b32 v10, v13")
    e(f"v_mul_u32_u24 v26, {UCH}, v28\nv_lshl_add_u32 v26, v1, 3, v26\nv_lshl_add_u32 v26, v31, 11, v26\nv_add_u32 v26, {UB}, v26")
    for i in range(4): e(f"ds_read_b64 {vr(48+2*i,2)}, v26 offset:{3*UP+384+512*i}")
    lds_poll(e, "A_PR", "v11", 0, 3, 7)
    for i in range(4): e(f"ds_read_b128 {vr(32+4*i,4)}, v9 offset:{1024*i}")
    e(f"v_lshlrev_b32 v27, 3, v1\nv_lshl_add_u32 v27, v2, 11, v27\ns_lshl_b32 s31, s77, 13\ns_add_u32 s31, s31, {WS_AT}\ns_mov_b32 s38, 0xffff0000")
    e("s_waitcnt lgkmcnt(0)\nv_lshlrev_b32 v30, 16, v30")
    for i in range(4):
        a = CA + 4 * i; b = 32 + 4 * i; x = 48 + 2 * i; t = 60
        for q in range(4): e(f"v_add_f32 v{a+q}, v{a+q}, v{b+q}")
        e(f"v_cvt_pk_bf16_f32 v{b}, v{a}, v{a+1}\nv_cvt_pk_bf16_f32 v{b+1}, v{a+2}, v{a+3}")
        for q in range(4):
            e(f"v_lshlrev_b32 v{t+q}, 16, v{x+(q>>1)}" if q % 2 == 0 else f"v_and_b32 v{t+q}, s38, v{x+(q>>1)}")
            e(f"v_mul_f32 v{t+q}, v30, v{t+q}")
        e(f"v_cvt_pk_bf16_f32 v{b+2}, v{t}, v{t+1}\nv_cvt_pk_bf16_f32 v{b+3}, v{t+2}, v{t+3}")
        for q in range(4):
            e(f"v_lshlrev_b32 v{t+q}, 16, v{b+(q>>1)}" if q % 2 == 0 else f"v_and_b32 v{t+q}, s38, v{b+(q>>1)}")
            e(f"v_lshlrev_b32 v{t+4+q}, 16, v{b+2+(q>>1)}" if q % 2 == 0 else f"v_and_b32 v{t+4+q}, s38, v{b+2+(q>>1)}")
            e(f"v_add_f32 v{t+q}, v{t+q}, v{t+4+q}")
        e(f"v_cvt_pk_bf16_f32 v{a}, v{t}, v{t+1}\nv_cvt_pk_bf16_f32 v{a+1}, v{t+2}, v{t+3}")
        e(f"buffer_store_dwordx2 {vr(a,2)}, v27, s[8:11], s31 offen offset:{512*i} sc1")
    e(f"s_lshl_b32 s31, s77, 7\ns_lshl_b32 s30, s29, 3\ns_add_u32 s31, s31, s30\ns_add_u32 s31, s31, {WS_AF}")
    e("v_mov_b32 v3, 0\nv_cmp_eq_u32 vcc, 0, v1\ns_waitcnt vmcnt(0)\ns_and_saveexec_b64 s[74:75], vcc")
    e("buffer_store_dwordx2 v[16:17], v3, s[8:11], s31 offen sc1\ns_mov_b64 exec, s[74:75]")
    e.stamp(9)
    e.stamp_out("PA", 0, 0, vt=100)

NAME = "parallel_sum__ssm_conv_s4d__glu_gated_swiglu__prompt_kernel"
if __name__ == "__main__":
    Asm.PROFILE = len(sys.argv) > 2
    out = ["; @launch grid=(256,1,1) block=(512,1,1) lds=163840", '.amdgcn_target "amdgcn-amd-amdhsa--gfx950"\n.text']
    out.append(kernel_header(NAME) + gen())
    out.append('.section .rodata,"a"\n.p2align 6\n' + kernel_desc(NAME, 256, 256))
    open(sys.argv[1], "w").write("\n".join(out))
```

```python
import re

TRANS = ("v_exp_f32", "v_log_f32", "v_rcp_f32", "v_rsq_f32", "v_sqrt_f32", "v_sin_f32", "v_cos_f32", "v_rcp_iflag_f32",
         "v_exp_f16", "v_rcp_f16")

def _regs(tok):
    tok = tok.strip()
    tok = re.sub(r"^-|^\|", "", tok); tok = tok.rstrip("|")
    m = re.match(r"^abs\((.*)\)$", tok)
    if m: tok = m.group(1)
    m = re.match(r"^([vas])\[(\d+):(\d+)\]$", tok)
    if m: return {(m.group(1), i) for i in range(int(m.group(2)), int(m.group(3)) + 1)}
    m = re.match(r"^([vas])(\d+)$", tok)
    if m: return {(m.group(1), int(m.group(2)))}
    if tok == "vcc": return {("s", 106), ("s", 107)}
    if tok == "vcc_lo": return {("s", 106)}
    if tok == "vcc_hi": return {("s", 107)}
    if tok == "exec": return {("s", 126), ("s", 127)}
    if tok == "m0": return {("s", 124)}
    return set()

class Ins:
    def __init__(self, text):
        self.text = text
        t = text.split(";")[0].strip()
        self.label = t.endswith(":")
        self.op = t.split()[0] if t else ""
        rest = t[len(self.op):].strip()
        ops = []; depth = 0; cur = ""
        for ch in rest:
            if ch in "[(": depth += 1
            if ch in "])": depth -= 1
            if ch == "," and depth == 0: ops.append(cur.strip()); cur = ""
            else: cur += ch
        if cur.strip(): ops.append(cur.strip())
        self.mods = ""
        if ops:
            last = ops[-1]
            depth = 0
            for i, ch in enumerate(last):
                if ch in "[(": depth += 1
                if ch in "])": depth -= 1
                if ch == " " and depth == 0:
                    self.mods = last[i:]; ops[-1] = last[:i]; break
        self.ops = ops
        op = self.op
        self.w = set(); self.r = set()
        self.kind = "other"
        R = [_regs(o) for o in ops]
        if op.startswith("v_mfma"):
            self.kind = "mfma"; self.w = R[0]; self.ra = R[1] | R[2]; self.rc = R[3]; self.r = self.ra | self.rc
            self.passes = 8 if "32x32" in op else 4
            if op.endswith("_f32") and ("32x32x2" in op): self.passes = 16
            if op.endswith("_f32") and ("16x16x4" in op): self.passes = 8
        elif op.startswith("v_"):
            self.kind = "valu"
            if op.startswith("v_cmp"):
                self.w = R[0]; self.r = set().union(*R[1:])
                if op.startswith("v_cmpx"): self.w |= _regs("exec")
            elif op.startswith("v_permlane") and "swap" in op:
                self.w = R[0] | R[1]; self.r = R[0] | R[1]
            elif op.startswith(("v_add_co", "v_sub_co", "v_addc_co", "v_subb_co", "v_div_scale", "v_mad_u64")):
                self.w = R[0] | R[1]; self.r = set().union(*R[2:])
            else:
                self.w = R[0]; self.r = set().union(*R[1:]) if len(R) > 1 else set()
                if op.startswith(("v_fmac", "v_dot2c", "v_pk_fmac")): self.r |= R[0]
                if op.startswith("v_cndmask") and len(ops) == 3: self.r |= _regs("vcc")
                if "dst_sel:WORD" in self.mods or "_d16" in op or "row_mask" in self.mods: self.r |= R[0]
        elif op.startswith("ds_"):
            self.kind = "ds"
            if op.startswith(("ds_read", "ds_bpermute", "ds_permute", "ds_swizzle")):
                self.w = R[0]; self.r = set().union(*R[1:])
            else:
                self.r = set().union(*R)
        elif op.startswith(("buffer_", "global_")):
            self.kind = "vmem"
            if op in ("buffer_inv", "buffer_wbl2"): pass
            elif "load" in op and " lds" not in self.mods and "_lds_" not in op:
                self.w = R[0]; self.r = set().union(*R[1:])
                if "d16" in op: self.r |= R[0]
            else:
                self.r = set().union(*R) if R else set()
                if " lds" in self.mods or "_lds_" in op: self.r |= _regs("m0"); self.ldsdma = True
                if "atomic" in op and "sc0" in self.mods: self.w = R[0]
            self.store_data = set()
            if "store" in op and ("x4" in op or "x3" in op):
                self.store_data = R[0] if op.startswith("buffer") else R[1]
        elif op.startswith("s_"):
            self.kind = "salu"
            if op.startswith(("s_cmp", "s_cbranch", "s_branch", "s_waitcnt", "s_barrier", "s_nop", "s_endpgm", "s_sleep", "s_setprio")):
                self.r = set().union(*R) if R else set()
            else:
                self.w = R[0] if R else set(); self.r = set().union(*R[1:]) if len(R) > 1 else set()
                if "saveexec" in op: self.w |= _regs("exec"); self.r |= _regs("exec")
        self.dpp = any(k in self.mods for k in ("quad_perm", "row_shr", "row_shl", "row_ror", "row_bcast", "row_mirror", "row_half_mirror", "wave_", "row_newbcast"))
        self.states = 1
        if op == "s_nop": self.states = int(ops[0], 0) + 1
        if self.label or not op or op.startswith("."): self.states = 0

def need(prod, cons):
    n = 0
    P, C = prod, cons
    vw = {x for x in P.w if x[0] in "va"}; sw = {x for x in P.w if x[0] == "s"}
    if P.kind == "valu":
        if vw & C.r:
            if C.kind == "mfma": n = max(n, 2)
            if C.dpp: n = max(n, 2)
            if C.op.startswith("v_permlane"): n = max(n, 2)
            if C.op.startswith(("v_readfirstlane", "v_readlane")): n = max(n, 1)
            if P.op.startswith(TRANS) and C.kind in ("valu", "mfma", "ds", "vmem"): n = max(n, 1)
            if P.op.startswith("v_dot") and not (C.op == P.op and not (vw & set().union(*[_regs(o) for o in C.ops[1:3]]))): n = max(n, 3)
            if ("dst_sel:WORD" in P.mods or "op_sel" in P.mods and not P.op.startswith("v_pk")) and C.kind == "valu": n = max(n, 1)
        if P.op.startswith("v_dot") and (vw & C.w) and C.op != P.op: n = max(n, 3)
        if sw & C.r:
            if C.kind == "vmem": n = max(n, 5)
            if C.kind in ("valu",): n = max(n, 4 if C.op.startswith(("v_readlane", "v_writelane", "v_div_fmas")) else 2)
            if C.kind == "salu": n = max(n, 1)
        if (("s", 126) in sw):
            if C.dpp: n = max(n, 5)
            if C.kind == "mfma" or C.op.startswith(("v_permlane", "v_readlane", "v_readfirstlane")): n = max(n, 4)
    if P.kind == "salu":
        if ("s", 124) in P.w and getattr(C, "ldsdma", False): n = max(n, 1)
    if P.kind == "vmem" and getattr(P, "store_data", None):
        if P.store_data & C.w: n = max(n, 2)
    if P.kind == "mfma":
        tab_ab = {4: 8, 8: 12, 16: 20}[P.passes]
        if C.kind == "mfma":
            if P.w & C.ra: n = max(n, tab_ab)
            if P.w & C.rc:
                if P.w == C.rc and P.passes == C.passes: pass
                else: n = max(n, {4: 6, 8: 10, 16: 18}[P.passes])
            elif P.w & C.w: n = max(n, tab_ab)
        else:
            if P.w & (C.r | C.w): n = max(n, tab_ab)
            if C.kind == "valu" and (P.rc & C.w): n = max(n, {4: 3, 8: 7, 16: 15}[P.passes])
    return n

class Asm:
    def __init__(self):
        self.lines = []
    def __call__(self, s):
        for l in s.split("\n"):
            l = l.strip()
            if l: self.lines.append(l)
    def c(self, s): self.lines.append("; " + s)
    PROFILE = False
    def stamp(self, i):
        if not Asm.PROFILE: return
        assert i < 10
        self(f"s_memtime s[{78+2*i}:{79+2*i}]")
        if i == 0: self("s_memrealtime s[98:99]\ns_waitcnt lgkmcnt(0)")
        else: self("s_waitcnt lgkmcnt(0)") if Asm.PROFILE == 2 else None
        self.nst = max(getattr(self, "nst", 0), i + 1)
    def stamp_out(self, tag, tid, role, ws_srd="s[8:11]", base=0x20000, vt=2):
        if not Asm.PROFILE: return
        self("s_memrealtime s[100:101]\ns_waitcnt lgkmcnt(0) vmcnt(0)")
        self(f"v_cmp_eq_u32 vcc, {tid}, v0\ns_and_saveexec_b64 s[70:71], vcc\ns_cbranch_execz {tag}_PEND")
        self(f"s_lshl_b32 s72, s2, 7\ns_add_u32 s72, s72, {base + 64*role}\nv_mov_b32 v{vt+1}, 0")
        for i in range(1, 10):
            self(f"s_sub_u32 s69, s{78+2*i}, s78\nv_mov_b32 v{vt}, s69\nbuffer_store_dword v{vt}, v{vt+1}, {ws_srd}, s72 offen offset:{4*i}\ns_nop 1")
        self(f"s_sub_u32 s69, s100, s98\nv_mov_b32 v{vt}, s69\nbuffer_store_dword v{vt}, v{vt+1}, {ws_srd}, s72 offen offset:0\ns_nop 1")
        self(f"v_mov_b32 v{vt}, s98\nbuffer_store_dword v{vt}, v{vt+1}, {ws_srd}, s72 offen offset:60\ns_nop 1")
        self.label(f"{tag}_PEND")
        self("s_mov_b64 exec, s[70:71]")
    def stamp_dbg(self, tag, tid, wg, first, idxs, vt=2):
        self("s_memrealtime s[100:101]\ns_waitcnt lgkmcnt(0) vmcnt(0)")
        self(f"s_cmp_lg_u32 s2, {wg}\ns_cbranch_scc1 {tag}_DEND\nv_cmp_eq_u32 vcc, {tid}, v0\ns_and_saveexec_b64 s[70:71], vcc\ns_cbranch_execz {tag}_DEND0\nv_mov_b32 v{vt+1}, 0")
        self(f"s_sub_u32 s69, s100, s98\nv_mov_b32 v{vt}, s69\nglobal_store_dword v{vt+1}, v{vt}, s[64:65] offset:{4*first}\ns_nop 1")
        for k, i in enumerate(idxs):
            self(f"s_sub_u32 s69, s{78+2*i}, s78\nv_mov_b32 v{vt}, s69\nglobal_store_dword v{vt+1}, v{vt}, s[64:65] offset:{4*(first+1+k)}\ns_nop 1")
        self.label(f"{tag}_DEND0")
        self("s_mov_b64 exec, s[70:71]")
        self.label(f"{tag}_DEND")
    def label(self, s): self.lines.append(s + ":")
    def text(self, autopad=True):
        out = []
        hist = []
        for l in self.lines:
            if l.startswith(";") or l.startswith("."):
                out.append(l); continue
            I = Ins(l)
            if I.label:
                out.append(l); continue
            if autopad:
                dist = 0; pad = 0
                for P in reversed(hist):
                    nd = need(P, I)
                    if nd - dist > pad: pad = nd - dist
                    dist += P.states
                    if dist > 24: break
                while pad > 0:
                    k = min(pad, 16)
                    nop = Ins(f"s_nop {k-1}")
                    out.append(f"    s_nop {k-1} ; auto"); hist.append(nop); pad -= k
            out.append("    " + l); hist.append(I)
            if len(hist) > 40: hist = hist[-40:]
        return "\n".join(out) + "\n"

def kernel_header(name):
    return f".globl {name}\n.p2align 8\n.type {name},@function\n{name}:\n"

def kernel_desc(name, vgpr, accum, sgpr=102):
    return f""".amdhsa_kernel {name}
  .amdhsa_next_free_vgpr {vgpr}
  .amdhsa_next_free_sgpr {sgpr}
  .amdhsa_accum_offset {accum}
  .amdhsa_group_segment_fixed_size 0
  .amdhsa_kernarg_size 112
  .amdhsa_user_sgpr_count 2
  .amdhsa_user_sgpr_kernarg_segment_ptr 1
  .amdhsa_system_sgpr_workgroup_id_x 1
.end_amdhsa_kernel
"""
def vr(b, n): return f"v[{b}:{b+n-1}]" if n > 1 else f"v{b}"
def ar(b, n): return f"a[{b}:{b+n-1}]" if n > 1 else f"a{b}"
def sr(b, n): return f"s[{b}:{b+n-1}]" if n > 1 else f"s{b}"
import struct
def f32(x): return "0x%08x" % struct.unpack("<I", struct.pack("<f", x))[0]

class VM:
    def __init__(self, e): self.e = e; self.kinds = []
    def reset(self): self.kinds = []
    def add(self, kind, count=1):
        self.kinds += [kind] * count; return len(self.kinds)
    def op(self, text, kind='v'):
        self.e(text); return self.add(kind)
    INORDER = False
    def younger(self, idx, kind): return sum(1 for k in self.kinds[idx:] if k == kind or VM.INORDER)
    def wait(self, idx, extra=""):
        k = self.younger(idx, self.kinds[idx - 1])
        self.e(f"s_waitcnt vmcnt({min(k, 63)}){extra}")
```

```python
import sys, math, os
import numpy as np
from asmlib import *

def env(n, d): return int(os.environ.get(n, str(d)))
DIAG = env('DIAG', 0); PRIO = env('PRIO', 3); PREF = env('PREF', 1); SLEEP = env('SLEEP', 8); ROT = env('ROT', 1); ROT2 = env('ROT2', 1)
APRIO = env('APRIO', 3); W2PF = env('W2PF', 1); XL = 1; LNV = env('LNV', 0); HFS = env('HFS', 1); NW0 = env('NW0', 2); RING = env('RING', 4); PACE = env('PACE', 1); PACEM = env('PACEM', 99); HPF = env('HPF', 0); CH = env('CH', 7); N6 = env('N6', 0); N7 = env('N7', 3); PFS = [int(c) for c in os.environ.get('PFS', '011112')]; SPIN = env('SPIN', 20000)
WS_STATS = 0x0
WS_EPW = 0x8000
WS_LNF = 0x40000
WS_HF = 0x50000
WS_AF = 0x80000
WS_XN2 = 0x100000
WS_H = 0x400000
WS_AT = 0xC00000
WS_SIZE = 0x1000000
STG = 49152
SPARE = 153600
KTAB = 2 * STG + 32768
KX = 2 * STG
UP = 4640; UCH = 4 * UP; UB = STG
KB = UB + 2 * UCH; KS_OFF = 4224; KCH = 147456 - KB
LCS = 163072; LCNT = LCS + 512; LSTAT = 160768
PLANE = 17408

LOG2E = math.log2(math.e)
L2E_HI = float(np.float32(LOG2E)); L2E_LO = float(np.float32(LOG2E - L2E_HI))
I2PI = 1 / (2 * math.pi)
I2PI_HI = float(np.float32(I2PI)); I2PI_LO = float(np.float32(I2PI - I2PI_HI))
LN2 = math.log(2)
DPP = "row_mask:0xf bank_mask:0xf"

def srd(e, d, ptr, nbytes):
    e(f"s_mov_b32 s{d}, s{ptr}\ns_mov_b32 s{d+1}, s{ptr+1}\ns_mov_b32 s{d+2}, {hex(nbytes)}\ns_mov_b32 s{d+3}, 0x00020000")

def poll(e, tag, load, check, sleep=None):
    e(f"s_mov_b32 s39, {SPIN}")
    e.label(f"{tag}_L")
    e(load); e("s_waitcnt vmcnt(0)"); e(check)
    e(f"s_cbranch_vccz {tag}_D\ns_sub_u32 s39, s39, 1\ns_cbranch_scc1 {tag}_D\ns_sleep {sleep or SLEEP}\ns_branch {tag}_L")
    e.label(f"{tag}_D")

def lds_poll(e, tag, vaddr, off, target, vt):
    e(f"s_mov_b32 s39, {SPIN*16}")
    e.label(f"{tag}_L")
    e(f"ds_read_b32 v{vt}, {vaddr} offset:{off}\ns_waitcnt lgkmcnt(0)\nv_cmp_gt_u32 vcc, {target}, v{vt}")
    e(f"s_cbranch_vccz {tag}_D\ns_sub_u32 s39, s39, 1\ns_cbranch_scc1 {tag}_D\ns_sleep 1\ns_branch {tag}_L")
    e.label(f"{tag}_D")

def merged(e, work, fillers, lead=0):
    old = e.lines; e.lines = []; work(); W = e.lines; e.lines = old
    n = len(W); m = len(fillers); k = 0
    for i in range(n + 1):
        while k < m and k * max(n - lead, 1) <= i * m: e(fillers[k]); k += 1
        if i < n: e.lines.append(W[i])
    assert k == m

def rb(e, r): e(f"v_cvt_pk_bf16_f32 v{r}, v{r}, v{r}\nv_lshlrev_b32 v{r}, 16, v{r}")

def gen():
    e = Asm()
    e("s_cmp_ge_u32 s2, 256\ns_cbranch_scc1 END")
    e.label("KSTART")
    e("s_getpc_b64 s[76:77]")
    e("s_load_dwordx16 s[40:55], s[0:1], 0\ns_load_dwordx8 s[56:63], s[0:1], 64\ns_load_dwordx4 s[64:67], s[0:1], 96")
    e.stamp(0)
    e("v_and_b32 v1, 63, v0\nv_lshrrev_b32 v2, 6, v0\nv_readfirstlane_b32 s3, v2\nv_and_b32 v2, 3, v2")
    if PREF:
        e("v_lshlrev_b32 v3, 6, v0\nv_min_u32 v3, KEND-KSTART-8, v3\ns_cmp_ge_u32 s3, 6\ns_cbranch_scc1 NOPF\nglobal_load_dword v31, v3, s[76:77]")
        e.label("NOPF")
    e(f"v_mov_b32 v6, 0\nv_mov_b32 v7, 0\nv_lshlrev_b32 v5, 3, v2\nv_add_u32 v5, {LCNT}, v5\nds_write_b64 v5, v[6:7]")
    e("s_and_b32 s30, s2, 7\ns_lshr_b32 s31, s2, 3")
    e("s_and_b32 s24, s30, 1\ns_lshl_b32 s24, s24, 2\ns_and_b32 s32, s31, 3\ns_add_u32 s24, s24, s32")
    e("s_lshr_b32 s25, s30, 1\ns_mul_i32 s25, s25, 7\ns_lshr_b32 s27, s31, 2\ns_add_u32 s25, s25, s27")
    e("s_lshl_b32 s26, s30, 2\ns_add_u32 s26, s26, s32")
    e("s_cmp_lt_u32 s2, 224\ns_cselect_b32 s28, 1, 0\ns_and_b32 s29, s3, 3\ns_lshl_b32 s77, s30, 5\ns_add_u32 s77, s77, s31")
    e("s_cmp_ge_u32 s3, 4\ns_cbranch_scc1 ROLE_B")
    e("v_lshrrev_b32 v28, 1, v2\nv_lshlrev_b32 v29, 1, v28\ns_lshl_b32 s36, s77, 2\nv_add_u32 v29, s36, v29")
    e("v_lshlrev_b32 v4, 1, v0\ns_lshl_b32 s36, s77, 9\nv_add_u32 v4, s36, v4\nv_xor_b32 v5, 128, v4")
    e("s_waitcnt lgkmcnt(0)")
    for i, (off, base) in enumerate(((4, 42), (4, 44), (4, 46), (4, 48), (5, 46), (5, 48), (29, 50))):
        e(f"global_load_ushort v{40+i}, v{off}, s[{base}:{base+1}]")
    e("global_load_ushort v30, v29, s[52:53]")
    e("s_barrier\ns_branch ROLE_A")
    e.label("ROLE_B")
    e("s_cmp_lg_u32 s3, 7\ns_cbranch_scc1 B_NOX")
    e("v_lshrrev_b32 v25, 3, v1\nv_lshlrev_b32 v25, 10, v25\nv_and_b32 v16, 7, v1\nv_lshl_add_u32 v25, v16, 4, v25\ns_lshl_b32 s31, s2, 13\nv_add_u32 v25, s31, v25\ns_waitcnt lgkmcnt(0)")
    for i in range(8): e(f"global_load_dwordx4 {vr(128+4*i,4)}, v25, s[40:41] offset:{128*i}")
    e.label("B_NOX")
    gen_B(e)
    e.label("ROLE_A")
    gen_A(e)
    e.label("END")
    e("s_endpgm")
    e.label("KEND")
    return e.text()

def dma_stage(e):
    for g in range(4):
        e(f"s_add_u32 m0, s36, {4096*g}")
        for i in range(4):
            e(f"buffer_load_dwordx4 v{(4 if g < 2 else 8)+i}, {'s[12:15]' if g < 2 else 's[20:23]'}, s{32+g} offen offset:{1024*i} lds")
    e("s_add_u32 s37, s37, 1\ns_cmp_eq_u32 s37, 8\ns_cselect_b32 s37, 0, s37\ns_cselect_b32 s31, s69, s68")
    for g in range(4): e(f"s_add_u32 s{32+g}, s{32+g}, s31")
    e(f"s_add_u32 s36, s36, {STG}\ns_cmp_ge_u32 s36, {3*STG}\ns_cselect_b32 s31, {3*STG}, 0\ns_sub_u32 s36, s36, s31")

def cs_groups(k):
    base = (k % 3) * STG
    a = "v24" if base < 65536 - 8192 else "v26"; off0 = base if base < 65536 - 8192 else 0
    R = [f"ds_read_b128 {vr(240+4*i,4)}, {a} offset:{off0 + 2048*i}" for i in range(4)]
    M = [f"v_mfma_f32_16x16x32_bf16 v[20:23], v[16:19], {vr(240+4*i,4)}, v[20:23]" for i in range(4)]
    return R, M

def gen_B(e):
    vm = VM(e)
    e("v_lshrrev_b32 v12, 3, v1\nv_and_b32 v16, 7, v1\nv_lshrrev_b32 v17, 4, v1\nv_lshrrev_b32 v3, 1, v2\nv_and_b32 v19, 1, v2")
    e("s_lshr_b32 s37, s2, 3\ns_and_b32 s37, s37, 3\ns_lshl_b32 s37, s37, 1\ns_add_u32 s37, s37, s27\ns_and_b32 s37, s37, 7" if ROT else "s_mov_b32 s37, 0")
    e("s_lshl_b32 s36, s29, 14\ns_mov_b32 s15, 0x00020000\ns_mov_b32 s23, 0x00020000")
    e("s_cmp_eq_u32 s29, 2\ns_cbranch_scc1 B_WOFF")
    e("v_xor_b32 v17, v16, v17\nv_lshlrev_b32 v12, 10, v12\nv_lshl_add_u32 v4, v17, 4, v12\nv_xor_b32 v18, 64, v4")
    for i in range(1, 4): e(f"v_add_u32 v{4+i}, {8192*i - 1024*i}, {'v4' if i % 2 == 0 else 'v18'}")
    for i in range(4): e(f"v_mov_b32 v{8+i}, v{4+i}")
    e(f"s_lshl_b32 s32, s24, 18\ns_lshl_b32 s31, s29, 17\ns_add_u32 s32, s32, s31\ns_lshl_b32 s31, s37, 7\ns_add_u32 s32, s32, s31\ns_add_u32 s33, s32, 32768\ns_add_u32 s34, s32, 65536\ns_add_u32 s35, s32, 98304")
    e(f"s_mov_b32 s68, 128\ns_mov_b32 s69, {(128-1024) & 0xffffffff}\ns_lshl_b32 s14, s28, 21\ns_lshl_b32 s22, s28, 21")
    e("s_waitcnt lgkmcnt(0)\ns_mov_b32 s12, s40\ns_mov_b32 s13, s41\ns_mov_b32 s20, s40\ns_mov_b32 s21, s41\ns_branch B_OFFD")
    e.label("B_WOFF")
    e("v_and_b32 v17, 1, v17\nv_lshlrev_b32 v17, 1, v17\nv_xor_b32 v17, v16, v17\nv_mul_u32_u24 v12, 3584, v12\nv_lshl_add_u32 v4, v17, 4, v12\nv_xor_b32 v17, 4, v17\nv_lshl_add_u32 v8, v17, 4, v12")
    for i in range(1, 4): e(f"v_add_u32 v{4+i}, {8*3584*i - 1024*i}, v4\nv_add_u32 v{8+i}, {8*3584*i - 1024*i}, v8")
    e(f"s_lshl_b32 s32, s25, 7\ns_mul_i32 s31, s37, {64*3584}\ns_add_u32 s32, s32, s31\ns_add_u32 s33, s32, {32*3584}\ns_mov_b32 s34, s32\ns_mov_b32 s35, s33")
    e(f"s_mov_b32 s68, {64*3584}\ns_mov_b32 s69, {(64*3584-512*3584) & 0xffffffff}\ns_mul_i32 s14, s28, 0x1c0000\ns_mul_i32 s22, s28, 0x1c0000")
    e("s_waitcnt lgkmcnt(0)\ns_mov_b32 s12, s56\ns_mov_b32 s13, s57\ns_mov_b32 s20, s58\ns_mov_b32 s21, s59")
    e.label("B_OFFD")
    e("s_barrier")
    srd(e, 8, 66, WS_SIZE); srd(e, 16, 60, 0x1c0000)
    e("s_mov_b32 s38, 0xffff0000\nv_mov_b32 v54, 0")
    e("s_cmp_eq_u32 s29, 3\ns_cbranch_scc1 B_LN")
    e("s_cmp_eq_u32 s28, 1\ns_cbranch_scc1 B_LOAD")
    e("v_lshlrev_b32 v25, 10, v1\ns_lshr_b32 s31, s2, 3\ns_sub_u32 s31, s31, 28\ns_mul_i32 s31, s31, 458752\ns_lshl_b32 s30, s29, 17\ns_add_u32 s31, s31, s30")
    for i in range(2): e("buffer_load_dword v236, v25, s[16:19], s31 offen offset:384\ns_add_u32 s31, s31, 65536")
    e.label("B_LOAD")
    dma_stage(e); dma_stage(e)
    e("s_branch B_JOIN")
    e.label("B_LN")
    gen_ln(e)
    e.label("B_JOIN")
    srd(e, 4, 40, 0x200000)
    e("v_and_b32 v27, 255, v0")
    e("v_and_b32 v24, 3, v1\nv_lshl_add_u32 v24, v3, 2, v24\nv_bfe_u32 v25, v1, 3, 1\nv_lshl_add_u32 v25, v19, 1, v25\nv_lshlrev_b32 v25, 1, v25\nv_xor_b32 v24, v24, v25\nv_lshlrev_b32 v24, 4, v24")
    e(f"v_lshrrev_b32 v25, 2, v1\nv_lshl_add_u32 v24, v25, 7, v24\nv_lshl_add_u32 v24, v19, 13, v24\nv_add_u32 v24, 32768, v24\nv_add_u32 v26, {2*STG}, v24")
    e("v_and_b32 v20, 1, v1\nv_lshlrev_b32 v20, 4, v20\nv_mov_b32 v21, 0x3f80\nv_lshlrev_b32 v21, v20, v21\nv_bfe_u32 v22, v1, 1, 2")
    for j in range(4): e(f"v_cmp_eq_u32 vcc, {j}, v22\nv_cndmask_b32 v{16+j}, 0, v21, vcc")
    for i in range(4): e(f"v_mov_b32 v{20+i}, 0\nv_mov_b32 v{232+i}, 0")
    e("v_lshlrev_b32 v123, 10, v1\ns_lshr_b32 s70, s2, 3\ns_lshl_b32 s70, s70, 16")
    lab = [0]
    def stage(k, aux=lambda: None, work=lambda: None, fill=None):
        R, M = cs_groups(k)
        for r in R: e(r)
        if k + 2 < 8:
            lab[0] += 1; n = lab[0]
            e(f"s_cmp_eq_u32 s29, 3\ns_cbranch_scc1 B_AUX{n}")
            dma_stage(e)
            e(f"s_branch B_AJ{n}")
            e.label(f"B_AUX{n}")
            aux()
            e.label(f"B_AJ{n}")
        def w2():
            work()
            e("s_waitcnt lgkmcnt(0)")
            for m in M: e(m)
        merged(e, w2, fill or [])
    def endstage(k, n=16):
        lab[0] += 1
        e(f"s_cmp_eq_u32 s29, 3\ns_cbranch_scc1 B_NW{lab[0]}\ns_waitcnt vmcnt({n})")
        e.label(f"B_NW{lab[0]}")
        e("s_waitcnt lgkmcnt(0)\ns_barrier")
        if DIAG == 1: e.stamp(k + 1)
    pfl = [0, 1, 2, 4, 5, 6]
    def pf(n):
        for _ in range(n): e(f"buffer_load_dword v236, v123, s[16:19], s70 offen offset:{128*pfl.pop(0)}")
    if not DIAG: e.stamp(1)
    endstage(0)
    if not DIAG: e.stamp(2)
    if PRIO: e(f"s_setprio {PRIO}")
    chk2 = "v_cmp_ne_u64 vcc, v[112:113], v[126:127]\nv_cmp_ne_u64 s[74:75], v[114:115], v[126:127]\ns_or_b64 vcc, vcc, s[74:75]\nv_cmp_ne_u64 s[74:75], v[116:117], v[126:127]\ns_or_b64 vcc, vcc, s[74:75]\nv_cmp_ne_u64 s[74:75], v[118:119], v[126:127]\ns_or_b64 vcc, vcc, s[74:75]"
    lfl = f"s_mov_b32 s72, {WS_LNF}\nv_lshlrev_b32 v122, 4, v1\n" + "\n".join(f"buffer_load_dwordx2 v[{112+2*q}:{113+2*q}], v122, s[8:11], s72 offen offset:{1024*q} sc1" for q in range(4))
    def aux0(): gen_ln_store(e); e("global_load_dword v126, v54, s[64:65] sc1")
    def aux1():
        e("s_waitcnt vmcnt(0)\nv_cmp_eq_u32 vcc, 0, v126\ns_cbranch_vccz B_RDY_D")
        poll(e, "B_RDY", "global_load_dword v126, v54, s[64:65] sc1", "v_cmp_eq_u32 vcc, 0, v126")
        e(f"v_not_b32 v127, v126\ns_lshl_b32 s31, s2, 4\ns_add_u32 s31, s31, {WS_LNF}")
        e("s_mov_b64 exec, 1\nbuffer_store_dwordx2 v[126:127], v54, s[8:11], s31 offen sc1\ns_mov_b64 exec, -1")
        pf(PFS[2])
    def aux4(): e(lfl); pf(PFS[4])
    def aux5():
        e(f"s_waitcnt vmcnt({PFS[4]})\n" + chk2 + "\ns_cbranch_vccz B_LNF_D")
        poll(e, "B_LNF", lfl, chk2, sleep=16)
        e(f"v_mov_b32 v49, {LCNT}\nds_write_b64 v49, v[126:127] offset:32")
        pf(PFS[5])
    stage(0, aux0); endstage(1)
    stage(1, lambda: pf(PFS[1])); endstage(2)
    stage(2, aux1); endstage(3)
    stage(3, lambda: pf(PFS[3])); endstage(4)
    stage(4, aux4); endstage(5)
    def addr5():
        e("v_and_b32 v50, 127, v27\nv_lshlrev_b32 v51, 7, v27\nv_subrev_u32 v52, 120, v51\nv_max_i32 v52, 0, v52\nv_lshlrev_b32 v57, 3, v27")
        e(f"v_mul_u32_u24 v44, 2731, v27\nv_lshrrev_b32 v44, 16, v44\nv_mul_u32_u24 v49, 24, v44\nv_sub_u32 v49, v27, v49\nv_mul_u32_u24 v44, {UP}, v44\nv_lshl_add_u32 v44, v49, 4, v44")
        e(f"v_mul_u32_u24 v55, {KCH}, v3\nv_add_u32 v55, {KB}, v55\nv_lshl_add_u32 v45, v50, 3, v55\nv_lshlrev_b32 v46, 4, v27\nv_add_u32 v46, {UB}, v46")
        e(f"v_and_b32 v48, 3, v1\nv_lshl_add_u32 v48, v3, 2, v48\nv_lshlrev_b32 v48, 5, v48\nv_and_b32 v49, 1, v2\nv_lshl_add_u32 v48, v49, 8, v48\nv_bfe_u32 v49, v1, 4, 1\nv_lshl_add_u32 v48, v49, 4, v48\nv_add_u32 v48, {LCS}, v48")
        e(f"v_mov_b32 v49, {LCNT}\nv_mov_b32 v47, 1\nv_add_u32 v43, {LSTAT}, v57")
        e("v_lshrrev_b32 v40, 3, v1\nv_and_b32 v41, 7, v1\nv_bfe_u32 v42, v1, 4, 1\nv_lshlrev_b32 v42, 2, v42\nv_xor_b32 v41, v41, v42\nv_lshlrev_b32 v40, 10, v40\nv_lshl_add_u32 v40, v41, 4, v40\nv_add_u32 v41, 7168, v40")
        e("v_lshrrev_b32 v38, 5, v1\nv_bfe_u32 v39, v1, 2, 2\nv_lshl_add_u32 v38, v38, 2, v39\nv_lshlrev_b32 v38, 7, v38")
        e("v_lshrrev_b32 v39, 1, v39\nv_lshl_add_u32 v38, v39, 6, v38\nv_bfe_u32 v39, v1, 4, 1\nv_lshl_add_u32 v38, v39, 5, v38\nv_and_b32 v39, 3, v1\nv_lshl_add_u32 v38, v39, 3, v38\nv_xor_b32 v39, 64, v38")
    stage(5, aux5, addr5)
    if env('NTX', 4): e(f"s_xor_b32 s27, s27, {env('NTX', 4)}")
    e("s_mul_i32 s32, s29, 458752\ns_lshl_b32 s31, s27, 7\ns_add_u32 s32, s32, s31")
    NR = 20 - RING; nres_end = min(28, NR + 12); nstream = 28 - nres_end
    order = list(range(NR, NR + nstream)) + list(range(0, NR)) + list(range(NR + nstream, nres_end)) + list(range(nres_end, 28))
    phys = {i: p for p, i in enumerate(order)}
    e(f"s_mul_i32 s35, s29, 12288\ns_add_u32 s34, s35, {2*STG}")
    e("v_mov_b32 v4, v40\nv_mov_b32 v5, v41\nv_add_u32 v6, s34, v38\nv_add_u32 v7, s34, v39\nv_add_u32 v8, s35, v38\nv_add_u32 v9, s35, v39")
    if not XL: e(f"s_lshl_b32 s36, s77, 13\ns_add_u32 s36, s36, {WS_XN2}\ns_add_u32 s30, s36, 4096\ns_sub_u32 s71, s30, 24\ns_lshl_b32 s70, s24, 11")
    if XL: e(f"s_lshr_b32 s36, s77, 2\ns_lshl_b32 s36, s36, 15\ns_and_b32 s30, s77, 3\ns_lshl_b32 s30, s30, 5\ns_add_u32 s36, s36, s30\ns_add_u32 s36, s36, {WS_XN2}\ns_add_u32 s30, s36, 16384\ns_sub_u32 s71, s30, 120\ns_lshl_b32 s70, s24, 11")
    endstage(6)
    if not DIAG: e.stamp(3)
    wid = {}; slot_of = {}
    def w2txt(i, j):
        slot_of[i] = j
        wid[i] = vm.add('d', 2)
        return [f"s_add_u32 m0, {'s34' if j < 6 else 's35'}, {2048*(j%6)}\ns_add_u32 s33, s32, {16384*phys[i]}\nbuffer_load_dwordx4 v4, s[16:19], s33 offen lds",
                f"buffer_load_dwordx4 v5, s[16:19], s33 offen offset:1024 lds"]
    def w2dma(i, j):
        for t in w2txt(i, j): e(t)
    vm.reset()
    e("ds_read_b64 v[14:15], v49 offset:32")
    assert N6 == 0
    R6, M6 = cs_groups(6)
    for r in R6: e(r)
    e("s_cmp_eq_u32 s29, 3\ns_cbranch_scc1 B_K6\ns_waitcnt vmcnt(0)")
    e.label("B_K6")
    sid = vm.op(f"buffer_load_dwordx2 v[124:125], v57, s[8:11], s70 offen offset:{WS_STATS} sc1")
    vm.op("buffer_load_dwordx4 v[60:63], v51, s[8:11], s36 offen sc1"); vm.op("buffer_load_dwordx4 v[68:71], v51, s[8:11], s36 offen offset:16 sc1")
    e("s_mov_b64 exec, 1")
    vm.op("buffer_load_dwordx2 v[58:59], v52, s[8:11], s36 offen sc1"); uid = vm.op("buffer_load_dwordx2 v[66:67], v52, s[8:11], s36 offen offset:16 sc1")
    e("s_mov_b64 exec, -1")
    e("s_waitcnt lgkmcnt(0)")
    for m in M6: e(m)
    endstage(7, 63)
    ACC = 192; WT = [16, 24]; HR = 32
    def wreg(i): return 96 + 8 * i if i < 12 else 88 - 8 * (i - 12)
    def wread(j, dst):
        for dt in range(2):
            for jj in range(2):
                e(f"ds_read_b64_tr_b16 {vr(dst+4*dt+2*jj,2)}, v{(6 if j < 6 else 8)+dt} offset:{2048*(j%6)+1024*jj}")
    vm.wait(sid)
    e(f"ds_write_b64 v43, v[124:125]")
    def post7():
        e("v_cmp_eq_u32 vcc, 0, v27")
        for r in (58, 59, 66, 67):
            e(f"v_cndmask_b32 v{r}, v{r}, v232, vcc\nv_mov_b32_dpp v{r}, v{r+4} wave_shr:1 row_mask:0xf bank_mask:0xf")
        for h in range(2):
            Dd = 60 + 8 * h
            V1, V2, V3 = 200 + 12 * h, 204 + 12 * h, 208 + 12 * h
            for i in range(4):
                e(f"v_alignbit_b32 v{V1+i}, v{Dd+i}, v{Dd+i-1}, 16\nv_mov_b32 v{V2+i}, v{Dd+i-1}\nv_alignbit_b32 v{V3+i}, v{Dd+i-1}, v{Dd+i-2}, 16")
        e("v_cmp_gt_u32 s[68:69], 192, v27\nv_cmp_gt_u32 s[70:71], 15, v50".replace("192, v27", "s30, v27"))
    e("s_mov_b32 s30, 192")
    stage(7)
    for m in ("row_ror:4", "row_ror:8"):
        for i in range(4): e(f"v_add_f32_dpp v{20+i}, v{20+i}, v{20+i} {m} {DPP}")
    e("ds_write_b128 v48, v[20:23]")
    vm.wait(uid)
    merged(e, post7, sum([w2txt(i, i) for i in range(N6, N7)], []))
    e("s_waitcnt lgkmcnt(0)\ns_barrier")
    if DIAG == 1: e.stamp(9)
    if not DIAG: e.stamp(4)
    if DIAG == 4: e.stamp(1)
    for h in range(2):
        for delta, src in ((0, 60 + 8 * h), (1, 200 + 12 * h), (2, 204 + 12 * h), (3, 208 + 12 * h)):
            e(f"ds_write_b128 v46, {vr(src,4)} offset:{(3-delta)*UP + 384 + UCH*h}")
    e(f"s_mov_b64 exec, s[68:69]\nds_write_b128 v44, v[232:235] offset:{UB}")
    e(f"s_mov_b64 exec, s[70:71]\nds_write_b64 v45, v[232:233] offset:4096\nds_write_b64 v45, v[232:233] offset:{KS_OFF+4088}")
    e("s_mov_b64 exec, 1\nds_add_u32 v49, v47\ns_mov_b64 exec, -1")
    for i in range(N7, 12): w2dma(i, i)
    nd = [12]
    def refill(slots):
        for j in slots:
            if nd[0] < nres_end: w2dma(nd[0], j); nd[0] += 1
    vm.wait(wid[5])
    for i in range(6): wread(i, wreg(i))
    e("s_waitcnt lgkmcnt(0)")
    refill(range(6))
    vm.wait(wid[11])
    for i in range(6, 12): wread(i, wreg(i))
    e("s_waitcnt lgkmcnt(0)")
    refill(range(6, 12))
    if not DIAG: e.stamp(5)
    if PRIO: e("s_setprio 0")
    if NR > 12:
        vm.wait(wid[NR - 1], " lgkmcnt(0)")
        for i in range(12, NR): wread(slot_of[i], wreg(i))
        e("s_waitcnt lgkmcnt(0)")
        refill([slot_of[i] for i in range(12, NR)])
    if DIAG == 4: e.stamp(9)
    if not DIAG: e.stamp(6)
    e(f"v_lshrrev_b32 v10, 3, v1\nv_min_u32 v10, 6, v10\nv_lshlrev_b32 v10, 7, v10\ns_mul_i32 s31, s26, {28*128}\ns_mul_i32 s30, s29, {7*128}\ns_add_u32 s31, s31, s30\ns_add_u32 s31, s31, {WS_HF}")
    e(f"s_lshl_b32 s36, s26, 1\ns_mul_i32 s36, s36, 112\ns_mul_i32 s30, s29, 28\ns_add_u32 s36, s36, s30\ns_lshl_b32 s36, s36, 10\ns_add_u32 s36, s36, {WS_H}\ns_lshl_b32 s70, s27, 7\ns_add_u32 s70, s70, s36")
    srd(e, 20, 62, 0x200000)
    e(f"v_lshrrev_b32 v11, 1, v1\nv_lshlrev_b32 v11, 10, v11\nv_and_b32 v12, 1, v1\nv_mul_u32_u24 v12, {112*1024}, v12\nv_add_u32 v11, v11, v12")
    e("s_lshl_b32 s71, s26, 16\ns_lshl_b32 s30, s27, 7\ns_add_u32 s71, s71, s30\nv_bfe_u32 v12, v0, 2, 6\nv_lshlrev_b32 v12, 10, v12\nbuffer_load_dword v3, v12, s[4:7], s71 offen")
    e(f"s_mov_b32 s72, -1\ns_mov_b32 s73, 0xffffff\ns_mov_b32 s39, {SPIN}")
    e("s_waitcnt vmcnt(0)\ns_mov_b32 s33, s31\nv_mov_b32 v4, v10\nv_mov_b32 v5, v11\ns_mov_b64 s[74:75], 0")
    def need(j):
        w_, b_ = (72, 8 * j) if j < 4 else (73, 8 * j - 32)
        e(f"s_bitcmp0_b32 s{w_}, {b_}\ns_cbranch_scc1 B_HF_D{j}")
        e.label(f"B_HF_L{j}")
        e("buffer_load_dwordx2 v[12:13], v4, s[8:11], s33 offen sc1\ns_cmp_eq_u64 s[74:75], 0")
        e(f"s_cbranch_scc1 B_HF_W{j}\ns_mov_b64 exec, s[74:75]\nbuffer_load_dword v3, v5, s[8:11], s70 offen sc1\ns_mov_b64 exec, -1\ns_waitcnt vmcnt(1)\ns_branch B_HF_X{j}")
        e.label(f"B_HF_W{j}")
        e("s_waitcnt vmcnt(0)")
        e.label(f"B_HF_X{j}")
        e("v_cmp_eq_u64 vcc, v[12:13], v[14:15]\ns_and_b64 s[74:75], vcc, s[72:73]\ns_andn2_b64 s[72:73], s[72:73], vcc")
        e(f"s_bitcmp0_b32 s{w_}, {b_}\ns_cbranch_scc1 B_HF_E{j}")
        e(f"s_sub_u32 s39, s39, 1\ns_cbranch_scc1 B_HF_E{j}\ns_sleep {env('HSL', 1)}\ns_branch B_HF_L{j}")
        e.label(f"B_HF_E{j}")
        e(f"s_cmp_eq_u64 s[74:75], 0\ns_cbranch_scc1 B_HF_D{j}\ns_mov_b64 exec, s[74:75]\nbuffer_load_dword v3, v5, s[8:11], s70 offen sc1\ns_mov_b64 exec, -1\ns_mov_b64 s[74:75], 0")
        e.label(f"B_HF_D{j}")
    for j in range(NW0): need(j)
    if not DIAG: e.stamp(7)
    if DIAG == 3: e.stamp(1)
    vm.reset()
    e(f"v_lshlrev_b32 v10, 4, v1\nv_add_u32 v11, {112*1024}, v10")
    free = [HR + 8 * i for i in range(RING)]
    pfc = [0]
    def hpf():
        if pfc[0] * CH < 28:
            e(f"s_mov_b64 exec, {hex((1 << (2*CH)) - 1)}")
            vm.op(f"buffer_load_dword v12, v13, s[8:11], s70 offen sc1\ns_add_u32 s70, s70, {1024*CH}\ns_mov_b64 exec, -1")
            pfc[0] += 1
    hreg = {}; hid = {}; nxt = [0]
    def hload(maxn=99):
        n = 0
        while nxt[0] < 28 and free and n < maxn:
            n += 1
            i = order[nxt[0]]; nxt[0] += 1
            b = free.pop(0); hreg[i] = b
            if phys[i] % 4 == 0 and phys[i] // 4 >= NW0: need(phys[i] // 4)
            e(f"s_add_u32 s31, s36, {1024*phys[i]}")
            vm.op(f"buffer_load_dwordx4 {vr(b,4)}, v10, s[8:11], s31 offen sc1")
            hid[i] = vm.op(f"buffer_load_dwordx4 {vr(b+4,4)}, v11, s[8:11], s31 offen sc1")
    if HPF:
        e(f"v_lshrrev_b32 v13, 1, v1\nv_lshlrev_b32 v13, 10, v13\nv_and_b32 v12, 1, v1\nv_mul_u32_u24 v12, {112*1024}, v12\nv_add_u32 v13, v13, v12")
        for _ in range(HPF): hpf()
    hload()
    def is_lds(i): return i >= NR
    tcount = [0]; wt_of = {}
    def prefetch_w(pos):
        if pos < 28 and is_lds(order[pos]):
            i = order[pos]
            if i >= nres_end: vm.wait(wid[i])
            wt_of[i] = WT[tcount[0] % 2]; tcount[0] += 1
            wread(slot_of[i], wt_of[i])
    prefetch_w(0)
    streamed = nres_end
    fin = {}
    def at_loads(count):
        e(f"s_lshl_b32 s31, s27, 18\ns_lshl_b32 s30, s26, 7\ns_add_u32 s31, s31, s30\ns_add_u32 s31, s31, {WS_AT}")
        for j in range(4):
            t = f"buffer_load_dwordx2 {vr(fin['A']+2*j,2)}, v{fin['T']+3}, s[8:11], s31 offen sc1\ns_add_u32 s31, s31, 4096"
            if count: vm.op(t)
            else: e(t)
    AFPOS = env('AFPOS', 28 - RING - 1); ATPOS = 27
    for pos, i in enumerate(order):
        if is_lds(i):
            e("s_waitcnt lgkmcnt(0)")
            if streamed < 28:
                w2dma(streamed, slot_of[i]); streamed += 1
        prefetch_w(pos + 1)
        vm.wait(hid[i])
        if DIAG == 3 and pos in (0, 4, 8, 12, 16, 20, 24, 27): e.stamp(2 + (0, 4, 8, 12, 16, 20, 24, 27).index(pos))
        wb = wt_of[i] if is_lds(i) else wreg(i)
        b = hreg[i]
        for dt in range(2):
            for mi in range(2):
                a = ACC + 16 * (2 * dt + mi)
                e(f"v_mfma_f32_32x32x16_bf16 {vr(a,16)}, {vr(wb+4*dt,4)}, {vr(b+4*mi,4)}, {'0' if pos == 0 else vr(a,16)}")
        free.append(b)
        if not is_lds(i): free.append(wb)
        hload(PACE if pos % PACEM else PACE + 1)
        if pos == AFPOS:
            assert len(free) >= 4
            fin['X'] = free.pop(); fin['A'] = free.pop(); T = fin['T'] = free.pop(0)
            e(f"v_bfe_u32 v{T}, v0, 4, 4\nv_and_b32 v{T+1}, 15, v0\nv_lshlrev_b32 v{T+2}, 12, v{T}\nv_lshl_add_u32 v{T+2}, v{T+1}, 3, v{T+2}\nv_lshlrev_b32 v{T+3}, 14, v{T+1}\nv_lshl_add_u32 v{T+3}, v{T}, 3, v{T+3}\nv_lshrrev_b32 v{T+4}, 1, v1\nv_lshlrev_b32 v{T+4}, 7, v{T+4}\nv_and_b32 v{T+5}, 1, v1\nv_lshl_add_u32 v{T+4}, v{T+5}, 4, v{T+4}")
            e(f"s_lshl_b32 s37, s27, 12\ns_lshr_b32 s30, s26, 4\ns_lshl_b32 s30, s30, 3\ns_add_u32 s37, s37, s30\ns_add_u32 s37, s37, {WS_AF}")
            e("s_lshl_b32 s71, s26, 16\ns_lshl_b32 s30, s27, 7\ns_add_u32 s71, s71, s30")
            afid = vm.op(f"buffer_load_dwordx2 v[12:13], v{T+4}, s[8:11], s37 offen sc1")
            for r in range(4): vm.op(f"buffer_load_dwordx2 {vr(fin['X']+2*r,2)}, v{T+2}, s[4:7], s71 offen offset:{1024*r}")
        if pos == ATPOS:
            vm.wait(afid)
            e("v_cmp_ne_u64 s[68:69], v[12:13], v[14:15]")
            at_loads(True)
    if not DIAG: e.stamp(8)
    T = fin['T']
    e(f"v_and_b32 v3, 31, v1\nv_mul_u32_u24 v3, 272, v3\nv_lshrrev_b32 v8, 5, v1\nv_lshl_add_u32 v3, v8, 4, v3\nv_add_u32 v4, s34, v3\nv_add_u32 v3, s35, v3")
    for dt in range(2):
        for mi in range(2):
            a = ACC + 16 * (2 * dt + mi)
            for g in range(4):
                e(f"ds_write_b128 v{3+mi}, {vr(a+4*g,4)} offset:{dt*128 + g*32}")
    e("s_cmp_eq_u64 s[68:69], 0\ns_cbranch_scc1 B_AF_OK")
    poll(e, "B_AF", f"buffer_load_dwordx2 v[12:13], v{T+4}, s[8:11], s37 offen sc1", "v_cmp_ne_u64 vcc, v[12:13], v[14:15]", sleep=2)
    at_loads(False)
    e.label("B_AF_OK")
    e(f"v_and_b32 v3, 7, v{T}\nv_mul_u32_u24 v3, 1088, v3\nv_lshl_add_u32 v3, v{T+1}, 4, v3\nv_lshrrev_b32 v4, 3, v{T}\nv_mul_u32_u24 v4, {2*STG}, v4\nv_add_u32 v3, v3, v4")
    e("s_waitcnt lgkmcnt(0)\ns_barrier")
    Pp = 192
    XR = fin['X']; AR = fin['A']
    for i in range(4):
        for w in range(4):
            e(f"ds_read_b128 {vr(Pp+16*i+4*w,4)}, v3 offset:{272*i + 12288*w}")
    e("s_waitcnt vmcnt(0)")
    XA = 16
    for i in range(4):
        for j in range(4):
            xs = XR + 2 * i + (j >> 1); as_ = AR + 2 * j + (i >> 1)
            e(f"v_lshlrev_b32 v{4+j}, 16, v{xs}" if j % 2 == 0 else f"v_and_b32 v{4+j}, s38, v{xs}")
            e(f"v_lshlrev_b32 v{8+j}, 16, v{as_}" if i % 2 == 0 else f"v_and_b32 v{8+j}, s38, v{as_}")
        e("v_pk_add_f32 v[4:5], v[4:5], v[8:9]\nv_pk_add_f32 v[6:7], v[6:7], v[10:11]")
        e(f"v_cvt_pk_bf16_f32 v8, v4, v5\nv_cvt_pk_bf16_f32 v9, v6, v7")
        for j in range(4):
            e(f"v_lshlrev_b32 v{XA+4*i+j}, 16, v{8+(j>>1)}" if j % 2 == 0 else f"v_and_b32 v{XA+4*i+j}, s38, v{8+(j>>1)}")
    for i in range(4):
        b = Pp + 16 * i
        e(f"s_waitcnt lgkmcnt({12-4*i})")
        for h in range(2):
            e(f"v_pk_add_f32 {vr(b+2*h,2)}, {vr(b+2*h,2)}, {vr(b+4+2*h,2)}")
            e(f"v_pk_add_f32 {vr(b+8+2*h,2)}, {vr(b+8+2*h,2)}, {vr(b+12+2*h,2)}")
        for h in range(2):
            e(f"v_pk_add_f32 {vr(b+2*h,2)}, {vr(b+2*h,2)}, {vr(b+8+2*h,2)}")
        e(f"v_cvt_pk_bf16_f32 v{b+4}, v{b}, v{b+1}\nv_cvt_pk_bf16_f32 v{b+5}, v{b+2}, v{b+3}")
        for j in range(4):
            e(f"v_lshlrev_b32 v{b+8+j}, 16, v{b+4+(j>>1)}" if j % 2 == 0 else f"v_and_b32 v{b+8+j}, s38, v{b+4+(j>>1)}")
        for h in range(2):
            e(f"v_pk_add_f32 {vr(b+8+2*h,2)}, {vr(b+8+2*h,2)}, {vr(XA+4*i+2*h,2)}")
        e(f"v_cvt_pk_bf16_f32 v{b}, v{b+8}, v{b+9}\nv_cvt_pk_bf16_f32 v{b+1}, v{b+10}, v{b+11}")
        e(f"buffer_store_dwordx2 {vr(b,2)}, v{T+2}, s[20:23], s71 offen offset:{1024*i}")
    if not DIAG: e.stamp(9)
    e.stamp_out("PB", env("PBT", 256), 1, vt=100)
    if env('DBG', 0): e.stamp_dbg("DB", 256, 9, 1, [1, 2, 3, 4, 6, 7, 8, 9], vt=100)
    e("s_endpgm")

def gen_ln(e):
    X = 128; A = 160; M = 164; SQ = 166; T = 172
    e("s_mov_b32 s30, 0x3f803f80")
    for j in range(4): e(f"v_mov_b32 v{A+j}, 0\nv_mov_b32 v{SQ+j}, 0")
    e(f"v_lshrrev_b32 v180, 3, v1\nv_and_b32 v181, 7, v1\nv_mul_u32_u24 v182, 1088, v180\nv_lshl_add_u32 v182, v181, 4, v182\nv_add_u32 v182, {SPARE}, v182")
    e(f"v_bfe_u32 v183, v1, 2, 2\nv_mul_u32_u24 v183, 1088, v183\nv_lshrrev_b32 v184, 4, v1\nv_lshl_add_u32 v183, v184, 5, v183\nv_and_b32 v184, 3, v1\nv_lshl_add_u32 v183, v184, 3, v183\nv_add_u32 v183, {SPARE}, v183")
    for i in range(8):
        e(f"s_waitcnt vmcnt({7-i})")
        for j in range(4): e(f"v_dot2_f32_bf16 v{A+j}, v{X+4*i+j}, s30, v{A+j}")
    def red(r):
        e(f"v_add_f32 v{r}, v{r}, v{r+1}\nv_add_f32 v{r+2}, v{r+2}, v{r+3}\nv_add_f32 v{r}, v{r}, v{r+2}")
        for m in ("quad_perm:[1,0,3,2]", "quad_perm:[2,3,0,1]", "row_half_mirror"):
            e(f"v_add_f32_dpp v{r}, v{r}, v{r} {m} {DPP}")
    red(A)
    e(f"v_mul_f32 v{A}, {f32(1/512)}, v{A}\nv_cvt_pk_bf16_f32 v{M}, v{A}, v{A}\nv_lshlrev_b32 v{M}, 16, v{M}")
    for j0 in range(0, 32, 4):
        for j in range(j0, j0 + 4):
            t = T + 2 * (j % 4); e(f"v_lshlrev_b32 v{t}, 16, v{X+j}\nv_and_b32 v{t+1}, s38, v{X+j}")
        for j in range(j0, j0 + 4):
            t = T + 2 * (j % 4)
            if LNV & 2: e(f"v_sub_f32 v{t}, v{t}, v{M}\nv_sub_f32 v{t+1}, v{t+1}, v{M}")
            else: e(f"v_pk_add_f32 {vr(t,2)}, {vr(t,2)}, {vr(M,2)} op_sel_hi:[1,0] neg_lo:[0,1] neg_hi:[0,1]")
        for j in range(j0, j0 + 4):
            t = T + 2 * (j % 4); q = SQ + 2 * (j % 2)
            if LNV & 2: e(f"v_fmac_f32 v{q}, v{t}, v{t}\nv_fmac_f32 v{q+1}, v{t+1}, v{t+1}\nv_cvt_pk_bf16_f32 v{X+j}, v{t}, v{t+1}")
            else: e(f"v_pk_fma_f32 {vr(q,2)}, {vr(t,2)}, {vr(t,2)}, {vr(q,2)}\nv_cvt_pk_bf16_f32 v{X+j}, v{t}, v{t+1}")
    red(SQ)
    e(f"v_sub_f32 v{A+1}, v{A}, v{M}\nv_mul_f32 v{A+1}, v{A+1}, v{A+1}\nv_mul_f32 v{SQ}, {f32(1/512)}, v{SQ}\nv_sub_f32 v{SQ}, v{SQ}, v{A+1}\nv_max_f32 v{SQ}, 0, v{SQ}")
    rb(e, SQ); e(f"v_add_f32 v{SQ}, {f32(1e-5)}, v{SQ}"); rb(e, SQ); e(f"v_sqrt_f32 v{SQ}, v{SQ}"); rb(e, SQ)
    e(f"v_rcp_f32 v{M+1}, v{SQ}")
    for j0 in range(0, 32, 4):
        for j in range(j0, j0 + 4):
            t = T + 2 * (j % 4); e(f"v_lshlrev_b32 v{t}, 16, v{X+j}\nv_and_b32 v{t+1}, s38, v{X+j}")
        for j in range(j0, j0 + 4):
            t = T + 2 * (j % 4)
            if LNV & 1: e(f"v_mul_f32 v{t}, v{t}, v{M+1}\nv_mul_f32 v{t+1}, v{t+1}, v{M+1}")
            else: e(f"v_pk_mul_f32 {vr(t,2)}, {vr(M,2)}, {vr(t,2)} op_sel:[1,0] op_sel_hi:[1,1]")
        for j in range(j0, j0 + 4):
            t = T + 2 * (j % 4); e(f"v_cvt_pk_bf16_f32 v{X+j}, v{t}, v{t+1}")
        if LNV & 8: e("s_nop 3")
        e(f"ds_write_b128 v182, {vr(X+j0,4)} offset:{32*j0}")
    if LNV & 4: e("s_waitcnt lgkmcnt(0)")
    for q in range(8):
        for j in range(2): e(f"ds_read_b64_tr_b16 {vr(X+4*q+2*j,2)}, v183 offset:{4352*j+128*q}")

def gen_ln_store(e):
    X = 128; M = 164
    e("v_lshrrev_b32 v180, 3, v1\nv_and_b32 v181, 7, v1")
    if XL: e("v_lshlrev_b32 v184, 15, v180\nv_lshl_add_u32 v184, v181, 4, v184\nv_lshlrev_b32 v185, 3, v180")
    else: e("v_lshrrev_b32 v184, 1, v1\nv_lshlrev_b32 v184, 13, v184\nv_and_b32 v185, 1, v1\nv_lshl_add_u32 v184, v185, 4, v184\nv_lshlrev_b32 v185, 3, v180")
    e(f"s_lshl_b32 s31, s2, 6\nv_cmp_eq_u32 vcc, 0, v181\ns_and_saveexec_b64 s[74:75], vcc")
    e(f"buffer_store_dwordx2 {vr(M,2)}, v185, s[8:11], s31 offen offset:{WS_STATS} sc1\ns_mov_b64 exec, s[74:75]")
    e(f"s_lshl_b32 s31, s2, {7 if XL else 5}\ns_add_u32 s31, s31, {WS_XN2}")
    for q in range(8):
        e(f"buffer_store_dwordx4 {vr(X+4*q,4)}, v184, s[8:11], s31 offen sc1\ns_add_u32 s31, s31, {32*8192}")

TA = 96; RA = 112
def gen_kaddr(e):
    e(f"v_lshlrev_b32 v48, 2, v1\nv_lshlrev_b32 v49, 12, v2\nv_add_u32 v49, {KTAB}, v49\nv_add_u32 v48, v48, v49")
    for r in range(8): e(f"v_xor_b32 v{TA+r}, {r<<5}, v48")
    T0 = [0,1,2,3,4,5,6,7,8,8,9,10,10,10,11,12]; T1 = [0,0,0,1,1,1,2,2,3,3,3,4,4,4,5,5]
    T2 = [6 + 2 * (i >> 2) + (i & 1) for i in range(16)]
    def pack4(L): return sum(v << (4 * i) for i, v in enumerate(L))
    e("v_and_b32 v50, 15, v1\nv_lshrrev_b32 v51, 4, v1\nv_and_b32 v52, 7, v50\nv_lshlrev_b32 v52, 2, v52\nv_cmp_lt_u32 vcc, 7, v50")
    e(f"v_mov_b32 v{RA}, v50")
    for x, T in ((1, T0), (2, T1), (3, T2)):
        e(f"v_mov_b32 v53, {hex(pack4(T[:8]))}\nv_mov_b32 v54, {hex(pack4(T[8:]))}\nv_cndmask_b32 v53, v53, v54, vcc\nv_lshrrev_b32 v53, v52, v53\nv_and_b32 v{RA+x}, 15, v53")
    for x in range(4):
        e(f"v_and_b32 v53, 14, v{RA+x}\nv_xor_b32 v53, v51, v53\nv_lshlrev_b32 v53, 4, v53\nv_lshl_add_u32 v53, v{RA+x}, 8, v53\nv_add_u32 v{RA+x}, v53, v49")
        for q in range(1, 4): e(f"v_xor_b32 v{RA+4+3*x+q-1}, {q<<6}, v{RA+x}")

def gen_kgen(e):
    P = 40
    for r in range(P, P + 7): e(f"v_lshlrev_b32 v{r}, 16, v{r}")
    def exp_bf(dst, src, t1, t2):
        e(f"v_mul_f32 v{t1}, {f32(L2E_HI)}, v{src}")
        e(f"s_mov_b32 s30, {f32(L2E_HI)}\nv_fma_f32 v{t2}, v{src}, s30, -v{t1}\nv_fmac_f32 v{t2}, {f32(L2E_LO)}, v{src}")
        e(f"v_exp_f32 v{t1}, v{t1}\nv_mul_f32 v{t2}, {f32(LN2)}, v{t2}\nv_fma_f32 v{dst}, v{t1}, v{t2}, v{t1}")
        rb(e, dst)
    exp_bf(46, 46, 48, 49); exp_bf(40, 40, 50, 51)
    e("v_mul_f32 v40, v40, v46\nv_mul_f32 v41, v41, v46")
    e("v_max_f32 v48, abs(v42), abs(v43)\nv_max3_f32 v48, abs(v44), abs(v45), v48")
    for m in ("quad_perm:[1,0,3,2]", "quad_perm:[2,3,0,1]", "row_ror:4", "row_ror:8"):
        e(f"v_max_f32_dpp v48, v48, v48 {m} {DPP}")
    e("v_readlane_b32 s30, v48, 0\nv_readlane_b32 s31, v48, 16\nv_readlane_b32 s71, v48, 32\nv_readlane_b32 s72, v48, 48")
    e("s_max_u32 s30, s30, s31\ns_max_u32 s71, s71, s72\ns_max_u32 s30, s30, s71\ns_and_b32 s30, s30, 0x7f800000\ns_sub_u32 s31, 0x7f000000, s30")
    e("v_mul_f32 v42, s31, v42\nv_mul_f32 v43, s31, v43")
    e("v_mul_f32 v46, s30, v46\nv_add_f32 v46, v46, v46")
    W1, W8, W256, W2_, W4, W16 = 56, 58, 60, 62, 64, 66
    def wexp(dst, p, t):
        e(f"v_mul_f32 v{t}, {f32(-L2E_HI*p)}, v40\nv_exp_f32 v{t}, v{t}")
        e(f"v_mul_f32 v{t+1}, {f32(float(p))}, v41")
        e(f"v_mul_f32 v{t+2}, {f32(I2PI_HI)}, v{t+1}\ns_mov_b32 s30, {f32(I2PI_HI)}\nv_fma_f32 v{t+3}, v{t+1}, s30, -v{t+2}\nv_fmac_f32 v{t+3}, {f32(I2PI_LO)}, v{t+1}")
        e(f"v_fract_f32 v{t+2}, v{t+2}\nv_add_f32 v{t+2}, v{t+2}, v{t+3}")
        e(f"v_cos_f32 v{dst}, v{t+2}\nv_sin_f32 v{dst+1}, v{t+2}")
        e(f"v_mul_f32 v{dst}, v{dst}, v{t}\nv_mul_f32 v{dst+1}, v{dst+1}, v{t}")
    C0 = 42
    old = e.lines; parts = []
    for dst, p, t in ((W8, 8, 48), (W256, 256, 52), (W1, 1, 68)):
        e.lines = []; wexp(dst, p, t); parts.append(e.lines)
    e.lines = old
    for i in range(len(parts[0])):
        for P_ in parts: e.lines.append(P_[i])
    def cm1(d, a, b): return f"v_pk_mul_f32 {vr(d,2)}, {vr(a,2)}, {vr(b,2)} op_sel_hi:[1,0]"
    def cm2(d, a, b): return f"v_pk_fma_f32 {vr(d,2)}, {vr(a,2)}, {vr(b,2)}, {vr(d,2)} op_sel:[1,1,0] op_sel_hi:[0,1,1] neg_lo:[1,0,0]"
    RF = 128; LF = 160; D = 208
    W24, W32, W512 = 68, 70, 72
    Lr = {i: 160 + 2 * i for i in range(27)}; Lr[0] = C0
    PR = 216; PL = 128
    ONE = 74
    e(f"v_mov_b32 v{ONE}, 1.0\nv_mov_b32 v{ONE+1}, 0")
    Rr = {0: ONE, 1: W8, 2: W16, 3: W24}
    for b in range(4, 32): Rr[b] = 76 + 4 * (b % 4) + 2 * ((b // 4) % 2)
    Rr[4] = W32
    G = {1: 8, 2: 13, 3: 16, 4: 19, 5: 21, 6: 23, 7: 25}
    groups = [
        [(W16, W8, W8, ('R', 2)), (Lr[8], C0, W256, ('L', 8)), (W2_, W1, W1, None), (W512, W256, W256, None), (Lr[1], C0, W1, ('L', 1))],
        [(W32, W16, W16, ('R', 4)), (W24, W16, W8, ('R', 3)), (W4, W2_, W2_, None), (Lr[13], Lr[8], W256, ('L', 13)), (Lr[16], Lr[8], W512, ('L', 16)), (Lr[2], C0, W2_, ('L', 2))],
    ]
    rest = [(Lr[19], Lr[13], W512, ('L', 19)), (Lr[21], Lr[16], W512, ('L', 21)), (Lr[3], Lr[1], W2_, ('L', 3)),
            (Lr[4], C0, W4, ('L', 4)), (Lr[5], Lr[1], W4, ('L', 5)), (Lr[6], Lr[2], W4, ('L', 6)),
            (Lr[23], Lr[19], W512, ('L', 23)), (Lr[25], Lr[21], W512, ('L', 25)), (Lr[7], Lr[3], W4, ('L', 7)),
            (Lr[9], Lr[8], W2_, ('L', 9)), (Lr[10], Lr[8], W4, ('L', 10)), (Lr[12], Lr[8], W8, ('L', 12)),
            (Lr[11], Lr[9], W4, ('L', 11)), (Lr[14], Lr[13], W4, ('L', 14)), (Lr[15], Lr[13], W8, ('L', 15)),
            (Lr[17], Lr[16], W4, ('L', 17)), (Lr[18], Lr[16], W8, ('L', 18)), (Lr[20], Lr[19], W8, ('L', 20)),
            (Lr[22], Lr[21], W8, ('L', 22)), (Lr[24], Lr[23], W8, ('L', 24)), (Lr[26], Lr[25], W8, ('L', 26))]
    for j in range(7):
        g = [(Rr[b], Rr[b - 4], W32, ('R', b)) for b in range(4 * j + 4, 4 * j + 8) if b != 4]
        g += rest[3 * j:3 * j + 3]
        groups.append(g)
    done = set()
    def cvt(tag):
        kind, i = tag
        src = Rr[i] if kind == 'R' else Lr[i]; dst = (PR if kind == 'R' else PL) + i
        e(f"v_cvt_pk_f16_f32 v{dst}, v{src}, {'-' if kind == 'L' else ''}v{src+1}"); done.add(tag)
    def fragread(x, dst):
        for q in range(4): e(f"ds_read_b128 {vr(dst+4*q,4)}, v{RA+x if q == 0 else RA+4+3*x+q-1}")
    Q = []
    def wr(kind, base, n, first):
        for r in range(0, n, 2):
            p = (PR if kind == 'R' else PL) + first + r
            if r + 1 < n: Q.append(({(kind, first + r), (kind, first + r + 1)}, f"ds_write2st64_b32 v{TA+r//2}, v{p}, v{p+1} offset0:{r} offset1:{r+1}"))
            else: Q.append(({(kind, first + r)}, f"ds_write_b32 v{TA+r//2}, v{p} offset:{256*r}"))
    RFa, RFb = 32, 92
    wr('R', 0, 16, 0); Q.append((set(), ('fr', 0, 0)))
    wr('R', 0, 16, 16); Q.append((set(), ('fr', 0, 1)))
    wr('L', 0, 13, 0); Q.append((set(), ('fr', 1, 2)))
    wr('L', 0, 14, 13); Q.append((set(), ('fr', 2, 3))); Q.append((set(), ('fr', 3, 4)))
    FD = {0: 216, 1: 232, 2: 160, 3: 176, 4: 192}
    allc = {('L', i) for i in range(27)}
    def drain(maxn=99):
        n = 0
        while Q and n < maxn:
            needs, t = Q[0]
            if isinstance(t, tuple):
                if t[2] >= 2 and not allc <= done: break
                fragread(t[1], FD[t[2]])
            else:
                if not needs <= done: break
                e(t)
            Q.pop(0); n += 1
    for tag in (('R', 0), ('R', 1), ('L', 0)): cvt(tag)
    prev = []
    for g in groups:
        for (d, a, b, tag) in g: e(cm1(d, a, b))
        for tag in prev: cvt(tag)
        drain(3)
        for (d, a, b, tag) in g: e(cm2(d, a, b))
        prev = [tag for (_, _, _, tag) in g if tag]
    for tag in prev: cvt(tag)
    drain()
    assert not Q
    DD = KD
    def kmfma(ti):
        for q in range(4):
            for ct in range(2):
                d = DD + 8 * ti + 4 * ct
                e(f"v_mfma_f32_16x16x32_f16 {vr(d,4)}, {vr(FD[2+ti]+4*q,4)}, {vr(FD[ct]+4*q,4)}, {'0' if q == 0 else vr(d,4)}")
    e("v_mov_b32 v31, v46\ns_waitcnt lgkmcnt(15)")
    kmfma(0)
    e("s_waitcnt lgkmcnt(4)")
    kmfma(1)
    e("s_waitcnt lgkmcnt(0)")
    kmfma(2)

KD = 64
def gen_kfin(e):
    D = KD
    e(f"v_mul_u32_u24 v8, 3072, v2\nv_lshl_add_u32 v8, v1, 4, v8\nv_add_u32 v8, {KX}, v8\nv_xor_b32 v9, 1, v2\nv_mul_u32_u24 v9, 3072, v9\nv_lshl_add_u32 v9, v1, 4, v9\nv_add_u32 v9, {KX}, v9")
    e(f"v_lshlrev_b32 v10, 2, v2\nv_add_u32 v10, {LCNT+16}, v10\nv_xor_b32 v11, 4, v10\nv_mov_b32 v12, 1")
    e("s_and_b32 s30, s29, 1\ns_cmp_eq_u32 s30, 1\ns_nop 7\ns_cbranch_scc1 A_KX1")
    for ti in range(3): e(f"ds_write_b128 v8, {vr(D+8*ti+4,4)} offset:{1024*ti}")
    e("s_branch A_KXD")
    e.label("A_KX1")
    for ti in range(3): e(f"ds_write_b128 v8, {vr(D+8*ti,4)} offset:{1024*ti}")
    for ti in range(3):
        for q in range(4 if ti < 2 else 2): e(f"v_mov_b32 v{D+8*ti+q}, v{D+8*ti+4+q}")
    e.label("A_KXD")
    e("ds_write_b32 v10, v12")
    e("v_and_b32 v48, 15, v1\nv_lshrrev_b32 v49, 4, v1\nv_and_b32 v52, 1, v2\nv_lshl_add_u32 v52, v52, 4, v48")
    e(f"v_and_b32 v53, 1, v49\nv_lshlrev_b32 v53, 2, v53\nv_lshl_add_u32 v53, v52, 3, v53\nv_lshrrev_b32 v56, 1, v49\nv_lshl_add_u32 v53, v56, 8, v53")
    e(f"v_lshlrev_b32 v53, 1, v53\nv_mul_u32_u24 v55, {KCH}, v28\nv_add_u32 v55, {KB}, v55\nv_sub_u32 v53, v55, v53\nv_add_u32 v53, {2*(2040-512)}, v53")
    e(f"v_lshlrev_b32 v56, 3, v52\nv_lshl_add_u32 v56, v49, 8, v56\nv_lshlrev_b32 v56, 1, v56\nv_sub_u32 v56, v55, v56\nv_add_u32 v56, {2*(2040-1024)}, v56")
    lds_poll(e, "A_KXP", "v11", 0, 1, 7)
    for ti in range(3): e(f"ds_read_b128 {vr(D+8*ti+4,4)}, v9 offset:{1024*ti}")
    e("s_waitcnt lgkmcnt(0)")
    for ti in range(3):
        for q in range(4 if ti < 2 else 2): e(f"v_add_f32 v{D+8*ti+q}, v{D+8*ti+q}, v{D+8*ti+4+q}\nv_mul_f32 v{D+8*ti+q}, v31, v{D+8*ti+q}")
    for ti in range(2):
        d = D + 8 * ti; o = KP + 2 * ti
        e(f"v_cvt_pk_bf16_f32 v{o}, v{d+3}, v{d+2}\nv_cvt_pk_bf16_f32 v{o+1}, v{d+1}, v{d}")
    f0, f8 = D + 16, D + 17
    e(f"v_and_b32 v57, 1, v52\nv_cmp_eq_u32 vcc, 1, v57\nv_cndmask_b32 v57, v{f0}, v{f8}, vcc")
    e(f"v_cvt_pk_bf16_f32 v{KP+4}, v{f8}, v{f8}\nv_cvt_pk_bf16_f32 v{KP+5}, v{f8}, v57\nv_cvt_pk_bf16_f32 v{KP+6}, v{f0}, v{f0}\nv_mov_b32 v{KP+7}, v{KP+6}")
    e(f"v_mov_b32 v{KP+8}, v53\nv_mov_b32 v{KP+9}, v56")

KP = 112
def gen_kwrite(e):
    for ti in range(2):
        o = KP + 2 * ti; off = 1024 if ti == 0 else 0
        e(f"ds_write_b64 v{KP+8}, {vr(o,2)} offset:{off+8}\nds_write_b64 v{KP+8}, {vr(o,2)} offset:{off+KS_OFF}")
    e(f"ds_write_b128 v{KP+9}, {vr(KP+4,4)}\nds_write_b64 v{KP+9}, {vr(KP+4,2)} offset:{KS_OFF-8}\nds_write_b64 v{KP+9}, {vr(KP+6,2)} offset:{KS_OFF}")
    e(f"v_mov_b32 v6, {LCNT}\nv_mov_b32 v12, 1\ns_mov_b64 exec, 1\nds_add_u32 v6, v12\ns_mov_b64 exec, -1")

def gen_A(e):
    srd(e, 8, 66, WS_SIZE)
    e("s_mov_b32 s38, 0xffff0000")
    e("s_cmp_lg_u32 s2, 255\ns_cbranch_scc1 A_NOZ\ns_cmp_lg_u32 s3, 0\ns_cbranch_scc1 A_NOZ")
    e(f"v_mov_b32 v3, 0\ns_mov_b32 s31, {WS_EPW}\nbuffer_load_dword v4, v3, s[8:11], s31 offen sc1\ns_waitcnt vmcnt(0)")
    e("v_add_u32 v4, 1, v4\nv_max_u32 v4, 1, v4\nv_cmp_eq_u32 vcc, 0, v1\ns_and_saveexec_b64 s[74:75], vcc")
    e("global_store_dword v3, v4, s[64:65] sc1\nbuffer_store_dword v4, v3, s[8:11], s31 offen sc1\ns_mov_b64 exec, s[74:75]\ns_waitcnt vmcnt(0)")
    e.label("A_NOZ")
    e("v_bfe_u32 v3, v1, 4, 1\nv_lshrrev_b32 v12, 5, v1\nv_bfe_u32 v13, v1, 2, 2\nv_and_b32 v15, 3, v1")
    e("v_lshl_add_u32 v12, v12, 3, v13\nv_lshlrev_b32 v12, 7, v12\nv_lshl_add_u32 v12, v3, 13, v12\nv_lshl_add_u32 v12, v15, 3, v12\nv_add_u32 v12, 32768, v12")
    e("v_lshrrev_b32 v13, 1, v13\nv_lshl_add_u32 v13, v3, 1, v13\nv_lshl_add_u32 v20, v13, 5, v12")
    for t in range(1, 4): e(f"v_xor_b32 v{20+t}, {t<<5}, v20")
    e("v_and_b32 v3, 31, v1\nv_lshrrev_b32 v12, 5, v1\nv_bfe_u32 v13, v3, 1, 3\nv_xor_b32 v13, v12, v13")
    e("v_lshl_add_u32 v3, v2, 6, v3\nv_lshlrev_b32 v3, 7, v3\nv_lshl_add_u32 v24, v13, 4, v3")
    for s in range(1, 4): e(f"v_xor_b32 v{24+s}, {s<<5}, v24")
    gen_kaddr(e)
    e(f"v_and_b32 v18, 31, v1\nv_lshl_add_u32 v18, v2, 6, v18\nv_lshlrev_b32 v18, 3, v18\nv_add_u32 v18, {LSTAT}, v18\nv_mov_b32 v19, {LCNT}")
    e.stamp(1)
    e("s_waitcnt vmcnt(1)")
    e.stamp(2)
    gen_kgen(e)
    gen_kfin(e)
    e("s_waitcnt vmcnt(0) lgkmcnt(0)")
    e.stamp(3)
    ACC = 128
    FA = [32, 56]
    e("s_cmp_eq_u32 s28, 1\ns_cbranch_scc1 A_G1")
    for i in range(3): e("s_barrier")
    srd(e, 16, 60, 0x1c0000)
    e("v_lshlrev_b32 v3, 10, v1\ns_lshr_b32 s31, s2, 3\ns_sub_u32 s31, s31, 28\ns_mul_i32 s31, s31, 458752\ns_add_u32 s32, s31, 393216\ns_lshl_b32 s30, s29, 17\ns_add_u32 s31, s31, s30\ns_add_u32 s33, s31, 65536")
    e("s_cmp_eq_u32 s29, 3\ns_cselect_b32 s34, 512, 0\ns_cselect_b32 s33, s32, s33\ns_sub_u32 s33, s33, s34")
    e("buffer_load_dword v15, v3, s[16:19], s33 offen offset:896\nbuffer_load_dword v15, v3, s[16:19], s31 offen offset:896")
    for i in range(6): e("s_barrier")
    e("s_waitcnt vmcnt(0)")
    e("ds_read_b64 v[16:17], v19 offset:32")
    gen_kwrite(e)
    e("s_branch A_CONV")
    e.label("A_G1")
    def reads(buf, s):
        L = []
        for mi in range(2): L.append(f"ds_read_b128 {vr(FA[buf]+16+4*mi,4)}, v{24+s} offset:{4096*mi}")
        for t in range(4):
            for j in range(2): L.append(f"ds_read_b64_tr_b16 {vr(FA[buf]+4*t+2*j,2)}, v{20+t} offset:{2048*s+512*j}")
        return L
    def mfmas(buf, zero=False):
        return [f"v_mfma_f32_32x32x16_bf16 {vr(ACC+16*(2*t+mi),16)}, {vr(FA[buf]+4*t,4)}, {vr(FA[buf]+16+4*mi,4)}, {'0' if zero else vr(ACC+16*(2*t+mi),16)}" for t in range(4) for mi in range(2)]
    def interleave(M, F, per=2):
        k = 0; n = len(F)
        for i, m in enumerate(M):
            e(m)
            cnt = -(-(n - k) // (len(M) - i)) if n - k > per * (len(M) - i) else min(per, n - k)
            for _ in range(cnt): e(F[k]); k += 1
        assert k == n
    e(f"s_mov_b32 s37, 0\ns_mov_b32 s36, 0\ns_mov_b32 s38, {STG}")
    e("s_barrier")
    e.stamp(4)
    for r in reads(0, 0): e(r)
    e("s_waitcnt lgkmcnt(0)")
    interleave(mfmas(0, True), reads(1, 1))
    e("s_branch A_K1")
    e.label("A_LOOP")
    for s in range(3):
        if s == 1: e.label("A_K1")
        e("s_waitcnt lgkmcnt(0)")
        F = reads((s + 1) % 2, s + 1)
        if s == 2:
            F = F + [f"s_cmp_eq_u32 s36, {2*STG}\ns_cselect_b32 s39, {(-2*STG) & 0xffffffff}, s38"] + [f"v_add_u32 v{20+i}, s39, v{20+i}\nv_add_u32 v{21+i}, s39, v{21+i}" for i in range(0, 8, 2)]
        interleave(mfmas(s % 2), F)
    e("s_waitcnt lgkmcnt(0)\ns_barrier")
    interleave(mfmas(1), reads(0, 0) + ["s_add_u32 s36, s36, s39\ns_add_u32 s37, s37, 1\ns_cmp_lt_u32 s37, 8"])
    e("s_cbranch_scc1 A_LOOP")
    e.stamp(5)
    if APRIO: e(f"s_setprio {APRIO}")
    e(f"v_lshrrev_b32 v12, 5, v1\nv_lshlrev_b32 v12, 4, v12\nv_add_u32 v12, {LCS}, v12")
    e("s_waitcnt lgkmcnt(0)")
    CS = 32
    e("ds_read_b64 v[4:5], v18\nds_read_b64 v[6:7], v18 offset:256\nds_read_b64 v[16:17], v19 offset:32")
    for t in range(4):
        for g in range(2):
            e(f"ds_read_b128 {vr(CS+16*t+4*g,4)}, v12 offset:{64*t+32*g}")
            e(f"ds_read_b128 {vr(CS+16*t+8+4*g,4)}, v12 offset:{256+64*t+32*g}")
    e(f"s_lshl_b32 s31, s24, 3\ns_lshl_b32 s30, s29, 1\ns_add_u32 s31, s31, s30\ns_mul_i32 s31, s31, 112\ns_lshl_b32 s30, s25, 2\ns_add_u32 s31, s31, s30\ns_lshl_b32 s31, s31, 10\ns_add_u32 s31, s31, {WS_H}\ns_add_u32 s30, s31, {112*1024}")
    e("v_lshlrev_b32 v3, 4, v1")
    e("s_waitcnt lgkmcnt(0)")
    for mi in range(2):
        b = 8 + 4 * mi; s = 4 + 2 * mi
        e(f"v_sub_f32 v{b}, 0, v{s}\nv_mul_f32 v{b+1}, {f32(-LOG2E)}, v{s+1}\nv_mul_f32 v{b+2}, v{s+1}, v{s+1}\nv_rcp_f32 v{b+2}, v{b+2}")
    TM = 96
    for t in range(4):
        for mi in range(2):
            a = ACC + 16 * (2 * t + mi); b = 8 + 4 * mi
            o = a + 8
            for p in range(4):
                G = a + 2 * p; U = a + 8 + 2 * p; cg = CS + 16 * t + 2 * p; cu = CS + 16 * t + 8 + 2 * p
                z = TM + 2 * p
                e(f"v_pk_fma_f32 {vr(G,2)}, {vr(cg,2)}, {vr(b,2)}, {vr(G,2)} op_sel_hi:[1,0,1]")
                e(f"v_pk_fma_f32 {vr(U,2)}, {vr(cu,2)}, {vr(b,2)}, {vr(U,2)} op_sel_hi:[1,0,1]")
                e(f"v_pk_mul_f32 {vr(z,2)}, {vr(b,2)}, {vr(G,2)} op_sel:[1,0] op_sel_hi:[1,1]")
            for p in range(4):
                z = TM + 2 * p
                e(f"v_exp_f32 v{z}, v{z}\nv_exp_f32 v{z+1}, v{z+1}")
            for p in range(4):
                G = a + 2 * p; U = a + 8 + 2 * p; z = TM + 2 * p
                e(f"v_pk_mul_f32 {vr(G,2)}, {vr(G,2)}, {vr(U,2)}")
                e(f"v_pk_fma_f32 {vr(z,2)}, {vr(z,2)}, {vr(b+2,2)}, {vr(b+2,2)} op_sel_hi:[1,0,0]")
            for p in range(4):
                z = TM + 2 * p
                e(f"v_rcp_f32 v{z}, v{z}\nv_rcp_f32 v{z+1}, v{z+1}")
            for p in range(4):
                G = a + 2 * p; z = TM + 2 * p
                e(f"v_pk_mul_f32 {vr(G,2)}, {vr(G,2)}, {vr(z,2)}")
            for p in range(4):
                G = a + 2 * p
                e(f"v_cvt_pk_bf16_f32 v{o+p}, v{G}, v{G+1}")
            e(f"buffer_store_dwordx4 {vr(o,4)}, v3, s[8:11], {'s31' if mi == 0 else 's30'} offen offset:{1024*t} sc1")
    e.stamp(6)
    gen_kwrite(e)
    e(f"s_lshl_b32 s31, s24, 2\ns_add_u32 s31, s31, s29\ns_mul_i32 s31, s31, 28\ns_add_u32 s31, s31, s25\ns_lshl_b32 s31, s31, 7\ns_add_u32 s31, s31, {WS_HF}")
    e("s_mov_b32 s35, s31")
    if APRIO: e("s_setprio 0")
    e.label("A_CONV")
    e("v_and_b32 v24, 15, v1\nv_lshrrev_b32 v25, 4, v1")
    e(f"v_and_b32 v26, 3, v24\nv_mul_u32_u24 v26, {UP}, v26\nv_lshrrev_b32 v27, 2, v24\nv_lshl_add_u32 v26, v27, 7, v26\nv_lshl_add_u32 v26, v25, 4, v26")
    e(f"v_mul_u32_u24 v27, {UCH}, v28\nv_add_u32 v26, v26, v27\nv_and_b32 v31, 1, v2\nv_lshl_add_u32 v26, v31, 8, v26\nv_add_u32 v26, {UB}, v26")
    e(f"v_mul_u32_u24 v5, {KCH}, v28\nv_add_u32 v5, {KB}, v5")
    e(f"v_lshrrev_b32 v27, 1, v24\nv_sub_u32 v27, v25, v27\nv_add_u32 v27, 7, v27\nv_lshl_add_u32 v27, v27, 4, v5\nv_lshl_add_u32 v27, v31, 8, v27")
    e(f"v_and_b32 v29, 1, v24\nv_xor_b32 v29, 1, v29\nv_mul_u32_u24 v29, {KS_OFF}, v29\nv_add_u32 v27, v27, v29")
    e(f"v_mov_b32 v6, {LCNT}")
    lds_poll(e, "A_KU", "v6", 0, 8, 7)
    CA = 200
    FU = [32, 96]
    def creads(buf, s):
        L = []
        for p in range(8):
            L.append(f"ds_read_b128 {vr(FU[buf]+32+4*p,4)}, v27 offset:{512*(7-p)+64*s}")
            L.append(f"ds_read_b128 {vr(FU[buf]+4*p,4)}, v26 offset:{512*p+64*s}")
        return L
    for r in creads(0, 0): e(r)
    for s in range(4):
        if s == HFS:
            e("s_cmp_eq_u32 s28, 0\ns_cbranch_scc1 A_NOHF\nv_mov_b32 v3, 0\ns_waitcnt vmcnt(0)\ns_mov_b64 exec, 1\nbuffer_store_dwordx2 v[16:17], v3, s[8:11], s35 offen sc1\ns_mov_b64 exec, -1")
            e.label("A_NOHF")
            e.stamp(7)
        e("s_waitcnt lgkmcnt(0)")
        nxt = creads((s + 1) % 2, s + 1) if s < 3 else []
        k = 0; cnt = 0
        for q in range(8):
            for t in range(q, 8):
                a = CA + 4 * t
                c = "0" if (s == 0 and q == 0) else vr(a, 4)
                e(f"v_mfma_f32_16x16x32_bf16 {vr(a,4)}, {vr(FU[s%2]+4*(t-q),4)}, {vr(FU[s%2]+32+4*q,4)}, {c}")
                cnt += 1
                if k < len(nxt) and cnt % 2 == 0: e(nxt[k]); k += 1
        assert k == len(nxt)
    e.stamp(8)
    e(f"v_mul_u32_u24 v8, {UCH}, v28\nv_lshl_add_u32 v8, v1, 4, v8\nv_add_u32 v8, {UB}, v8\nv_xor_b32 v9, 1, v31\nv_mad_u32_u24 v9, v9, s33, v8\nv_mad_u32_u24 v8, v31, s33, v8".replace("v_mul_u32_u24 v8", f"s_mov_b32 s33, {UP}\nv_mul_u32_u24 v8"))
    e(f"v_lshlrev_b32 v10, 2, v2\nv_add_u32 v10, {LCNT+16}, v10\nv_xor_b32 v11, 4, v10\nv_mov_b32 v12, 2\nv_mov_b32 v13, 3")
    e("ds_write_b32 v10, v12")
    lds_poll(e, "A_P0", "v11", 0, 2, 7)
    e("s_and_b32 s30, s29, 1\ns_cmp_eq_u32 s30, 1\ns_cbranch_scc1 A_ODD")
    for i in range(4): e(f"ds_write_b128 v8, {vr(CA+16+4*i,4)} offset:{1024*i}")
    e("s_branch A_J")
    e.label("A_ODD")
    e("s_nop 7")
    for i in range(4): e(f"ds_write_b128 v8, {vr(CA+4*i,4)} offset:{1024*i}")
    for i in range(16): e(f"v_mov_b32 v{CA+i}, v{CA+16+i}")
    e.label("A_J")
    e("ds_write_b32 v10, v13")
    e(f"v_mul_u32_u24 v26, {UCH}, v28\nv_lshl_add_u32 v26, v1, 3, v26\nv_lshl_add_u32 v26, v31, 11, v26\nv_add_u32 v26, {UB}, v26")
    for i in range(4): e(f"ds_read_b64 {vr(48+2*i,2)}, v26 offset:{3*UP+384+512*i}")
    lds_poll(e, "A_PR", "v11", 0, 3, 7)
    for i in range(4): e(f"ds_read_b128 {vr(32+4*i,4)}, v9 offset:{1024*i}")
    e(f"v_lshlrev_b32 v27, 3, v1\nv_lshl_add_u32 v27, v2, 11, v27\ns_lshl_b32 s31, s77, 13\ns_add_u32 s31, s31, {WS_AT}\ns_mov_b32 s38, 0xffff0000")
    e("s_waitcnt lgkmcnt(0)\nv_lshlrev_b32 v30, 16, v30")
    for i in range(4):
        a = CA + 4 * i; b = 32 + 4 * i; x = 48 + 2 * i; t = 60
        for q in range(4): e(f"v_add_f32 v{a+q}, v{a+q}, v{b+q}")
        e(f"v_cvt_pk_bf16_f32 v{b}, v{a}, v{a+1}\nv_cvt_pk_bf16_f32 v{b+1}, v{a+2}, v{a+3}")
        for q in range(4):
            e(f"v_lshlrev_b32 v{t+q}, 16, v{x+(q>>1)}" if q % 2 == 0 else f"v_and_b32 v{t+q}, s38, v{x+(q>>1)}")
            e(f"v_mul_f32 v{t+q}, v30, v{t+q}")
        e(f"v_cvt_pk_bf16_f32 v{b+2}, v{t}, v{t+1}\nv_cvt_pk_bf16_f32 v{b+3}, v{t+2}, v{t+3}")
        for q in range(4):
            e(f"v_lshlrev_b32 v{t+q}, 16, v{b+(q>>1)}" if q % 2 == 0 else f"v_and_b32 v{t+q}, s38, v{b+(q>>1)}")
            e(f"v_lshlrev_b32 v{t+4+q}, 16, v{b+2+(q>>1)}" if q % 2 == 0 else f"v_and_b32 v{t+4+q}, s38, v{b+2+(q>>1)}")
            e(f"v_add_f32 v{t+q}, v{t+q}, v{t+4+q}")
        e(f"v_cvt_pk_bf16_f32 v{a}, v{t}, v{t+1}\nv_cvt_pk_bf16_f32 v{a+1}, v{t+2}, v{t+3}")
        e(f"buffer_store_dwordx2 {vr(a,2)}, v27, s[8:11], s31 offen offset:{512*i} sc1")
    e(f"s_lshl_b32 s31, s77, 7\ns_lshl_b32 s30, s29, 3\ns_add_u32 s31, s31, s30\ns_add_u32 s31, s31, {WS_AF}")
    e("v_mov_b32 v3, 0\nv_cmp_eq_u32 vcc, 0, v1\ns_waitcnt vmcnt(0)\ns_and_saveexec_b64 s[74:75], vcc")
    e("buffer_store_dwordx2 v[16:17], v3, s[8:11], s31 offen sc1\ns_mov_b64 exec, s[74:75]")
    e.stamp(9)
    e.stamp_out("PA", 0, 0, vt=100)
    if env('DBG', 0): e.stamp_dbg("DA", 0, 9, 10, [2, 3, 6, 7, 9], vt=100)

NAME = "parallel_sum__ssm_conv_s4d__glu_gated_swiglu__prompt_kernel"
if __name__ == "__main__":
    Asm.PROFILE = len(sys.argv) > 2
    out = ["; @launch grid=(256,1,1) block=(512,1,1) lds=163840", '.amdgcn_target "amdgcn-amd-amdhsa--gfx950"\n.text']
    out.append(kernel_header(NAME) + gen())
    out.append('.section .rodata,"a"\n.p2align 6\n' + kernel_desc(NAME, 256, 256))
    open(sys.argv[1], "w").write("\n".join(out))
```

```python
import sys, math, os
import numpy as np
from asmlib import *

def env(n, d): return int(os.environ.get(n, str(d)))
DIAG = env('DIAG', 0); PRIO = env('PRIO', 3); PREF = env('PREF', 1); SLEEP = env('SLEEP', 8); ROT = env('ROT', 1); ROT2 = env('ROT2', 1)
APRIO = env('APRIO', 3); W2PF = env('W2PF', 1); XL = 1; TLBW = env('TLBW', 0); F1AT = env('F1AT', 6); LNV = env('LNV', 0); HFS = env('HFS', 1); NW0 = env('NW0', 2); RING = env('RING', 4); PACE = env('PACE', 1); PACEM = env('PACEM', 99); HPF = env('HPF', 0); CH = env('CH', 7); N6 = env('N6', 0); N7 = env('N7', 3); PFS = [int(c) for c in os.environ.get('PFS', '011112')]; SPIN = env('SPIN', 20000)
WS_STATS = 0x0
WS_EPW = 0x8000
WS_LNF = 0x40000
WS_HF = 0x50000
WS_AF = 0x80000
WS_XN2 = 0x100000
WS_H = 0x400000
WS_AT = 0xC00000
WS_SIZE = 0x1000000
STG = 49152
SPARE = 153600
KTAB = 2 * STG + 32768
KX = 2 * STG
UP = 4640; UCH = 4 * UP; UB = STG
KB = UB + 2 * UCH; KS_OFF = 4224; KCH = 147456 - KB
LCS = 163072; LCNT = LCS + 512; LSTAT = 160768
PLANE = 17408

LOG2E = math.log2(math.e)
L2E_HI = float(np.float32(LOG2E)); L2E_LO = float(np.float32(LOG2E - L2E_HI))
I2PI = 1 / (2 * math.pi)
I2PI_HI = float(np.float32(I2PI)); I2PI_LO = float(np.float32(I2PI - I2PI_HI))
LN2 = math.log(2)
DPP = "row_mask:0xf bank_mask:0xf"

def srd(e, d, ptr, nbytes):
    e(f"s_mov_b32 s{d}, s{ptr}\ns_mov_b32 s{d+1}, s{ptr+1}\ns_mov_b32 s{d+2}, {hex(nbytes)}\ns_mov_b32 s{d+3}, 0x00020000")

def poll(e, tag, load, check, sleep=None):
    e(f"s_mov_b32 s39, {SPIN}")
    e.label(f"{tag}_L")
    e(load); e("s_waitcnt vmcnt(0)"); e(check)
    e(f"s_cbranch_vccz {tag}_D\ns_sub_u32 s39, s39, 1\ns_cbranch_scc1 {tag}_D\ns_sleep {sleep or SLEEP}\ns_branch {tag}_L")
    e.label(f"{tag}_D")

def lds_poll(e, tag, vaddr, off, target, vt):
    e(f"s_mov_b32 s39, {SPIN*16}")
    e.label(f"{tag}_L")
    e(f"ds_read_b32 v{vt}, {vaddr} offset:{off}\ns_waitcnt lgkmcnt(0)\nv_cmp_gt_u32 vcc, {target}, v{vt}")
    e(f"s_cbranch_vccz {tag}_D\ns_sub_u32 s39, s39, 1\ns_cbranch_scc1 {tag}_D\ns_sleep 1\ns_branch {tag}_L")
    e.label(f"{tag}_D")

def merged(e, work, fillers, lead=0):
    old = e.lines; e.lines = []; work(); W = e.lines; e.lines = old
    n = len(W); m = len(fillers); k = 0
    for i in range(n + 1):
        while k < m and k * max(n - lead, 1) <= i * m: e(fillers[k]); k += 1
        if i < n: e.lines.append(W[i])
    assert k == m

def rb(e, r): e(f"v_cvt_pk_bf16_f32 v{r}, v{r}, v{r}\nv_lshlrev_b32 v{r}, 16, v{r}")

def gen():
    e = Asm()
    e("s_cmp_ge_u32 s2, 256\ns_cbranch_scc1 END")
    e.label("KSTART")
    e("s_getpc_b64 s[76:77]")
    e("s_load_dwordx16 s[40:55], s[0:1], 0\ns_load_dwordx8 s[56:63], s[0:1], 64\ns_load_dwordx4 s[64:67], s[0:1], 96")
    e.stamp(0)
    e("v_and_b32 v1, 63, v0\nv_lshrrev_b32 v2, 6, v0\nv_readfirstlane_b32 s3, v2\nv_and_b32 v2, 3, v2")
    if PREF:
        e("v_lshlrev_b32 v3, 6, v0\nv_min_u32 v3, KEND-KSTART-8, v3\ns_cmp_ge_u32 s3, 7\ns_cbranch_scc1 NOPF\nglobal_load_dword v31, v3, s[76:77]")
        e.label("NOPF")
    e(f"v_mov_b32 v6, 0\nv_mov_b32 v7, 0\nv_lshlrev_b32 v5, 3, v2\nv_add_u32 v5, {LCNT}, v5\nds_write_b64 v5, v[6:7]")
    e("s_and_b32 s30, s2, 7\ns_lshr_b32 s31, s2, 3")
    e("s_and_b32 s24, s30, 1\ns_lshl_b32 s24, s24, 2\ns_and_b32 s32, s31, 3\ns_add_u32 s24, s24, s32")
    e("s_lshr_b32 s25, s30, 1\ns_mul_i32 s25, s25, 7\ns_lshr_b32 s27, s31, 2\ns_add_u32 s25, s25, s27")
    e("s_lshl_b32 s26, s30, 2\ns_add_u32 s26, s26, s32")
    e("s_cmp_lt_u32 s2, 224\ns_cselect_b32 s28, 1, 0\ns_and_b32 s29, s3, 3\ns_lshl_b32 s77, s30, 5\ns_add_u32 s77, s77, s31")
    e("s_cmp_ge_u32 s3, 4\ns_cbranch_scc1 ROLE_B")
    e("v_lshrrev_b32 v28, 1, v2\nv_lshlrev_b32 v29, 1, v28\ns_lshl_b32 s36, s77, 2\nv_add_u32 v29, s36, v29")
    e("v_lshlrev_b32 v4, 1, v0\ns_lshl_b32 s36, s77, 9\nv_add_u32 v4, s36, v4\nv_xor_b32 v5, 128, v4")
    e("s_waitcnt lgkmcnt(0)")
    for i, (off, base) in enumerate(((4, 42), (4, 44), (4, 46), (4, 48), (5, 46), (5, 48), (29, 50))):
        e(f"global_load_ushort v{40+i}, v{off}, s[{base}:{base+1}]")
    e("global_load_ushort v30, v29, s[52:53]")
    e("s_barrier\ns_branch ROLE_A")
    e.label("ROLE_B")
    e("s_cmp_lg_u32 s3, 7\ns_cbranch_scc1 B_NOX")
    e("v_lshrrev_b32 v25, 3, v1\nv_lshlrev_b32 v25, 10, v25\nv_and_b32 v16, 7, v1\nv_lshl_add_u32 v25, v16, 4, v25\ns_lshl_b32 s31, s2, 13\nv_add_u32 v25, s31, v25\ns_waitcnt lgkmcnt(0)")
    for i in range(8): e(f"global_load_dwordx4 {vr(128+4*i,4)}, v25, s[40:41] offset:{128*i}")
    e.label("B_NOX")
    gen_B(e)
    e.label("ROLE_A")
    gen_A(e)
    e.label("END")
    e("s_endpgm")
    e.label("KEND")
    return e.text()

def dma_stage(e):
    for g in range(4):
        e(f"s_add_u32 m0, s36, {4096*g}")
        for i in range(4):
            e(f"buffer_load_dwordx4 v{(4 if g < 2 else 8)+i}, {'s[12:15]' if g < 2 else 's[20:23]'}, s{32+g} offen offset:{1024*i} lds")
    e("s_add_u32 s37, s37, 1\ns_cmp_eq_u32 s37, 8\ns_cselect_b32 s37, 0, s37\ns_cselect_b32 s31, s69, s68")
    for g in range(4): e(f"s_add_u32 s{32+g}, s{32+g}, s31")
    e(f"s_add_u32 s36, s36, {STG}\ns_cmp_ge_u32 s36, {3*STG}\ns_cselect_b32 s31, {3*STG}, 0\ns_sub_u32 s36, s36, s31")

def cs_groups(k):
    base = (k % 3) * STG
    a = "v24" if base < 65536 - 8192 else "v26"; off0 = base if base < 65536 - 8192 else 0
    R = [f"ds_read_b128 {vr(240+4*i,4)}, {a} offset:{off0 + 2048*i}" for i in range(4)]
    M = [f"v_mfma_f32_16x16x32_bf16 v[20:23], v[16:19], {vr(240+4*i,4)}, v[20:23]" for i in range(4)]
    return R, M

def gen_B(e):
    vm = VM(e)
    e("v_lshrrev_b32 v12, 3, v1\nv_and_b32 v16, 7, v1\nv_lshrrev_b32 v17, 4, v1\nv_lshrrev_b32 v3, 1, v2\nv_and_b32 v19, 1, v2")
    e("s_lshr_b32 s37, s2, 3\ns_and_b32 s37, s37, 3\ns_lshl_b32 s37, s37, 1\ns_add_u32 s37, s37, s27\ns_and_b32 s37, s37, 7" if ROT else "s_mov_b32 s37, 0")
    e("s_lshl_b32 s36, s29, 14\ns_mov_b32 s15, 0x00020000\ns_mov_b32 s23, 0x00020000")
    e("s_cmp_eq_u32 s29, 2\ns_cbranch_scc1 B_WOFF")
    e("v_xor_b32 v17, v16, v17\nv_lshlrev_b32 v12, 10, v12\nv_lshl_add_u32 v4, v17, 4, v12\nv_xor_b32 v18, 64, v4")
    for i in range(1, 4): e(f"v_add_u32 v{4+i}, {8192*i - 1024*i}, {'v4' if i % 2 == 0 else 'v18'}")
    for i in range(4): e(f"v_mov_b32 v{8+i}, v{4+i}")
    e(f"s_lshl_b32 s32, s24, 18\ns_lshl_b32 s31, s29, 17\ns_add_u32 s32, s32, s31\ns_lshl_b32 s31, s37, 7\ns_add_u32 s32, s32, s31\ns_add_u32 s33, s32, 32768\ns_add_u32 s34, s32, 65536\ns_add_u32 s35, s32, 98304")
    e(f"s_mov_b32 s68, 128\ns_mov_b32 s69, {(128-1024) & 0xffffffff}\ns_lshl_b32 s14, s28, 21\ns_lshl_b32 s22, s28, 21")
    e("s_waitcnt lgkmcnt(0)\ns_mov_b32 s12, s40\ns_mov_b32 s13, s41\ns_mov_b32 s20, s40\ns_mov_b32 s21, s41\ns_branch B_OFFD")
    e.label("B_WOFF")
    e("v_and_b32 v17, 1, v17\nv_lshlrev_b32 v17, 1, v17\nv_xor_b32 v17, v16, v17\nv_mul_u32_u24 v12, 3584, v12\nv_lshl_add_u32 v4, v17, 4, v12\nv_xor_b32 v17, 4, v17\nv_lshl_add_u32 v8, v17, 4, v12")
    for i in range(1, 4): e(f"v_add_u32 v{4+i}, {8*3584*i - 1024*i}, v4\nv_add_u32 v{8+i}, {8*3584*i - 1024*i}, v8")
    e(f"s_lshl_b32 s32, s25, 7\ns_mul_i32 s31, s37, {64*3584}\ns_add_u32 s32, s32, s31\ns_add_u32 s33, s32, {32*3584}\ns_mov_b32 s34, s32\ns_mov_b32 s35, s33")
    e(f"s_mov_b32 s68, {64*3584}\ns_mov_b32 s69, {(64*3584-512*3584) & 0xffffffff}\ns_mul_i32 s14, s28, 0x1c0000\ns_mul_i32 s22, s28, 0x1c0000")
    e("s_waitcnt lgkmcnt(0)\ns_mov_b32 s12, s56\ns_mov_b32 s13, s57\ns_mov_b32 s20, s58\ns_mov_b32 s21, s59")
    e.label("B_OFFD")
    e("s_barrier")
    srd(e, 8, 66, WS_SIZE); srd(e, 16, 60, 0x1c0000)
    e("s_mov_b32 s38, 0xffff0000\nv_mov_b32 v54, 0")
    e("s_cmp_eq_u32 s29, 3\ns_cbranch_scc1 B_LN")
    e("s_cmp_eq_u32 s28, 1\ns_cbranch_scc1 B_LOAD")
    e("v_lshlrev_b32 v25, 10, v1\ns_lshr_b32 s31, s2, 3\ns_sub_u32 s31, s31, 28\ns_mul_i32 s31, s31, 458752\ns_lshl_b32 s30, s29, 17\ns_add_u32 s31, s31, s30")
    for i in range(2): e("buffer_load_dword v236, v25, s[16:19], s31 offen offset:384\ns_add_u32 s31, s31, 65536")
    e.label("B_LOAD")
    dma_stage(e); dma_stage(e)
    e("s_branch B_JOIN")
    e.label("B_LN")
    gen_ln(e)
    e.label("B_JOIN")
    srd(e, 4, 40, 0x200000)
    e("v_and_b32 v27, 255, v0")
    e("v_and_b32 v24, 3, v1\nv_lshl_add_u32 v24, v3, 2, v24\nv_bfe_u32 v25, v1, 3, 1\nv_lshl_add_u32 v25, v19, 1, v25\nv_lshlrev_b32 v25, 1, v25\nv_xor_b32 v24, v24, v25\nv_lshlrev_b32 v24, 4, v24")
    e(f"v_lshrrev_b32 v25, 2, v1\nv_lshl_add_u32 v24, v25, 7, v24\nv_lshl_add_u32 v24, v19, 13, v24\nv_add_u32 v24, 32768, v24\nv_add_u32 v26, {2*STG}, v24")
    e("v_and_b32 v20, 1, v1\nv_lshlrev_b32 v20, 4, v20\nv_mov_b32 v21, 0x3f80\nv_lshlrev_b32 v21, v20, v21\nv_bfe_u32 v22, v1, 1, 2")
    for j in range(4): e(f"v_cmp_eq_u32 vcc, {j}, v22\nv_cndmask_b32 v{16+j}, 0, v21, vcc")
    for i in range(4): e(f"v_mov_b32 v{20+i}, 0\nv_mov_b32 v{232+i}, 0")
    e("v_lshlrev_b32 v123, 10, v1\ns_lshr_b32 s70, s2, 3\ns_lshl_b32 s70, s70, 16")
    lab = [0]
    def stage(k, aux=lambda: None, work=lambda: None, fill=None):
        R, M = cs_groups(k)
        for r in R: e(r)
        if k + 2 < 8:
            lab[0] += 1; n = lab[0]
            e(f"s_cmp_eq_u32 s29, 3\ns_cbranch_scc1 B_AUX{n}")
            dma_stage(e)
            e(f"s_branch B_AJ{n}")
            e.label(f"B_AUX{n}")
            aux()
            e.label(f"B_AJ{n}")
        def w2():
            work()
            e("s_waitcnt lgkmcnt(0)")
            for m in M: e(m)
        merged(e, w2, fill or [])
    def endstage(k, n=16):
        lab[0] += 1
        e(f"s_cmp_eq_u32 s29, 3\ns_cbranch_scc1 B_NW{lab[0]}\ns_waitcnt vmcnt({n})")
        e.label(f"B_NW{lab[0]}")
        e("s_waitcnt lgkmcnt(0)\ns_barrier")
        if DIAG == 1: e.stamp(k + 1)
    pfl = [0, 1, 2, 4, 5, 6]
    def pf(n):
        for _ in range(n): e(f"buffer_load_dword v236, v123, s[16:19], s70 offen offset:{128*pfl.pop(0)}")
    if not DIAG: e.stamp(1)
    endstage(0)
    if not DIAG: e.stamp(2)
    if PRIO: e(f"s_setprio {PRIO}")
    chk2 = "v_cmp_ne_u64 vcc, v[112:113], v[126:127]\nv_cmp_ne_u64 s[74:75], v[114:115], v[126:127]\ns_or_b64 vcc, vcc, s[74:75]\nv_cmp_ne_u64 s[74:75], v[116:117], v[126:127]\ns_or_b64 vcc, vcc, s[74:75]\nv_cmp_ne_u64 s[74:75], v[118:119], v[126:127]\ns_or_b64 vcc, vcc, s[74:75]"
    lfl = f"s_mov_b32 s72, {WS_LNF}\nv_lshlrev_b32 v122, 4, v1\n" + "\n".join(f"buffer_load_dwordx2 v[{112+2*q}:{113+2*q}], v122, s[8:11], s72 offen offset:{1024*q} sc1" for q in range(4))
    def aux0(): gen_ln_store(e); e("global_load_dword v126, v54, s[64:65] sc1")
    def aux1():
        e("s_waitcnt vmcnt(0)\nv_cmp_eq_u32 vcc, 0, v126\ns_cbranch_vccz B_RDY_D")
        poll(e, "B_RDY", "global_load_dword v126, v54, s[64:65] sc1", "v_cmp_eq_u32 vcc, 0, v126")
        e(f"v_not_b32 v127, v126\ns_lshl_b32 s31, s2, 4\ns_add_u32 s31, s31, {WS_LNF}")
        e("s_mov_b64 exec, 1\nbuffer_store_dwordx2 v[126:127], v54, s[8:11], s31 offen sc1\ns_mov_b64 exec, -1")
        if TLBW:
            e("v_and_b32 v122, 15, v1\nv_lshlrev_b32 v122, 20, v122\ns_lshl_b32 s31, s2, 7\ns_add_u32 s31, s31, 0x30000")
            e("buffer_load_dword v236, v122, s[8:11], s31 offen sc1\nglobal_load_dword v236, v54, s[62:63]")
        pf(PFS[2])
    def aux4(): e(lfl); pf(PFS[4])
    def aux5():
        e(f"s_waitcnt vmcnt({PFS[4]})\n" + chk2 + "\ns_cbranch_vccz B_LNF_D")
        poll(e, "B_LNF", lfl, chk2, sleep=16)
        e(f"v_mov_b32 v49, {LCNT}\nds_write_b64 v49, v[126:127] offset:32")
        pf(PFS[5])
    stage(0, aux0); endstage(1)
    stage(1, lambda: pf(PFS[1])); endstage(2)
    stage(2, aux1); endstage(3)
    stage(3, lambda: pf(PFS[3])); endstage(4)
    stage(4, aux4); endstage(5)
    def addr5():
        e("v_and_b32 v50, 127, v27\nv_lshlrev_b32 v51, 7, v27\nv_subrev_u32 v52, 120, v51\nv_max_i32 v52, 0, v52\nv_lshlrev_b32 v57, 3, v27")
        e(f"v_mul_u32_u24 v44, 2731, v27\nv_lshrrev_b32 v44, 16, v44\nv_mul_u32_u24 v49, 24, v44\nv_sub_u32 v49, v27, v49\nv_mul_u32_u24 v44, {UP}, v44\nv_lshl_add_u32 v44, v49, 4, v44")
        e(f"v_mul_u32_u24 v55, {KCH}, v3\nv_add_u32 v55, {KB}, v55\nv_lshl_add_u32 v45, v50, 3, v55\nv_lshlrev_b32 v46, 4, v27\nv_add_u32 v46, {UB}, v46")
        e(f"v_and_b32 v48, 3, v1\nv_lshl_add_u32 v48, v3, 2, v48\nv_lshlrev_b32 v48, 5, v48\nv_and_b32 v49, 1, v2\nv_lshl_add_u32 v48, v49, 8, v48\nv_bfe_u32 v49, v1, 4, 1\nv_lshl_add_u32 v48, v49, 4, v48\nv_add_u32 v48, {LCS}, v48")
        e(f"v_mov_b32 v49, {LCNT}\nv_mov_b32 v47, 1\nv_add_u32 v43, {LSTAT}, v57")
        e("v_lshrrev_b32 v40, 3, v1\nv_and_b32 v41, 7, v1\nv_bfe_u32 v42, v1, 4, 1\nv_lshlrev_b32 v42, 2, v42\nv_xor_b32 v41, v41, v42\nv_lshlrev_b32 v40, 10, v40\nv_lshl_add_u32 v40, v41, 4, v40\nv_add_u32 v41, 7168, v40")
        e("v_lshrrev_b32 v38, 5, v1\nv_bfe_u32 v39, v1, 2, 2\nv_lshl_add_u32 v38, v38, 2, v39\nv_lshlrev_b32 v38, 7, v38")
        e("v_lshrrev_b32 v39, 1, v39\nv_lshl_add_u32 v38, v39, 6, v38\nv_bfe_u32 v39, v1, 4, 1\nv_lshl_add_u32 v38, v39, 5, v38\nv_and_b32 v39, 3, v1\nv_lshl_add_u32 v38, v39, 3, v38\nv_xor_b32 v39, 64, v38")
    stage(5, aux5, addr5)
    if env('NTX', 4): e(f"s_xor_b32 s27, s27, {env('NTX', 4)}")
    e("s_mul_i32 s32, s29, 458752\ns_lshl_b32 s31, s27, 7\ns_add_u32 s32, s32, s31")
    NR = 20 - RING; nres_end = min(28, NR + 12); nstream = 28 - nres_end
    order = list(range(NR, NR + nstream)) + list(range(0, NR)) + list(range(NR + nstream, nres_end)) + list(range(nres_end, 28))
    phys = {i: 4 * ((p % 14) // 2) + 2 * (p // 14) + (p & 1) for p, i in enumerate(order)}
    posn = {i: p for p, i in enumerate(order)}
    e(f"s_mul_i32 s35, s29, 12288\ns_add_u32 s34, s35, {2*STG}")
    e("v_mov_b32 v4, v40\nv_mov_b32 v5, v41\nv_add_u32 v6, s34, v38\nv_add_u32 v7, s34, v39\nv_add_u32 v8, s35, v38\nv_add_u32 v9, s35, v39")
    if not XL: e(f"s_lshl_b32 s36, s77, 13\ns_add_u32 s36, s36, {WS_XN2}\ns_add_u32 s30, s36, 4096\ns_sub_u32 s71, s30, 24\ns_lshl_b32 s70, s24, 11")
    if XL: e(f"s_lshr_b32 s36, s77, 2\ns_lshl_b32 s36, s36, 15\ns_and_b32 s30, s77, 3\ns_lshl_b32 s30, s30, 5\ns_add_u32 s36, s36, s30\ns_add_u32 s36, s36, {WS_XN2}\ns_add_u32 s30, s36, 16384\ns_sub_u32 s71, s30, 120\ns_lshl_b32 s70, s24, 11")
    endstage(6)
    if not DIAG: e.stamp(3)
    wid = {}; slot_of = {}
    def w2txt(i, j):
        slot_of[i] = j
        wid[i] = vm.add('d', 2)
        return [f"s_add_u32 m0, {'s34' if j < 6 else 's35'}, {2048*(j%6)}\ns_add_u32 s33, s32, {16384*phys[i]}\nbuffer_load_dwordx4 v4, s[16:19], s33 offen lds",
                f"buffer_load_dwordx4 v5, s[16:19], s33 offen offset:1024 lds"]
    def w2dma(i, j):
        for t in w2txt(i, j): e(t)
    vm.reset()
    e("ds_read_b64 v[14:15], v49 offset:32")
    R6, M6 = cs_groups(6)
    for r in R6: e(r)
    e("s_cmp_eq_u32 s29, 3\ns_cbranch_scc1 B_K6\ns_waitcnt vmcnt(0)")
    e.label("B_K6")
    sid = vm.op(f"buffer_load_dwordx2 v[124:125], v57, s[8:11], s70 offen offset:{WS_STATS} sc1")
    vm.op("buffer_load_dwordx4 v[60:63], v51, s[8:11], s36 offen sc1"); vm.op("buffer_load_dwordx4 v[68:71], v51, s[8:11], s36 offen offset:16 sc1")
    e("s_mov_b64 exec, 1")
    vm.op("buffer_load_dwordx2 v[58:59], v52, s[8:11], s36 offen sc1"); uid = vm.op("buffer_load_dwordx2 v[66:67], v52, s[8:11], s36 offen offset:16 sc1")
    e("s_mov_b64 exec, -1")
    e("s_waitcnt lgkmcnt(0)")
    for m in M6: e(m)
    for i in range(N6): w2dma(i, i)
    endstage(7, 63)
    ACC = 192; WT = [16, 24]; HR = 32
    def wreg(i): return 96 + 8 * i if i < 12 else 88 - 8 * (i - 12)
    def wread(j, dst):
        for dt in range(2):
            for jj in range(2):
                e(f"ds_read_b64_tr_b16 {vr(dst+4*dt+2*jj,2)}, v{(6 if j < 6 else 8)+dt} offset:{2048*(j%6)+1024*jj}")
    vm.wait(sid)
    e(f"ds_write_b64 v43, v[124:125]")
    def post7():
        e("v_cmp_eq_u32 vcc, 0, v27")
        for r in (58, 59, 66, 67):
            e(f"v_cndmask_b32 v{r}, v{r}, v232, vcc\nv_mov_b32_dpp v{r}, v{r+4} wave_shr:1 row_mask:0xf bank_mask:0xf")
        for h in range(2):
            Dd = 60 + 8 * h
            V1, V2, V3 = 200 + 12 * h, 204 + 12 * h, 208 + 12 * h
            for i in range(4):
                e(f"v_alignbit_b32 v{V1+i}, v{Dd+i}, v{Dd+i-1}, 16\nv_mov_b32 v{V2+i}, v{Dd+i-1}\nv_alignbit_b32 v{V3+i}, v{Dd+i-1}, v{Dd+i-2}, 16")
        e("v_cmp_gt_u32 s[68:69], 192, v27\nv_cmp_gt_u32 s[70:71], 15, v50".replace("192, v27", "s30, v27"))
    e("s_mov_b32 s30, 192")
    stage(7)
    for m in ("row_ror:4", "row_ror:8"):
        for i in range(4): e(f"v_add_f32_dpp v{20+i}, v{20+i}, v{20+i} {m} {DPP}")
    e("ds_write_b128 v48, v[20:23]")
    vm.wait(uid)
    merged(e, post7, sum([w2txt(i, i) for i in range(N6, N7)], []))
    e("s_waitcnt lgkmcnt(0)\ns_barrier")
    if DIAG == 1: e.stamp(9)
    if not DIAG: e.stamp(4)
    if DIAG == 4: e.stamp(1)
    for h in range(2):
        for delta, src in ((0, 60 + 8 * h), (1, 200 + 12 * h), (2, 204 + 12 * h), (3, 208 + 12 * h)):
            e(f"ds_write_b128 v46, {vr(src,4)} offset:{(3-delta)*UP + 384 + UCH*h}")
    e(f"s_mov_b64 exec, s[68:69]\nds_write_b128 v44, v[232:235] offset:{UB}")
    e(f"s_mov_b64 exec, s[70:71]\nds_write_b64 v45, v[232:233] offset:4096\nds_write_b64 v45, v[232:233] offset:{KS_OFF+4088}")
    e("s_mov_b64 exec, 1\nds_add_u32 v49, v47\ns_mov_b64 exec, -1")
    for i in range(N7, 12): w2dma(i, i)
    nd = [12]
    def refill(slots):
        for j in slots:
            if nd[0] < nres_end: w2dma(nd[0], j); nd[0] += 1
    vm.wait(wid[5])
    for i in range(6): wread(i, wreg(i))
    e("s_waitcnt lgkmcnt(0)")
    refill(range(6))
    vm.wait(wid[11])
    for i in range(6, 12): wread(i, wreg(i))
    e("s_waitcnt lgkmcnt(0)")
    refill(range(6, 12))
    if not DIAG: e.stamp(5)
    if PRIO: e("s_setprio 0")
    if NR > 12:
        vm.wait(wid[NR - 1], " lgkmcnt(0)")
        for i in range(12, NR): wread(slot_of[i], wreg(i))
        e("s_waitcnt lgkmcnt(0)")
        refill([slot_of[i] for i in range(12, NR)])
    if DIAG == 4: e.stamp(9)
    if not DIAG: e.stamp(6)
    e(f"v_lshrrev_b32 v10, 3, v1\nv_min_u32 v10, 6, v10\nv_lshlrev_b32 v10, 7, v10\nv_bfe_u32 v11, v1, 2, 1\nv_lshl_add_u32 v10, v11, 3, v10\ns_mul_i32 s31, s26, {28*128}\ns_mul_i32 s30, s29, {7*128}\ns_add_u32 s31, s31, s30\ns_add_u32 s31, s31, {WS_HF}")
    e(f"s_lshl_b32 s36, s26, 1\ns_mul_i32 s36, s36, 112\ns_mul_i32 s30, s29, 28\ns_add_u32 s36, s36, s30\ns_lshl_b32 s36, s36, 10\ns_add_u32 s36, s36, {WS_H}\ns_lshl_b32 s70, s27, 7\ns_add_u32 s70, s70, s36")
    srd(e, 20, 62, 0x200000)
    e(f"v_lshrrev_b32 v11, 1, v1\nv_lshlrev_b32 v11, 10, v11\nv_and_b32 v12, 1, v1\nv_mul_u32_u24 v12, {112*1024}, v12\nv_add_u32 v11, v11, v12")
    e("s_lshl_b32 s71, s26, 16\ns_lshl_b32 s30, s27, 7\ns_add_u32 s71, s71, s30\nv_bfe_u32 v12, v0, 2, 6\nv_lshlrev_b32 v12, 10, v12\nbuffer_load_dword v3, v12, s[4:7], s71 offen")
    e(f"s_mov_b32 s72, -1\ns_mov_b32 s73, 0xffffff\ns_mov_b32 s39, {SPIN}")
    e("s_waitcnt vmcnt(0)\ns_mov_b32 s33, s31\nv_mov_b32 v4, v10\nv_mov_b32 v5, v11\ns_mov_b64 s[74:75], 0")
    def need(j):
        bit = 8 * (j % 7) + 4 * (j // 7)
        w_, b_ = (72, bit) if bit < 32 else (73, bit - 32)
        e(f"s_bitcmp0_b32 s{w_}, {b_}\ns_cbranch_scc1 B_HF_D{j}")
        e.label(f"B_HF_L{j}")
        e("buffer_load_dwordx2 v[12:13], v4, s[8:11], s33 offen sc1\ns_cmp_eq_u64 s[74:75], 0")
        e(f"s_cbranch_scc1 B_HF_W{j}\ns_mov_b64 exec, s[74:75]\nbuffer_load_dword v3, v5, s[8:11], s70 offen sc1\ns_mov_b64 exec, -1\ns_waitcnt vmcnt(1)\ns_branch B_HF_X{j}")
        e.label(f"B_HF_W{j}")
        e("s_waitcnt vmcnt(0)")
        e.label(f"B_HF_X{j}")
        e("v_cmp_eq_u64 vcc, v[12:13], v[14:15]\ns_and_b64 s[74:75], vcc, s[72:73]\ns_andn2_b64 s[72:73], s[72:73], vcc")
        e(f"s_bitcmp0_b32 s{w_}, {b_}\ns_cbranch_scc1 B_HF_E{j}")
        e(f"s_sub_u32 s39, s39, 1\ns_cbranch_scc1 B_HF_E{j}\ns_sleep {env('HSL', 1)}\ns_branch B_HF_L{j}")
        e.label(f"B_HF_E{j}")
        e(f"s_cmp_eq_u64 s[74:75], 0\ns_cbranch_scc1 B_HF_D{j}\ns_mov_b64 exec, s[74:75]\nbuffer_load_dword v3, v5, s[8:11], s70 offen sc1\ns_mov_b64 exec, -1\ns_mov_b64 s[74:75], 0")
        e.label(f"B_HF_D{j}")
    for j in range(NW0): need(j)
    if not DIAG: e.stamp(7)
    if DIAG == 3: e.stamp(1)
    vm.reset()
    e(f"v_lshlrev_b32 v10, 4, v1\nv_add_u32 v11, {112*1024}, v10")
    free = [HR + 8 * i for i in range(RING)]
    pfc = [0]
    def hpf():
        if pfc[0] * CH < 28:
            e(f"s_mov_b64 exec, {hex((1 << (2*CH)) - 1)}")
            vm.op(f"buffer_load_dword v12, v13, s[8:11], s70 offen sc1\ns_add_u32 s70, s70, {1024*CH}\ns_mov_b64 exec, -1")
            pfc[0] += 1
    hreg = {}; hid = {}; nxt = [0]
    def hload(maxn=99):
        n = 0
        while nxt[0] < 28 and free and n < maxn:
            n += 1
            i = order[nxt[0]]; nxt[0] += 1
            b = free.pop(0); hreg[i] = b
            if posn[i] % 2 == 0 and posn[i] // 2 >= NW0: need(posn[i] // 2)
            e(f"s_add_u32 s31, s36, {1024*phys[i]}")
            vm.op(f"buffer_load_dwordx4 {vr(b,4)}, v10, s[8:11], s31 offen sc1")
            hid[i] = vm.op(f"buffer_load_dwordx4 {vr(b+4,4)}, v11, s[8:11], s31 offen sc1")
    if HPF:
        e(f"v_lshrrev_b32 v13, 1, v1\nv_lshlrev_b32 v13, 10, v13\nv_and_b32 v12, 1, v1\nv_mul_u32_u24 v12, {112*1024}, v12\nv_add_u32 v13, v13, v12")
        for _ in range(HPF): hpf()
    hload()
    def is_lds(i): return i >= NR
    tcount = [0]; wt_of = {}
    def prefetch_w(pos):
        if pos < 28 and is_lds(order[pos]):
            i = order[pos]
            if i >= nres_end: vm.wait(wid[i])
            wt_of[i] = WT[tcount[0] % 2]; tcount[0] += 1
            wread(slot_of[i], wt_of[i])
    prefetch_w(0)
    streamed = nres_end
    fin = {}
    def at_loads(count):
        e(f"s_lshl_b32 s31, s27, 18\ns_lshl_b32 s30, s26, 7\ns_add_u32 s31, s31, s30\ns_add_u32 s31, s31, {WS_AT}")
        for j in range(4):
            t = f"buffer_load_dwordx2 {vr(fin['A']+2*j,2)}, v{fin['T']+3}, s[8:11], s31 offen sc1\ns_add_u32 s31, s31, 4096"
            if count: vm.op(t)
            else: e(t)
    AFPOS = env('AFPOS', 28 - RING - 1); ATPOS = 27
    for pos, i in enumerate(order):
        if is_lds(i):
            e("s_waitcnt lgkmcnt(0)")
            if streamed < 28:
                w2dma(streamed, slot_of[i]); streamed += 1
        prefetch_w(pos + 1)
        vm.wait(hid[i])
        if DIAG == 3 and pos in (0, 4, 8, 12, 16, 20, 24, 27): e.stamp(2 + (0, 4, 8, 12, 16, 20, 24, 27).index(pos))
        wb = wt_of[i] if is_lds(i) else wreg(i)
        b = hreg[i]
        for dt in range(2):
            for mi in range(2):
                a = ACC + 16 * (2 * dt + mi)
                e(f"v_mfma_f32_32x32x16_bf16 {vr(a,16)}, {vr(wb+4*dt,4)}, {vr(b+4*mi,4)}, {'0' if pos == 0 else vr(a,16)}")
        free.append(b)
        if not is_lds(i): free.append(wb)
        hload(PACE if pos % PACEM else PACE + 1)
        if pos == AFPOS:
            assert len(free) >= 4
            fin['X'] = free.pop(); fin['A'] = free.pop(); T = fin['T'] = free.pop(0)
            e(f"v_bfe_u32 v{T}, v0, 4, 4\nv_and_b32 v{T+1}, 15, v0\nv_lshlrev_b32 v{T+2}, 12, v{T}\nv_lshl_add_u32 v{T+2}, v{T+1}, 3, v{T+2}\nv_lshlrev_b32 v{T+3}, 14, v{T+1}\nv_lshl_add_u32 v{T+3}, v{T}, 3, v{T+3}\nv_lshrrev_b32 v{T+4}, 1, v1\nv_lshlrev_b32 v{T+4}, 7, v{T+4}\nv_and_b32 v{T+5}, 1, v1\nv_lshl_add_u32 v{T+4}, v{T+5}, 4, v{T+4}")
            e(f"s_lshl_b32 s37, s27, 12\ns_lshr_b32 s30, s26, 4\ns_lshl_b32 s30, s30, 3\ns_add_u32 s37, s37, s30\ns_add_u32 s37, s37, {WS_AF}")
            e("s_lshl_b32 s71, s26, 16\ns_lshl_b32 s30, s27, 7\ns_add_u32 s71, s71, s30")
            afid = vm.op(f"buffer_load_dwordx2 v[12:13], v{T+4}, s[8:11], s37 offen sc1")
            for r in range(4): vm.op(f"buffer_load_dwordx2 {vr(fin['X']+2*r,2)}, v{T+2}, s[4:7], s71 offen offset:{1024*r}")
        if pos == ATPOS:
            vm.wait(afid)
            e("v_cmp_ne_u64 s[68:69], v[12:13], v[14:15]")
            at_loads(True)
    if not DIAG: e.stamp(8)
    T = fin['T']
    e(f"v_and_b32 v3, 31, v1\nv_mul_u32_u24 v3, 272, v3\nv_lshrrev_b32 v8, 5, v1\nv_lshl_add_u32 v3, v8, 4, v3\nv_add_u32 v4, s34, v3\nv_add_u32 v3, s35, v3")
    for dt in range(2):
        for mi in range(2):
            a = ACC + 16 * (2 * dt + mi)
            for g in range(4):
                e(f"ds_write_b128 v{3+mi}, {vr(a+4*g,4)} offset:{dt*128 + g*32}")
    e("s_cmp_eq_u64 s[68:69], 0\ns_cbranch_scc1 B_AF_OK")
    poll(e, "B_AF", f"buffer_load_dwordx2 v[12:13], v{T+4}, s[8:11], s37 offen sc1", "v_cmp_ne_u64 vcc, v[12:13], v[14:15]", sleep=2)
    at_loads(False)
    e.label("B_AF_OK")
    e(f"v_and_b32 v3, 7, v{T}\nv_mul_u32_u24 v3, 1088, v3\nv_lshl_add_u32 v3, v{T+1}, 4, v3\nv_lshrrev_b32 v4, 3, v{T}\nv_mul_u32_u24 v4, {2*STG}, v4\nv_add_u32 v3, v3, v4")
    e("s_waitcnt lgkmcnt(0)\ns_barrier")
    Pp = 192
    XR = fin['X']; AR = fin['A']
    for i in range(4):
        for w in range(4):
            e(f"ds_read_b128 {vr(Pp+16*i+4*w,4)}, v3 offset:{272*i + 12288*w}")
    e("s_waitcnt vmcnt(0)")
    XA = 16
    for i in range(4):
        for j in range(4):
            xs = XR + 2 * i + (j >> 1); as_ = AR + 2 * j + (i >> 1)
            e(f"v_lshlrev_b32 v{4+j}, 16, v{xs}" if j % 2 == 0 else f"v_and_b32 v{4+j}, s38, v{xs}")
            e(f"v_lshlrev_b32 v{8+j}, 16, v{as_}" if i % 2 == 0 else f"v_and_b32 v{8+j}, s38, v{as_}")
        e("v_pk_add_f32 v[4:5], v[4:5], v[8:9]\nv_pk_add_f32 v[6:7], v[6:7], v[10:11]")
        e(f"v_cvt_pk_bf16_f32 v8, v4, v5\nv_cvt_pk_bf16_f32 v9, v6, v7")
        for j in range(4):
            e(f"v_lshlrev_b32 v{XA+4*i+j}, 16, v{8+(j>>1)}" if j % 2 == 0 else f"v_and_b32 v{XA+4*i+j}, s38, v{8+(j>>1)}")
    for i in range(4):
        b = Pp + 16 * i
        e(f"s_waitcnt lgkmcnt({12-4*i})")
        for h in range(2):
            e(f"v_pk_add_f32 {vr(b+2*h,2)}, {vr(b+2*h,2)}, {vr(b+4+2*h,2)}")
            e(f"v_pk_add_f32 {vr(b+8+2*h,2)}, {vr(b+8+2*h,2)}, {vr(b+12+2*h,2)}")
        for h in range(2):
            e(f"v_pk_add_f32 {vr(b+2*h,2)}, {vr(b+2*h,2)}, {vr(b+8+2*h,2)}")
        e(f"v_cvt_pk_bf16_f32 v{b+4}, v{b}, v{b+1}\nv_cvt_pk_bf16_f32 v{b+5}, v{b+2}, v{b+3}")
        for j in range(4):
            e(f"v_lshlrev_b32 v{b+8+j}, 16, v{b+4+(j>>1)}" if j % 2 == 0 else f"v_and_b32 v{b+8+j}, s38, v{b+4+(j>>1)}")
        for h in range(2):
            e(f"v_pk_add_f32 {vr(b+8+2*h,2)}, {vr(b+8+2*h,2)}, {vr(XA+4*i+2*h,2)}")
        e(f"v_cvt_pk_bf16_f32 v{b}, v{b+8}, v{b+9}\nv_cvt_pk_bf16_f32 v{b+1}, v{b+10}, v{b+11}")
        e(f"buffer_store_dwordx2 {vr(b,2)}, v{T+2}, s[20:23], s71 offen offset:{1024*i}")
    if not DIAG: e.stamp(9)
    e.stamp_out("PB", env("PBT", 256), 1, vt=100)
    if env('DBG', 0): e.stamp_dbg("DB", 256, 9, 1, [1, 2, 3, 4, 6, 7, 8, 9], vt=100)
    e("s_endpgm")

def gen_ln(e):
    X = 128; A = 160; M = 164; SQ = 166; T = 172
    e("s_mov_b32 s30, 0x3f803f80")
    for j in range(4): e(f"v_mov_b32 v{A+j}, 0\nv_mov_b32 v{SQ+j}, 0")
    e(f"v_lshrrev_b32 v180, 3, v1\nv_and_b32 v181, 7, v1\nv_mul_u32_u24 v182, 1088, v180\nv_lshl_add_u32 v182, v181, 4, v182\nv_add_u32 v182, {SPARE}, v182")
    e(f"v_bfe_u32 v183, v1, 2, 2\nv_mul_u32_u24 v183, 1088, v183\nv_lshrrev_b32 v184, 4, v1\nv_lshl_add_u32 v183, v184, 5, v183\nv_and_b32 v184, 3, v1\nv_lshl_add_u32 v183, v184, 3, v183\nv_add_u32 v183, {SPARE}, v183")
    for i in range(8):
        e(f"s_waitcnt vmcnt({7-i})")
        for j in range(4): e(f"v_dot2_f32_bf16 v{A+j}, v{X+4*i+j}, s30, v{A+j}")
    def red(r):
        e(f"v_add_f32 v{r}, v{r}, v{r+1}\nv_add_f32 v{r+2}, v{r+2}, v{r+3}\nv_add_f32 v{r}, v{r}, v{r+2}")
        for m in ("quad_perm:[1,0,3,2]", "quad_perm:[2,3,0,1]", "row_half_mirror"):
            e(f"v_add_f32_dpp v{r}, v{r}, v{r} {m} {DPP}")
    red(A)
    e(f"v_mul_f32 v{A}, {f32(1/512)}, v{A}\nv_cvt_pk_bf16_f32 v{M}, v{A}, v{A}\nv_lshlrev_b32 v{M}, 16, v{M}")
    for j0 in range(0, 32, 4):
        for j in range(j0, j0 + 4):
            t = T + 2 * (j % 4); e(f"v_lshlrev_b32 v{t}, 16, v{X+j}\nv_and_b32 v{t+1}, s38, v{X+j}")
        for j in range(j0, j0 + 4):
            t = T + 2 * (j % 4)
            if LNV & 2: e(f"v_sub_f32 v{t}, v{t}, v{M}\nv_sub_f32 v{t+1}, v{t+1}, v{M}")
            else: e(f"v_pk_add_f32 {vr(t,2)}, {vr(t,2)}, {vr(M,2)} op_sel_hi:[1,0] neg_lo:[0,1] neg_hi:[0,1]")
        for j in range(j0, j0 + 4):
            t = T + 2 * (j % 4); q = SQ + 2 * (j % 2)
            if LNV & 2: e(f"v_fmac_f32 v{q}, v{t}, v{t}\nv_fmac_f32 v{q+1}, v{t+1}, v{t+1}\nv_cvt_pk_bf16_f32 v{X+j}, v{t}, v{t+1}")
            else: e(f"v_pk_fma_f32 {vr(q,2)}, {vr(t,2)}, {vr(t,2)}, {vr(q,2)}\nv_cvt_pk_bf16_f32 v{X+j}, v{t}, v{t+1}")
    red(SQ)
    e(f"v_sub_f32 v{A+1}, v{A}, v{M}\nv_mul_f32 v{A+1}, v{A+1}, v{A+1}\nv_mul_f32 v{SQ}, {f32(1/512)}, v{SQ}\nv_sub_f32 v{SQ}, v{SQ}, v{A+1}\nv_max_f32 v{SQ}, 0, v{SQ}")
    rb(e, SQ); e(f"v_add_f32 v{SQ}, {f32(1e-5)}, v{SQ}"); rb(e, SQ); e(f"v_sqrt_f32 v{SQ}, v{SQ}"); rb(e, SQ)
    e(f"v_rcp_f32 v{M+1}, v{SQ}")
    for j0 in range(0, 32, 4):
        for j in range(j0, j0 + 4):
            t = T + 2 * (j % 4); e(f"v_lshlrev_b32 v{t}, 16, v{X+j}\nv_and_b32 v{t+1}, s38, v{X+j}")
        for j in range(j0, j0 + 4):
            t = T + 2 * (j % 4)
            if LNV & 1: e(f"v_mul_f32 v{t}, v{t}, v{M+1}\nv_mul_f32 v{t+1}, v{t+1}, v{M+1}")
            else: e(f"v_pk_mul_f32 {vr(t,2)}, {vr(M,2)}, {vr(t,2)} op_sel:[1,0] op_sel_hi:[1,1]")
        for j in range(j0, j0 + 4):
            t = T + 2 * (j % 4); e(f"v_cvt_pk_bf16_f32 v{X+j}, v{t}, v{t+1}")
        if LNV & 8: e("s_nop 3")
        e(f"ds_write_b128 v182, {vr(X+j0,4)} offset:{32*j0}")
    if LNV & 4: e("s_waitcnt lgkmcnt(0)")
    for q in range(8):
        for j in range(2): e(f"ds_read_b64_tr_b16 {vr(X+4*q+2*j,2)}, v183 offset:{4352*j+128*q}")

def gen_ln_store(e):
    X = 128; M = 164
    e("v_lshrrev_b32 v180, 3, v1\nv_and_b32 v181, 7, v1")
    if XL: e("v_lshlrev_b32 v184, 15, v180\nv_lshl_add_u32 v184, v181, 4, v184\nv_lshlrev_b32 v185, 3, v180")
    else: e("v_lshrrev_b32 v184, 1, v1\nv_lshlrev_b32 v184, 13, v184\nv_and_b32 v185, 1, v1\nv_lshl_add_u32 v184, v185, 4, v184\nv_lshlrev_b32 v185, 3, v180")
    e(f"s_lshl_b32 s31, s2, 6\nv_cmp_eq_u32 vcc, 0, v181\ns_and_saveexec_b64 s[74:75], vcc")
    e(f"buffer_store_dwordx2 {vr(M,2)}, v185, s[8:11], s31 offen offset:{WS_STATS} sc1\ns_mov_b64 exec, s[74:75]")
    e(f"s_lshl_b32 s31, s2, {7 if XL else 5}\ns_add_u32 s31, s31, {WS_XN2}")
    for q in range(8):
        e(f"buffer_store_dwordx4 {vr(X+4*q,4)}, v184, s[8:11], s31 offen sc1\ns_add_u32 s31, s31, {32*8192}")

TA = 96; RA = 112
def gen_kaddr(e):
    e(f"v_lshlrev_b32 v48, 2, v1\nv_lshlrev_b32 v49, 12, v2\nv_add_u32 v49, {KTAB}, v49\nv_add_u32 v48, v48, v49")
    for r in range(8): e(f"v_xor_b32 v{TA+r}, {r<<5}, v48")
    T0 = [0,1,2,3,4,5,6,7,8,8,9,10,10,10,11,12]; T1 = [0,0,0,1,1,1,2,2,3,3,3,4,4,4,5,5]
    T2 = [6 + 2 * (i >> 2) + (i & 1) for i in range(16)]
    def pack4(L): return sum(v << (4 * i) for i, v in enumerate(L))
    e("v_and_b32 v50, 15, v1\nv_lshrrev_b32 v51, 4, v1\nv_and_b32 v52, 7, v50\nv_lshlrev_b32 v52, 2, v52\nv_cmp_lt_u32 vcc, 7, v50")
    e(f"v_mov_b32 v{RA}, v50")
    for x, T in ((1, T0), (2, T1), (3, T2)):
        e(f"v_mov_b32 v53, {hex(pack4(T[:8]))}\nv_mov_b32 v54, {hex(pack4(T[8:]))}\nv_cndmask_b32 v53, v53, v54, vcc\nv_lshrrev_b32 v53, v52, v53\nv_and_b32 v{RA+x}, 15, v53")
    for x in range(4):
        e(f"v_and_b32 v53, 14, v{RA+x}\nv_xor_b32 v53, v51, v53\nv_lshlrev_b32 v53, 4, v53\nv_lshl_add_u32 v53, v{RA+x}, 8, v53\nv_add_u32 v{RA+x}, v53, v49")
        for q in range(1, 4): e(f"v_xor_b32 v{RA+4+3*x+q-1}, {q<<6}, v{RA+x}")

def gen_kgen(e):
    P = 40
    for r in range(P, P + 7): e(f"v_lshlrev_b32 v{r}, 16, v{r}")
    def exp_bf(dst, src, t1, t2):
        e(f"v_mul_f32 v{t1}, {f32(L2E_HI)}, v{src}")
        e(f"s_mov_b32 s30, {f32(L2E_HI)}\nv_fma_f32 v{t2}, v{src}, s30, -v{t1}\nv_fmac_f32 v{t2}, {f32(L2E_LO)}, v{src}")
        e(f"v_exp_f32 v{t1}, v{t1}\nv_mul_f32 v{t2}, {f32(LN2)}, v{t2}\nv_fma_f32 v{dst}, v{t1}, v{t2}, v{t1}")
        rb(e, dst)
    exp_bf(46, 46, 48, 49); exp_bf(40, 40, 50, 51)
    e("v_mul_f32 v40, v40, v46\nv_mul_f32 v41, v41, v46")
    e("v_max_f32 v48, abs(v42), abs(v43)\nv_max3_f32 v48, abs(v44), abs(v45), v48")
    for m in ("quad_perm:[1,0,3,2]", "quad_perm:[2,3,0,1]", "row_ror:4", "row_ror:8"):
        e(f"v_max_f32_dpp v48, v48, v48 {m} {DPP}")
    e("v_readlane_b32 s30, v48, 0\nv_readlane_b32 s31, v48, 16\nv_readlane_b32 s71, v48, 32\nv_readlane_b32 s72, v48, 48")
    e("s_max_u32 s30, s30, s31\ns_max_u32 s71, s71, s72\ns_max_u32 s30, s30, s71\ns_and_b32 s30, s30, 0x7f800000\ns_sub_u32 s31, 0x7f000000, s30")
    e("v_mul_f32 v42, s31, v42\nv_mul_f32 v43, s31, v43")
    e("v_mul_f32 v46, s30, v46\nv_add_f32 v46, v46, v46")
    W1, W8, W256, W2_, W4, W16 = 56, 58, 60, 62, 64, 66
    def wexp(dst, p, t):
        e(f"v_mul_f32 v{t}, {f32(-L2E_HI*p)}, v40\nv_exp_f32 v{t}, v{t}")
        e(f"v_mul_f32 v{t+1}, {f32(float(p))}, v41")
        e(f"v_mul_f32 v{t+2}, {f32(I2PI_HI)}, v{t+1}\ns_mov_b32 s30, {f32(I2PI_HI)}\nv_fma_f32 v{t+3}, v{t+1}, s30, -v{t+2}\nv_fmac_f32 v{t+3}, {f32(I2PI_LO)}, v{t+1}")
        e(f"v_fract_f32 v{t+2}, v{t+2}\nv_add_f32 v{t+2}, v{t+2}, v{t+3}")
        e(f"v_cos_f32 v{dst}, v{t+2}\nv_sin_f32 v{dst+1}, v{t+2}")
        e(f"v_mul_f32 v{dst}, v{dst}, v{t}\nv_mul_f32 v{dst+1}, v{dst+1}, v{t}")
    C0 = 42
    old = e.lines; parts = []
    for dst, p, t in ((W8, 8, 48), (W256, 256, 52), (W1, 1, 68)):
        e.lines = []; wexp(dst, p, t); parts.append(e.lines)
    e.lines = old
    for i in range(len(parts[0])):
        for P_ in parts: e.lines.append(P_[i])
    def cm1(d, a, b): return f"v_pk_mul_f32 {vr(d,2)}, {vr(a,2)}, {vr(b,2)} op_sel_hi:[1,0]"
    def cm2(d, a, b): return f"v_pk_fma_f32 {vr(d,2)}, {vr(a,2)}, {vr(b,2)}, {vr(d,2)} op_sel:[1,1,0] op_sel_hi:[0,1,1] neg_lo:[1,0,0]"
    RF = 128; LF = 160; D = 208
    W24, W32, W512 = 68, 70, 72
    Lr = {i: 160 + 2 * i for i in range(27)}; Lr[0] = C0
    PR = 216; PL = 128
    ONE = 74
    e(f"v_mov_b32 v{ONE}, 1.0\nv_mov_b32 v{ONE+1}, 0")
    Rr = {0: ONE, 1: W8, 2: W16, 3: W24}
    for b in range(4, 32): Rr[b] = 76 + 4 * (b % 4) + 2 * ((b // 4) % 2)
    Rr[4] = W32
    G = {1: 8, 2: 13, 3: 16, 4: 19, 5: 21, 6: 23, 7: 25}
    groups = [
        [(W16, W8, W8, ('R', 2)), (Lr[8], C0, W256, ('L', 8)), (W2_, W1, W1, None), (W512, W256, W256, None), (Lr[1], C0, W1, ('L', 1))],
        [(W32, W16, W16, ('R', 4)), (W24, W16, W8, ('R', 3)), (W4, W2_, W2_, None), (Lr[13], Lr[8], W256, ('L', 13)), (Lr[16], Lr[8], W512, ('L', 16)), (Lr[2], C0, W2_, ('L', 2))],
    ]
    rest = [(Lr[19], Lr[13], W512, ('L', 19)), (Lr[21], Lr[16], W512, ('L', 21)), (Lr[3], Lr[1], W2_, ('L', 3)),
            (Lr[4], C0, W4, ('L', 4)), (Lr[5], Lr[1], W4, ('L', 5)), (Lr[6], Lr[2], W4, ('L', 6)),
            (Lr[23], Lr[19], W512, ('L', 23)), (Lr[25], Lr[21], W512, ('L', 25)), (Lr[7], Lr[3], W4, ('L', 7)),
            (Lr[9], Lr[8], W2_, ('L', 9)), (Lr[10], Lr[8], W4, ('L', 10)), (Lr[12], Lr[8], W8, ('L', 12)),
            (Lr[11], Lr[9], W4, ('L', 11)), (Lr[14], Lr[13], W4, ('L', 14)), (Lr[15], Lr[13], W8, ('L', 15)),
            (Lr[17], Lr[16], W4, ('L', 17)), (Lr[18], Lr[16], W8, ('L', 18)), (Lr[20], Lr[19], W8, ('L', 20)),
            (Lr[22], Lr[21], W8, ('L', 22)), (Lr[24], Lr[23], W8, ('L', 24)), (Lr[26], Lr[25], W8, ('L', 26))]
    for j in range(7):
        g = [(Rr[b], Rr[b - 4], W32, ('R', b)) for b in range(4 * j + 4, 4 * j + 8) if b != 4]
        g += rest[3 * j:3 * j + 3]
        groups.append(g)
    done = set()
    def cvt(tag):
        kind, i = tag
        src = Rr[i] if kind == 'R' else Lr[i]; dst = (PR if kind == 'R' else PL) + i
        e(f"v_cvt_pk_f16_f32 v{dst}, v{src}, {'-' if kind == 'L' else ''}v{src+1}"); done.add(tag)
    def fragread(x, dst):
        for q in range(4): e(f"ds_read_b128 {vr(dst+4*q,4)}, v{RA+x if q == 0 else RA+4+3*x+q-1}")
    Q = []
    def wr(kind, base, n, first):
        for r in range(0, n, 2):
            p = (PR if kind == 'R' else PL) + first + r
            if r + 1 < n: Q.append(({(kind, first + r), (kind, first + r + 1)}, f"ds_write2st64_b32 v{TA+r//2}, v{p}, v{p+1} offset0:{r} offset1:{r+1}"))
            else: Q.append(({(kind, first + r)}, f"ds_write_b32 v{TA+r//2}, v{p} offset:{256*r}"))
    RFa, RFb = 32, 92
    wr('R', 0, 16, 0); Q.append((set(), ('fr', 0, 0)))
    wr('R', 0, 16, 16); Q.append((set(), ('fr', 0, 1)))
    wr('L', 0, 13, 0); Q.append((set(), ('fr', 1, 2)))
    wr('L', 0, 14, 13); Q.append((set(), ('fr', 2, 3))); Q.append((set(), ('fr', 3, 4)))
    FD = {0: 216, 1: 232, 2: 160, 3: 176, 4: 192}
    allc = {('L', i) for i in range(27)}
    def drain(maxn=99):
        n = 0
        while Q and n < maxn:
            needs, t = Q[0]
            if isinstance(t, tuple):
                if t[2] >= 2 and not allc <= done: break
                fragread(t[1], FD[t[2]])
            else:
                if not needs <= done: break
                e(t)
            Q.pop(0); n += 1
    for tag in (('R', 0), ('R', 1), ('L', 0)): cvt(tag)
    prev = []
    for g in groups:
        for (d, a, b, tag) in g: e(cm1(d, a, b))
        for tag in prev: cvt(tag)
        drain(3)
        for (d, a, b, tag) in g: e(cm2(d, a, b))
        prev = [tag for (_, _, _, tag) in g if tag]
    for tag in prev: cvt(tag)
    drain()
    assert not Q
    DD = KD
    def kmfma(ti):
        for q in range(4):
            for ct in range(2):
                d = DD + 8 * ti + 4 * ct
                e(f"v_mfma_f32_16x16x32_f16 {vr(d,4)}, {vr(FD[2+ti]+4*q,4)}, {vr(FD[ct]+4*q,4)}, {'0' if q == 0 else vr(d,4)}")
    e("v_mov_b32 v31, v46\ns_waitcnt lgkmcnt(15)")
    kmfma(0)
    e("s_waitcnt lgkmcnt(4)")
    kmfma(1)
    e("s_waitcnt lgkmcnt(0)")
    kmfma(2)

KD = 64
def gen_kfin(e):
    D = KD
    e(f"v_mul_u32_u24 v8, 3072, v2\nv_lshl_add_u32 v8, v1, 4, v8\nv_add_u32 v8, {KX}, v8\nv_xor_b32 v9, 1, v2\nv_mul_u32_u24 v9, 3072, v9\nv_lshl_add_u32 v9, v1, 4, v9\nv_add_u32 v9, {KX}, v9")
    e(f"v_lshlrev_b32 v10, 2, v2\nv_add_u32 v10, {LCNT+16}, v10\nv_xor_b32 v11, 4, v10\nv_mov_b32 v12, 1")
    e("s_and_b32 s30, s29, 1\ns_cmp_eq_u32 s30, 1\ns_nop 7\ns_cbranch_scc1 A_KX1")
    for ti in range(3): e(f"ds_write_b128 v8, {vr(D+8*ti+4,4)} offset:{1024*ti}")
    e("s_branch A_KXD")
    e.label("A_KX1")
    for ti in range(3): e(f"ds_write_b128 v8, {vr(D+8*ti,4)} offset:{1024*ti}")
    for ti in range(3):
        for q in range(4 if ti < 2 else 2): e(f"v_mov_b32 v{D+8*ti+q}, v{D+8*ti+4+q}")
    e.label("A_KXD")
    e("ds_write_b32 v10, v12")
    e("v_and_b32 v48, 15, v1\nv_lshrrev_b32 v49, 4, v1\nv_and_b32 v52, 1, v2\nv_lshl_add_u32 v52, v52, 4, v48")
    e(f"v_and_b32 v53, 1, v49\nv_lshlrev_b32 v53, 2, v53\nv_lshl_add_u32 v53, v52, 3, v53\nv_lshrrev_b32 v56, 1, v49\nv_lshl_add_u32 v53, v56, 8, v53")
    e(f"v_lshlrev_b32 v53, 1, v53\nv_mul_u32_u24 v55, {KCH}, v28\nv_add_u32 v55, {KB}, v55\nv_sub_u32 v53, v55, v53\nv_add_u32 v53, {2*(2040-512)}, v53")
    e(f"v_lshlrev_b32 v56, 3, v52\nv_lshl_add_u32 v56, v49, 8, v56\nv_lshlrev_b32 v56, 1, v56\nv_sub_u32 v56, v55, v56\nv_add_u32 v56, {2*(2040-1024)}, v56")
    lds_poll(e, "A_KXP", "v11", 0, 1, 7)
    for ti in range(3): e(f"ds_read_b128 {vr(D+8*ti+4,4)}, v9 offset:{1024*ti}")
    e("s_waitcnt lgkmcnt(0)")
    for ti in range(3):
        for q in range(4 if ti < 2 else 2): e(f"v_add_f32 v{D+8*ti+q}, v{D+8*ti+q}, v{D+8*ti+4+q}\nv_mul_f32 v{D+8*ti+q}, v31, v{D+8*ti+q}")
    for ti in range(2):
        d = D + 8 * ti; o = KP + 2 * ti
        e(f"v_cvt_pk_bf16_f32 v{o}, v{d+3}, v{d+2}\nv_cvt_pk_bf16_f32 v{o+1}, v{d+1}, v{d}")
    f0, f8 = D + 16, D + 17
    e(f"v_and_b32 v57, 1, v52\nv_cmp_eq_u32 vcc, 1, v57\nv_cndmask_b32 v57, v{f0}, v{f8}, vcc")
    e(f"v_cvt_pk_bf16_f32 v{KP+4}, v{f8}, v{f8}\nv_cvt_pk_bf16_f32 v{KP+5}, v{f8}, v57\nv_cvt_pk_bf16_f32 v{KP+6}, v{f0}, v{f0}\nv_mov_b32 v{KP+7}, v{KP+6}")
    e(f"v_mov_b32 v{KP+8}, v53\nv_mov_b32 v{KP+9}, v56")

KP = 112
def gen_kwrite(e):
    for ti in range(2):
        o = KP + 2 * ti; off = 1024 if ti == 0 else 0
        e(f"ds_write_b64 v{KP+8}, {vr(o,2)} offset:{off+8}\nds_write_b64 v{KP+8}, {vr(o,2)} offset:{off+KS_OFF}")
    e(f"ds_write_b128 v{KP+9}, {vr(KP+4,4)}\nds_write_b64 v{KP+9}, {vr(KP+4,2)} offset:{KS_OFF-8}\nds_write_b64 v{KP+9}, {vr(KP+6,2)} offset:{KS_OFF}")
    e(f"v_mov_b32 v6, {LCNT}\nv_mov_b32 v12, 1\ns_mov_b64 exec, 1\nds_add_u32 v6, v12\ns_mov_b64 exec, -1")

def gen_A(e):
    srd(e, 8, 66, WS_SIZE)
    e("s_mov_b32 s38, 0xffff0000")
    e("s_cmp_lg_u32 s2, 255\ns_cbranch_scc1 A_NOZ\ns_cmp_lg_u32 s3, 0\ns_cbranch_scc1 A_NOZ")
    e(f"v_mov_b32 v3, 0\ns_mov_b32 s31, {WS_EPW}\nbuffer_load_dword v4, v3, s[8:11], s31 offen sc1\ns_waitcnt vmcnt(0)")
    e("v_add_u32 v4, 1, v4\nv_max_u32 v4, 1, v4\nv_cmp_eq_u32 vcc, 0, v1\ns_and_saveexec_b64 s[74:75], vcc")
    e("global_store_dword v3, v4, s[64:65] sc1\nbuffer_store_dword v4, v3, s[8:11], s31 offen sc1\ns_mov_b64 exec, s[74:75]\ns_waitcnt vmcnt(0)")
    e.label("A_NOZ")
    e("v_bfe_u32 v3, v1, 4, 1\nv_lshrrev_b32 v12, 5, v1\nv_bfe_u32 v13, v1, 2, 2\nv_and_b32 v15, 3, v1")
    e("v_lshl_add_u32 v12, v12, 3, v13\nv_lshlrev_b32 v12, 7, v12\nv_lshl_add_u32 v12, v3, 13, v12\nv_lshl_add_u32 v12, v15, 3, v12\nv_add_u32 v12, 32768, v12")
    e("v_lshrrev_b32 v13, 1, v13\nv_lshl_add_u32 v13, v3, 1, v13\nv_lshl_add_u32 v20, v13, 5, v12")
    for t in range(1, 4): e(f"v_xor_b32 v{20+t}, {t<<5}, v20")
    e("v_and_b32 v3, 31, v1\nv_lshrrev_b32 v12, 5, v1\nv_bfe_u32 v13, v3, 1, 3\nv_xor_b32 v13, v12, v13")
    e("v_lshl_add_u32 v3, v2, 6, v3\nv_lshlrev_b32 v3, 7, v3\nv_lshl_add_u32 v24, v13, 4, v3")
    for s in range(1, 4): e(f"v_xor_b32 v{24+s}, {s<<5}, v24")
    gen_kaddr(e)
    e(f"v_and_b32 v18, 31, v1\nv_lshl_add_u32 v18, v2, 6, v18\nv_lshlrev_b32 v18, 3, v18\nv_add_u32 v18, {LSTAT}, v18\nv_mov_b32 v19, {LCNT}")
    e.stamp(1)
    e("s_waitcnt vmcnt(1)")
    e.stamp(2)
    gen_kgen(e)
    gen_kfin(e)
    e("s_waitcnt vmcnt(0) lgkmcnt(0)")
    e.stamp(3)
    ACC = 128
    FA = [32, 56]
    e("s_cmp_eq_u32 s28, 1\ns_cbranch_scc1 A_G1")
    for i in range(3): e("s_barrier")
    srd(e, 16, 60, 0x1c0000)
    e("v_lshlrev_b32 v3, 10, v1\ns_lshr_b32 s31, s2, 3\ns_sub_u32 s31, s31, 28\ns_mul_i32 s31, s31, 458752\ns_add_u32 s32, s31, 393216\ns_lshl_b32 s30, s29, 17\ns_add_u32 s31, s31, s30\ns_add_u32 s33, s31, 65536")
    e("s_cmp_eq_u32 s29, 3\ns_cselect_b32 s34, 512, 0\ns_cselect_b32 s33, s32, s33\ns_sub_u32 s33, s33, s34")
    e("buffer_load_dword v15, v3, s[16:19], s33 offen offset:896\nbuffer_load_dword v15, v3, s[16:19], s31 offen offset:896")
    for i in range(6): e("s_barrier")
    e("s_waitcnt vmcnt(0)")
    e("ds_read_b64 v[16:17], v19 offset:32")
    gen_kwrite(e)
    e("s_branch A_CONV")
    e.label("A_G1")
    def reads(buf, s):
        L = []
        for mi in range(2): L.append(f"ds_read_b128 {vr(FA[buf]+16+4*mi,4)}, v{24+s} offset:{4096*mi}")
        for t in range(4):
            for j in range(2): L.append(f"ds_read_b64_tr_b16 {vr(FA[buf]+4*t+2*j,2)}, v{20+t} offset:{2048*s+512*j}")
        return L
    def mfmas(buf, zero=False):
        return [f"v_mfma_f32_32x32x16_bf16 {vr(ACC+16*(2*t+mi),16)}, {vr(FA[buf]+4*t,4)}, {vr(FA[buf]+16+4*mi,4)}, {'0' if zero else vr(ACC+16*(2*t+mi),16)}" for t in range(4) for mi in range(2)]
    def interleave(M, F, per=2):
        k = 0; n = len(F)
        for i, m in enumerate(M):
            e(m)
            cnt = -(-(n - k) // (len(M) - i)) if n - k > per * (len(M) - i) else min(per, n - k)
            for _ in range(cnt): e(F[k]); k += 1
        assert k == n
    e(f"s_mov_b32 s37, 0\ns_mov_b32 s36, 0\ns_mov_b32 s38, {STG}")
    e("s_barrier")
    e.stamp(4)
    for r in reads(0, 0): e(r)
    e("s_waitcnt lgkmcnt(0)")
    interleave(mfmas(0, True), reads(1, 1))
    e("s_branch A_K1")
    e.label("A_LOOP")
    for s in range(3):
        if s == 1: e.label("A_K1")
        e("s_waitcnt lgkmcnt(0)")
        F = reads((s + 1) % 2, s + 1)
        if s == 2:
            F = F + [f"s_cmp_eq_u32 s36, {2*STG}\ns_cselect_b32 s39, {(-2*STG) & 0xffffffff}, s38"] + [f"v_add_u32 v{20+i}, s39, v{20+i}\nv_add_u32 v{21+i}, s39, v{21+i}" for i in range(0, 8, 2)]
        interleave(mfmas(s % 2), F)
    e("s_waitcnt lgkmcnt(0)\ns_barrier")
    interleave(mfmas(1), reads(0, 0) + ["s_add_u32 s36, s36, s39\ns_add_u32 s37, s37, 1\ns_cmp_lt_u32 s37, 8"])
    e("s_cbranch_scc1 A_LOOP")
    e.stamp(5)
    if APRIO: e(f"s_setprio {APRIO}")
    e(f"v_lshrrev_b32 v12, 5, v1\nv_lshlrev_b32 v12, 4, v12\nv_add_u32 v12, {LCS}, v12")
    e("s_waitcnt lgkmcnt(0)")
    CS = 32
    e("ds_read_b64 v[4:5], v18\nds_read_b64 v[6:7], v18 offset:256\nds_read_b64 v[16:17], v19 offset:32")
    for t in range(4):
        for g in range(2):
            e(f"ds_read_b128 {vr(CS+16*t+4*g,4)}, v12 offset:{64*t+32*g}")
            e(f"ds_read_b128 {vr(CS+16*t+8+4*g,4)}, v12 offset:{256+64*t+32*g}")
    e(f"s_lshl_b32 s31, s24, 3\ns_lshl_b32 s30, s29, 1\ns_add_u32 s31, s31, s30\ns_mul_i32 s31, s31, 112\ns_lshl_b32 s30, s25, 2\ns_add_u32 s31, s31, s30\ns_lshl_b32 s31, s31, 10\ns_add_u32 s31, s31, {WS_H}\ns_add_u32 s30, s31, {112*1024}")
    e(f"s_lshl_b32 s35, s24, 2\ns_add_u32 s35, s35, s29\ns_mul_i32 s35, s35, 28\ns_add_u32 s35, s35, s25\ns_lshl_b32 s35, s35, 7\ns_add_u32 s35, s35, {WS_HF}")
    e("v_lshlrev_b32 v3, 4, v1\nv_mov_b32 v15, 0")
    e("s_waitcnt lgkmcnt(0)")
    for mi in range(2):
        b = 8 + 4 * mi; s = 4 + 2 * mi
        e(f"v_sub_f32 v{b}, 0, v{s}\nv_mul_f32 v{b+1}, {f32(-LOG2E)}, v{s+1}\nv_mul_f32 v{b+2}, v{s+1}, v{s+1}\nv_rcp_f32 v{b+2}, v{b+2}")
    TM = 96
    for t in range(4):
        for mi in range(2):
            a = ACC + 16 * (2 * t + mi); b = 8 + 4 * mi
            o = a + 8
            for p in range(4):
                G = a + 2 * p; U = a + 8 + 2 * p; cg = CS + 16 * t + 2 * p; cu = CS + 16 * t + 8 + 2 * p
                z = TM + 2 * p
                e(f"v_pk_fma_f32 {vr(G,2)}, {vr(cg,2)}, {vr(b,2)}, {vr(G,2)} op_sel_hi:[1,0,1]")
                e(f"v_pk_fma_f32 {vr(U,2)}, {vr(cu,2)}, {vr(b,2)}, {vr(U,2)} op_sel_hi:[1,0,1]")
                e(f"v_pk_mul_f32 {vr(z,2)}, {vr(b,2)}, {vr(G,2)} op_sel:[1,0] op_sel_hi:[1,1]")
            for p in range(4):
                z = TM + 2 * p
                e(f"v_exp_f32 v{z}, v{z}\nv_exp_f32 v{z+1}, v{z+1}")
            for p in range(4):
                G = a + 2 * p; U = a + 8 + 2 * p; z = TM + 2 * p
                e(f"v_pk_mul_f32 {vr(G,2)}, {vr(G,2)}, {vr(U,2)}")
                e(f"v_pk_fma_f32 {vr(z,2)}, {vr(z,2)}, {vr(b+2,2)}, {vr(b+2,2)} op_sel_hi:[1,0,0]")
            for p in range(4):
                z = TM + 2 * p
                e(f"v_rcp_f32 v{z}, v{z}\nv_rcp_f32 v{z+1}, v{z+1}")
            for p in range(4):
                G = a + 2 * p; z = TM + 2 * p
                e(f"v_pk_mul_f32 {vr(G,2)}, {vr(G,2)}, {vr(z,2)}")
            for p in range(4):
                G = a + 2 * p
                e(f"v_cvt_pk_bf16_f32 v{o+p}, v{G}, v{G+1}")
            e(f"buffer_store_dwordx4 {vr(o,4)}, v3, s[8:11], {'s31' if mi == 0 else 's30'} offen offset:{1024*t} sc1")
            if 2 * t + mi == F1AT:
                e(f"s_waitcnt vmcnt({F1AT-3})\ns_mov_b64 exec, 1\nbuffer_store_dwordx2 v[16:17], v15, s[8:11], s35 offen sc1\ns_mov_b64 exec, -1")
    e.stamp(6)
    gen_kwrite(e)
    if APRIO: e("s_setprio 0")
    e.label("A_CONV")
    e("v_and_b32 v24, 15, v1\nv_lshrrev_b32 v25, 4, v1")
    e(f"v_and_b32 v26, 3, v24\nv_mul_u32_u24 v26, {UP}, v26\nv_lshrrev_b32 v27, 2, v24\nv_lshl_add_u32 v26, v27, 7, v26\nv_lshl_add_u32 v26, v25, 4, v26")
    e(f"v_mul_u32_u24 v27, {UCH}, v28\nv_add_u32 v26, v26, v27\nv_and_b32 v31, 1, v2\nv_lshl_add_u32 v26, v31, 8, v26\nv_add_u32 v26, {UB}, v26")
    e(f"v_mul_u32_u24 v5, {KCH}, v28\nv_add_u32 v5, {KB}, v5")
    e(f"v_lshrrev_b32 v27, 1, v24\nv_sub_u32 v27, v25, v27\nv_add_u32 v27, 7, v27\nv_lshl_add_u32 v27, v27, 4, v5\nv_lshl_add_u32 v27, v31, 8, v27")
    e(f"v_and_b32 v29, 1, v24\nv_xor_b32 v29, 1, v29\nv_mul_u32_u24 v29, {KS_OFF}, v29\nv_add_u32 v27, v27, v29")
    e(f"v_mov_b32 v6, {LCNT}")
    lds_poll(e, "A_KU", "v6", 0, 8, 7)
    CA = 200
    FU = [32, 96]
    def creads(buf, s):
        L = []
        for p in range(8):
            L.append(f"ds_read_b128 {vr(FU[buf]+32+4*p,4)}, v27 offset:{512*(7-p)+64*s}")
            L.append(f"ds_read_b128 {vr(FU[buf]+4*p,4)}, v26 offset:{512*p+64*s}")
        return L
    for r in creads(0, 0): e(r)
    for s in range(4):
        if s == HFS:
            e("s_cmp_eq_u32 s28, 0\ns_cbranch_scc1 A_NOHF\nv_mov_b32 v3, 0\ns_waitcnt vmcnt(0)\ns_mov_b64 exec, 1\nbuffer_store_dwordx2 v[16:17], v3, s[8:11], s35 offen offset:8 sc1\ns_mov_b64 exec, -1")
            e.label("A_NOHF")
            e.stamp(7)
        e("s_waitcnt lgkmcnt(0)")
        nxt = creads((s + 1) % 2, s + 1) if s < 3 else []
        k = 0; cnt = 0
        for q in range(8):
            for t in range(q, 8):
                a = CA + 4 * t
                c = "0" if (s == 0 and q == 0) else vr(a, 4)
                e(f"v_mfma_f32_16x16x32_bf16 {vr(a,4)}, {vr(FU[s%2]+4*(t-q),4)}, {vr(FU[s%2]+32+4*q,4)}, {c}")
                cnt += 1
                if k < len(nxt) and cnt % 2 == 0: e(nxt[k]); k += 1
        assert k == len(nxt)
    e.stamp(8)
    e(f"v_mul_u32_u24 v8, {UCH}, v28\nv_lshl_add_u32 v8, v1, 4, v8\nv_add_u32 v8, {UB}, v8\nv_xor_b32 v9, 1, v31\nv_mad_u32_u24 v9, v9, s33, v8\nv_mad_u32_u24 v8, v31, s33, v8".replace("v_mul_u32_u24 v8", f"s_mov_b32 s33, {UP}\nv_mul_u32_u24 v8"))
    e(f"v_lshlrev_b32 v10, 2, v2\nv_add_u32 v10, {LCNT+16}, v10\nv_xor_b32 v11, 4, v10\nv_mov_b32 v12, 2\nv_mov_b32 v13, 3")
    e("ds_write_b32 v10, v12")
    lds_poll(e, "A_P0", "v11", 0, 2, 7)
    e("s_and_b32 s30, s29, 1\ns_cmp_eq_u32 s30, 1\ns_cbranch_scc1 A_ODD")
    for i in range(4): e(f"ds_write_b128 v8, {vr(CA+16+4*i,4)} offset:{1024*i}")
    e("s_branch A_J")
    e.label("A_ODD")
    e("s_nop 7")
    for i in range(4): e(f"ds_write_b128 v8, {vr(CA+4*i,4)} offset:{1024*i}")
    for i in range(16): e(f"v_mov_b32 v{CA+i}, v{CA+16+i}")
    e.label("A_J")
    e("ds_write_b32 v10, v13")
    e(f"v_mul_u32_u24 v26, {UCH}, v28\nv_lshl_add_u32 v26, v1, 3, v26\nv_lshl_add_u32 v26, v31, 11, v26\nv_add_u32 v26, {UB}, v26")
    for i in range(4): e(f"ds_read_b64 {vr(48+2*i,2)}, v26 offset:{3*UP+384+512*i}")
    lds_poll(e, "A_PR", "v11", 0, 3, 7)
    for i in range(4): e(f"ds_read_b128 {vr(32+4*i,4)}, v9 offset:{1024*i}")
    e(f"v_lshlrev_b32 v27, 3, v1\nv_lshl_add_u32 v27, v2, 11, v27\ns_lshl_b32 s31, s77, 13\ns_add_u32 s31, s31, {WS_AT}\ns_mov_b32 s38, 0xffff0000")
    e("s_waitcnt lgkmcnt(0)\nv_lshlrev_b32 v30, 16, v30")
    for i in range(4):
        a = CA + 4 * i; b = 32 + 4 * i; x = 48 + 2 * i; t = 60
        for q in range(4): e(f"v_add_f32 v{a+q}, v{a+q}, v{b+q}")
        e(f"v_cvt_pk_bf16_f32 v{b}, v{a}, v{a+1}\nv_cvt_pk_bf16_f32 v{b+1}, v{a+2}, v{a+3}")
        for q in range(4):
            e(f"v_lshlrev_b32 v{t+q}, 16, v{x+(q>>1)}" if q % 2 == 0 else f"v_and_b32 v{t+q}, s38, v{x+(q>>1)}")
            e(f"v_mul_f32 v{t+q}, v30, v{t+q}")
        e(f"v_cvt_pk_bf16_f32 v{b+2}, v{t}, v{t+1}\nv_cvt_pk_bf16_f32 v{b+3}, v{t+2}, v{t+3}")
        for q in range(4):
            e(f"v_lshlrev_b32 v{t+q}, 16, v{b+(q>>1)}" if q % 2 == 0 else f"v_and_b32 v{t+q}, s38, v{b+(q>>1)}")
            e(f"v_lshlrev_b32 v{t+4+q}, 16, v{b+2+(q>>1)}" if q % 2 == 0 else f"v_and_b32 v{t+4+q}, s38, v{b+2+(q>>1)}")
            e(f"v_add_f32 v{t+q}, v{t+q}, v{t+4+q}")
        e(f"v_cvt_pk_bf16_f32 v{a}, v{t}, v{t+1}\nv_cvt_pk_bf16_f32 v{a+1}, v{t+2}, v{t+3}")
        e(f"buffer_store_dwordx2 {vr(a,2)}, v27, s[8:11], s31 offen offset:{512*i} sc1")
    e(f"s_lshl_b32 s31, s77, 7\ns_lshl_b32 s30, s29, 3\ns_add_u32 s31, s31, s30\ns_add_u32 s31, s31, {WS_AF}")
    e("v_mov_b32 v3, 0\nv_cmp_eq_u32 vcc, 0, v1\ns_waitcnt vmcnt(0)\ns_and_saveexec_b64 s[74:75], vcc")
    e("buffer_store_dwordx2 v[16:17], v3, s[8:11], s31 offen sc1\ns_mov_b64 exec, s[74:75]")
    e.stamp(9)
    e.stamp_out("PA", 0, 0, vt=100)
    if env('DBG', 0): e.stamp_dbg("DA", 0, 9, 10, [2, 3, 6, 7, 9], vt=100)

NAME = "parallel_sum__ssm_conv_s4d__glu_gated_swiglu__prompt_kernel"
if __name__ == "__main__":
    Asm.PROFILE = len(sys.argv) > 2
    out = ["; @launch grid=(256,1,1) block=(512,1,1) lds=163840", '.amdgcn_target "amdgcn-amd-amdhsa--gfx950"\n.text']
    out.append(kernel_header(NAME) + gen())
    out.append('.section .rodata,"a"\n.p2align 6\n' + kernel_desc(NAME, 256, 256))
    open(sys.argv[1], "w").write("\n".join(out))
```

```python
import sys, math, os
import numpy as np
from asmlib import *

def env(n, d): return int(os.environ.get(n, str(d)))
DIAG = env('DIAG', 0); PRIO = env('PRIO', 3); PREF = env('PREF', 1); SLEEP = env('SLEEP', 8); ROT = env('ROT', 1); ROT2 = env('ROT2', 1)
APRIO = env('APRIO', 3); W2PF = env('W2PF', 1); XL = 1; GROW = env('GROW', 1); D1G = env('D1G', 4); G2P = env('G2P', 0); UPOS = env('UPOS', 1); TLBW = env('TLBW', 0); F1AT = env('F1AT', 6); LNV = env('LNV', 0); HFS = env('HFS', 1); NW0 = env('NW0', 2); RING = env('RING', 4); PACE = env('PACE', 1); PACEM = env('PACEM', 99); HPF = env('HPF', 0); CH = env('CH', 7); N6 = env('N6', 0); N7 = env('N7', 3); PFS = [int(c) for c in os.environ.get('PFS', '021111')]; SPIN = env('SPIN', 20000)
AB = env('AB', 0)
WS_STATS = 0x0
WS_EPW = 0x8000
WS_LNF = 0x40000
WS_HF = 0x50000
WS_AF = 0x80000
WS_XN2 = 0x100000
WS_H = 0x400000
WS_AT = 0xC00000
WS_SIZE = 0x1000000
STG = 49152
SPARE = 153600
KTAB = 2 * STG + 32768
KX = 2 * STG
UP = 4640; UCH = 4 * UP; UB = STG
KB = UB + 2 * UCH; KS_OFF = 4224; KCH = 147456 - KB
LCS = 163072; LCNT = LCS + 512; LSTAT = 160768
PLANE = 17408

LOG2E = math.log2(math.e)
L2E_HI = float(np.float32(LOG2E)); L2E_LO = float(np.float32(LOG2E - L2E_HI))
I2PI = 1 / (2 * math.pi)
I2PI_HI = float(np.float32(I2PI)); I2PI_LO = float(np.float32(I2PI - I2PI_HI))
LN2 = math.log(2)
DPP = "row_mask:0xf bank_mask:0xf"

def srd(e, d, ptr, nbytes):
    e(f"s_mov_b32 s{d}, s{ptr}\ns_mov_b32 s{d+1}, s{ptr+1}\ns_mov_b32 s{d+2}, {hex(nbytes)}\ns_mov_b32 s{d+3}, 0x00020000")

def poll(e, tag, load, check, sleep=None):
    e(f"s_mov_b32 s39, {SPIN}")
    e.label(f"{tag}_L")
    e(load); e("s_waitcnt vmcnt(0)"); e(check)
    e(f"s_cbranch_vccz {tag}_D\ns_sub_u32 s39, s39, 1\ns_cbranch_scc1 {tag}_D\ns_sleep {sleep or SLEEP}\ns_branch {tag}_L")
    e.label(f"{tag}_D")

def lds_poll(e, tag, vaddr, off, target, vt):
    e(f"s_mov_b32 s39, {SPIN*16}")
    e.label(f"{tag}_L")
    e(f"ds_read_b32 v{vt}, {vaddr} offset:{off}\ns_waitcnt lgkmcnt(0)\nv_cmp_gt_u32 vcc, {target}, v{vt}")
    e(f"s_cbranch_vccz {tag}_D\ns_sub_u32 s39, s39, 1\ns_cbranch_scc1 {tag}_D\ns_sleep 1\ns_branch {tag}_L")
    e.label(f"{tag}_D")

def merged(e, work, fillers, lead=0):
    old = e.lines; e.lines = []; work(); W = e.lines; e.lines = old
    n = len(W); m = len(fillers); k = 0
    for i in range(n + 1):
        while k < m and k * max(n - lead, 1) <= i * m: e(fillers[k]); k += 1
        if i < n: e.lines.append(W[i])
    assert k == m

def rb(e, r): e(f"v_cvt_pk_bf16_f32 v{r}, v{r}, v{r}\nv_lshlrev_b32 v{r}, 16, v{r}")

def gen():
    e = Asm()
    e("s_cmp_ge_u32 s2, 256\ns_cbranch_scc1 END")
    e.label("KSTART")
    e("s_getpc_b64 s[76:77]")
    e("s_load_dwordx16 s[40:55], s[0:1], 0\ns_load_dwordx8 s[56:63], s[0:1], 64\ns_load_dwordx4 s[64:67], s[0:1], 96")
    e.stamp(0)
    e("v_and_b32 v1, 63, v0\nv_lshrrev_b32 v2, 6, v0\nv_readfirstlane_b32 s3, v2\nv_and_b32 v2, 3, v2")
    if PREF:
        e("v_lshlrev_b32 v3, 6, v0\nv_min_u32 v3, KEND-KSTART-8, v3\ns_cmp_ge_u32 s3, 7\ns_cbranch_scc1 NOPF\nglobal_load_dword v31, v3, s[76:77]")
        e.label("NOPF")
    e(f"v_mov_b32 v6, 0\nv_mov_b32 v7, 0\nv_lshlrev_b32 v5, 3, v2\nv_add_u32 v5, {LCNT}, v5\nds_write_b64 v5, v[6:7]")
    e("s_and_b32 s30, s2, 7\ns_lshr_b32 s31, s2, 3")
    e("s_and_b32 s24, s30, 1\ns_lshl_b32 s24, s24, 2\ns_and_b32 s32, s31, 3\ns_add_u32 s24, s24, s32")
    e("s_lshr_b32 s25, s30, 1\ns_mul_i32 s25, s25, 7\ns_lshr_b32 s27, s31, 2\ns_add_u32 s25, s25, s27")
    e("s_lshl_b32 s26, s30, 2\ns_add_u32 s26, s26, s32")
    e("s_cmp_lt_u32 s2, 224\ns_cselect_b32 s28, 1, 0\ns_and_b32 s29, s3, 3\ns_lshl_b32 s77, s30, 5\ns_add_u32 s77, s77, s31")
    e("s_cmp_ge_u32 s3, 4\ns_cbranch_scc1 ROLE_B")
    e("v_lshrrev_b32 v28, 1, v2\nv_lshlrev_b32 v29, 1, v28\ns_lshl_b32 s36, s77, 2\nv_add_u32 v29, s36, v29")
    e("v_lshlrev_b32 v4, 1, v0\ns_lshl_b32 s36, s77, 9\nv_add_u32 v4, s36, v4\nv_xor_b32 v5, 128, v4")
    e("s_waitcnt lgkmcnt(0)")
    for i, (off, base) in enumerate(((4, 42), (4, 44), (4, 46), (4, 48), (5, 46), (5, 48), (29, 50))):
        e(f"global_load_ushort v{40+i}, v{off}, s[{base}:{base+1}]")
    e("global_load_ushort v30, v29, s[52:53]")
    e("s_barrier\ns_branch ROLE_A")
    e.label("ROLE_B")
    e("s_cmp_lg_u32 s3, 7\ns_cbranch_scc1 B_NOX")
    e("v_lshrrev_b32 v25, 3, v1\nv_lshlrev_b32 v25, 10, v25\nv_and_b32 v16, 7, v1\nv_lshl_add_u32 v25, v16, 4, v25\ns_lshl_b32 s31, s2, 13\nv_add_u32 v25, s31, v25\ns_waitcnt lgkmcnt(0)")
    for i in range(8): e(f"global_load_dwordx4 {vr(128+4*i,4)}, v25, s[40:41] offset:{128*i}")
    e.label("B_NOX")
    gen_B(e)
    e.label("ROLE_A")
    gen_A(e)
    e.label("END")
    e("s_endpgm")
    e.label("KEND")
    return e.text()

def dma_stage(e, groups=range(4)):
    for g in groups:
        e(f"s_add_u32 m0, s36, {4096*g}")
        for i in range(4):
            e(f"buffer_load_dwordx4 v{(4 if g < 2 else 8)+i}, {'s[12:15]' if g < 2 else 's[20:23]'}, s{32+g} offen offset:{1024*i} lds")
    if 3 not in groups: return
    e("s_add_u32 s37, s37, 1\ns_cmp_eq_u32 s37, 8\ns_cselect_b32 s37, 0, s37\ns_cselect_b32 s31, s69, s68")
    for g in range(4): e(f"s_add_u32 s{32+g}, s{32+g}, s31")
    e(f"s_add_u32 s36, s36, {STG}\ns_cmp_ge_u32 s36, {3*STG}\ns_cselect_b32 s31, {3*STG}, 0\ns_sub_u32 s36, s36, s31")

def cs_groups(k):
    base = (k % 3) * STG
    a = "v24" if base < 65536 - 8192 else "v26"; off0 = base if base < 65536 - 8192 else 0
    R = [f"ds_read_b128 {vr(240+4*i,4)}, {a} offset:{off0 + 2048*i}" for i in range(4)]
    M = [f"v_mfma_f32_16x16x32_bf16 v[20:23], v[16:19], {vr(240+4*i,4)}, v[20:23]" for i in range(4)]
    if env('CSOFF', 0) and k >= 2: return [], []
    return R, M

def gen_B(e):
    vm = VM(e)
    e("v_lshrrev_b32 v12, 3, v1\nv_and_b32 v16, 7, v1\nv_lshrrev_b32 v17, 4, v1\nv_lshrrev_b32 v3, 1, v2\nv_and_b32 v19, 1, v2")
    e("s_lshr_b32 s37, s2, 3\ns_and_b32 s37, s37, 3\ns_lshl_b32 s37, s37, 1\ns_add_u32 s37, s37, s27\ns_and_b32 s37, s37, 7" if ROT else "s_mov_b32 s37, 0")
    e("s_lshl_b32 s36, s29, 14\ns_mov_b32 s15, 0x00020000\ns_mov_b32 s23, 0x00020000")
    e("s_cmp_eq_u32 s29, 2\ns_cbranch_scc1 B_WOFF")
    e("v_xor_b32 v17, v16, v17\nv_lshlrev_b32 v12, 10, v12\nv_lshl_add_u32 v4, v17, 4, v12\nv_xor_b32 v18, 64, v4")
    for i in range(1, 4): e(f"v_add_u32 v{4+i}, {8192*i - 1024*i}, {'v4' if i % 2 == 0 else 'v18'}")
    for i in range(4): e(f"v_mov_b32 v{8+i}, v{4+i}")
    e(f"s_lshl_b32 s32, s24, 18\ns_lshl_b32 s31, s29, 17\ns_add_u32 s32, s32, s31\ns_lshl_b32 s31, s37, 7\ns_add_u32 s32, s32, s31\ns_add_u32 s33, s32, 32768\ns_add_u32 s34, s32, 65536\ns_add_u32 s35, s32, 98304")
    e(f"s_mov_b32 s68, 128\ns_mov_b32 s69, {(128-1024) & 0xffffffff}\ns_lshl_b32 s14, s28, 21\ns_lshl_b32 s22, s28, 21")
    e("s_waitcnt lgkmcnt(0)\ns_mov_b32 s12, s40\ns_mov_b32 s13, s41\ns_mov_b32 s20, s40\ns_mov_b32 s21, s41\ns_branch B_OFFD")
    e.label("B_WOFF")
    e("v_and_b32 v17, 1, v17\nv_lshlrev_b32 v17, 1, v17\nv_xor_b32 v17, v16, v17\nv_mul_u32_u24 v12, 3584, v12\nv_lshl_add_u32 v4, v17, 4, v12\nv_xor_b32 v17, 4, v17\nv_lshl_add_u32 v8, v17, 4, v12")
    for i in range(1, 4): e(f"v_add_u32 v{4+i}, {8*3584*i - 1024*i}, v4\nv_add_u32 v{8+i}, {8*3584*i - 1024*i}, v8")
    e(f"s_lshl_b32 s32, s25, 7\ns_mul_i32 s31, s37, {64*3584}\ns_add_u32 s32, s32, s31\ns_add_u32 s33, s32, {32*3584}\ns_mov_b32 s34, s32\ns_mov_b32 s35, s33")
    e(f"s_mov_b32 s68, {64*3584}\ns_mov_b32 s69, {(64*3584-512*3584) & 0xffffffff}\ns_mul_i32 s14, s28, 0x1c0000\ns_mul_i32 s22, s28, 0x1c0000")
    e("s_waitcnt lgkmcnt(0)\ns_mov_b32 s12, s56\ns_mov_b32 s13, s57\ns_mov_b32 s20, s58\ns_mov_b32 s21, s59")
    e.label("B_OFFD")
    e("s_barrier")
    srd(e, 8, 66, WS_SIZE); srd(e, 16, 60, 0 if AB & 1 else 0x1c0000)
    e("s_mov_b32 s38, 0xffff0000\nv_mov_b32 v54, 0")
    e("s_cmp_eq_u32 s29, 3\ns_cbranch_scc1 B_LN")
    e("s_cmp_eq_u32 s28, 1\ns_cbranch_scc1 B_LOAD")
    e("v_lshlrev_b32 v25, 10, v1\ns_lshr_b32 s31, s2, 3\ns_sub_u32 s31, s31, 28\ns_mul_i32 s31, s31, 458752\ns_lshl_b32 s30, s29, 17\ns_add_u32 s31, s31, s30")
    for i in range(2): e("buffer_load_dword v236, v25, s[16:19], s31 offen offset:384\ns_add_u32 s31, s31, 65536")
    e.label("B_LOAD")
    dma_stage(e); dma_stage(e, range(D1G))
    e("s_branch B_JOIN")
    e.label("B_LN")
    gen_ln(e)
    e.label("B_JOIN")
    srd(e, 4, 40, 0x200000)
    e("v_and_b32 v27, 255, v0")
    e("v_and_b32 v24, 3, v1\nv_lshl_add_u32 v24, v3, 2, v24\nv_bfe_u32 v25, v1, 3, 1\nv_lshl_add_u32 v25, v19, 1, v25\nv_lshlrev_b32 v25, 1, v25\nv_xor_b32 v24, v24, v25\nv_lshlrev_b32 v24, 4, v24")
    e(f"v_lshrrev_b32 v25, 2, v1\nv_lshl_add_u32 v24, v25, 7, v24\nv_lshl_add_u32 v24, v19, 13, v24\nv_add_u32 v24, 32768, v24\nv_add_u32 v26, {2*STG}, v24")
    e("v_and_b32 v20, 1, v1\nv_lshlrev_b32 v20, 4, v20\nv_mov_b32 v21, 0x3f80\nv_lshlrev_b32 v21, v20, v21\nv_bfe_u32 v22, v1, 1, 2")
    for j in range(4): e(f"v_cmp_eq_u32 vcc, {j}, v22\nv_cndmask_b32 v{16+j}, 0, v21, vcc")
    for i in range(4): e(f"v_mov_b32 v{20+i}, 0\nv_mov_b32 v{232+i}, 0")
    e("v_lshlrev_b32 v123, 10, v1\ns_lshr_b32 s70, s2, 3\ns_lshl_b32 s70, s70, 16")
    lab = [0]
    def stage(k, aux=lambda: None, work=lambda: None, fill=None):
        R, M = cs_groups(k)
        for r in R: e(r)
        if k + 2 < 8:
            lab[0] += 1; n = lab[0]
            e(f"s_cmp_eq_u32 s29, 3\ns_cbranch_scc1 B_AUX{n}")
            if k == 0 and D1G < 4: dma_stage(e, range(D1G, 4))
            dma_stage(e)
            e(f"s_branch B_AJ{n}")
            e.label(f"B_AUX{n}")
            aux()
            e.label(f"B_AJ{n}")
        def w2():
            work()
            e("s_waitcnt lgkmcnt(0)")
            for m in M: e(m)
        merged(e, w2, fill or [])
    def endstage(k, n=16):
        lab[0] += 1
        e(f"s_cmp_eq_u32 s29, 3\ns_cbranch_scc1 B_NW{lab[0]}\ns_waitcnt vmcnt({n})")
        e.label(f"B_NW{lab[0]}")
        e("s_waitcnt lgkmcnt(0)\ns_barrier")
        if DIAG == 1: e.stamp(k + 1)
    pfl = [0, 1, 2, 4, 5, 6]
    def pf(n):
        for _ in range(n): e(f"buffer_load_dword v236, v123, s[16:19], s70 offen offset:{128*pfl.pop(0)}")
    if not DIAG: e.stamp(1)
    endstage(0, 4 * D1G)
    if not DIAG: e.stamp(2)
    if PRIO: e(f"s_setprio {PRIO}")
    chk2 = "v_cmp_ne_u64 vcc, v[112:113], v[126:127]\nv_cmp_ne_u64 s[74:75], v[114:115], v[126:127]\ns_or_b64 vcc, vcc, s[74:75]\nv_cmp_ne_u64 s[74:75], v[116:117], v[126:127]\ns_or_b64 vcc, vcc, s[74:75]\nv_cmp_ne_u64 s[74:75], v[118:119], v[126:127]\ns_or_b64 vcc, vcc, s[74:75]"
    lfl = f"s_mov_b32 s72, {WS_LNF}\nv_lshlrev_b32 v122, 4, v1\n" + "\n".join(f"buffer_load_dwordx2 v[{112+2*q}:{113+2*q}], v122, s[8:11], s72 offen offset:{1024*q} sc1" for q in range(4))
    def aux0(): gen_ln_store(e); e("global_load_dword v126, v54, s[64:65] sc1")
    def aux1():
        e("s_waitcnt vmcnt(0)\nv_cmp_eq_u32 vcc, 0, v126\ns_cbranch_vccz B_RDY_D")
        poll(e, "B_RDY", "global_load_dword v126, v54, s[64:65] sc1", "v_cmp_eq_u32 vcc, 0, v126")
        e(f"v_not_b32 v127, v126\ns_lshl_b32 s31, s2, 4\ns_add_u32 s31, s31, {WS_LNF}")
        e("s_mov_b64 exec, 1\nbuffer_store_dwordx2 v[126:127], v54, s[8:11], s31 offen sc1\ns_mov_b64 exec, -1")
        if TLBW:
            e("v_and_b32 v122, 15, v1\nv_lshlrev_b32 v122, 20, v122\ns_lshl_b32 s31, s2, 7\ns_add_u32 s31, s31, 0x30000")
            e("buffer_load_dword v236, v122, s[8:11], s31 offen sc1\nglobal_load_dword v236, v54, s[62:63]")
        pf(PFS[2])
    def aux4(): e(lfl); pf(PFS[4])
    def aux5():
        e(f"s_waitcnt vmcnt({PFS[4]})\n" + chk2 + "\ns_cbranch_vccz B_LNF_D")
        poll(e, "B_LNF", lfl, chk2, sleep=16)
        e(f"v_mov_b32 v49, {LCNT}\nds_write_b64 v49, v[126:127] offset:32")
        pf(PFS[5])
    stage(0, aux0); endstage(1)
    stage(1, lambda: pf(PFS[1])); endstage(2)
    stage(2, aux1); endstage(3)
    stage(3, lambda: pf(PFS[3])); endstage(4)
    stage(4, aux4); endstage(5)
    def addr5():
        e("v_and_b32 v50, 127, v27\nv_lshlrev_b32 v51, 7, v27\nv_subrev_u32 v52, 120, v51\nv_max_i32 v52, 0, v52\nv_lshlrev_b32 v57, 3, v27")
        e(f"v_mul_u32_u24 v44, 2731, v27\nv_lshrrev_b32 v44, 16, v44\nv_mul_u32_u24 v49, 24, v44\nv_sub_u32 v49, v27, v49\nv_mul_u32_u24 v44, {UP}, v44\nv_lshl_add_u32 v44, v49, 4, v44")
        e(f"v_mul_u32_u24 v55, {KCH}, v3\nv_add_u32 v55, {KB}, v55\nv_lshl_add_u32 v45, v50, 3, v55\nv_lshlrev_b32 v46, 4, v27\nv_add_u32 v46, {UB}, v46")
        e(f"v_and_b32 v48, 3, v1\nv_lshl_add_u32 v48, v3, 2, v48\nv_lshlrev_b32 v48, 5, v48\nv_and_b32 v49, 1, v2\nv_lshl_add_u32 v48, v49, 8, v48\nv_bfe_u32 v49, v1, 4, 1\nv_lshl_add_u32 v48, v49, 4, v48\nv_add_u32 v48, {LCS}, v48")
        e(f"v_mov_b32 v49, {LCNT}\nv_mov_b32 v47, 1\nv_add_u32 v43, {LSTAT}, v57")
        e("v_lshrrev_b32 v40, 3, v1\nv_and_b32 v41, 7, v1\nv_bfe_u32 v42, v1, 4, 1\nv_lshlrev_b32 v42, 2, v42\nv_xor_b32 v41, v41, v42\nv_lshlrev_b32 v40, 10, v40\nv_lshl_add_u32 v40, v41, 4, v40\nv_add_u32 v41, 7168, v40")
        e("v_lshrrev_b32 v38, 5, v1\nv_bfe_u32 v39, v1, 2, 2\nv_lshl_add_u32 v38, v38, 2, v39\nv_lshlrev_b32 v38, 7, v38")
        e("v_lshrrev_b32 v39, 1, v39\nv_lshl_add_u32 v38, v39, 6, v38\nv_bfe_u32 v39, v1, 4, 1\nv_lshl_add_u32 v38, v39, 5, v38\nv_and_b32 v39, 3, v1\nv_lshl_add_u32 v38, v39, 3, v38\nv_xor_b32 v39, 64, v38")
    stage(5, aux5, addr5)
    if env('NTX', 4): e(f"s_xor_b32 s27, s27, {env('NTX', 4)}")
    e("s_mul_i32 s32, s29, 458752\ns_lshl_b32 s31, s27, 7\ns_add_u32 s32, s32, s31")
    NR = 20 - RING; nres_end = min(28, NR + 12); nstream = 28 - nres_end
    order = list(range(NR, NR + nstream)) + list(range(0, NR)) + list(range(NR + nstream, nres_end)) + list(range(nres_end, 28))
    phys = {i: 4 * ((p % 14) // 2) + 2 * (p // 14) + (p & 1) for p, i in enumerate(order)}
    posn = {i: p for p, i in enumerate(order)}
    e(f"s_mul_i32 s35, s29, 12288\ns_add_u32 s34, s35, {2*STG}")
    e("v_mov_b32 v4, v40\nv_mov_b32 v5, v41\nv_add_u32 v6, s34, v38\nv_add_u32 v7, s34, v39\nv_add_u32 v8, s35, v38\nv_add_u32 v9, s35, v39")
    if not XL: e(f"s_lshl_b32 s36, s77, 13\ns_add_u32 s36, s36, {WS_XN2}\ns_add_u32 s30, s36, 4096\ns_sub_u32 s71, s30, 24\ns_lshl_b32 s70, s24, 11")
    if XL: e(f"s_lshr_b32 s36, s77, 2\ns_lshl_b32 s36, s36, 15\ns_and_b32 s30, s77, 3\ns_lshl_b32 s30, s30, 5\ns_add_u32 s36, s36, s30\ns_add_u32 s36, s36, {WS_XN2}\ns_add_u32 s30, s36, 16384\ns_sub_u32 s71, s30, 120\ns_lshl_b32 s70, s24, 11")
    endstage(6)
    if not DIAG: e.stamp(3)
    wid = {}; slot_of = {}
    def w2txt(i, j):
        slot_of[i] = j
        wid[i] = vm.add('d', 2)
        return [f"s_add_u32 m0, {'s34' if j < 6 else 's35'}, {2048*(j%6)}\ns_add_u32 s33, s32, {16384*phys[i]}\nbuffer_load_dwordx4 v4, s[16:19], s33 offen lds",
                f"buffer_load_dwordx4 v5, s[16:19], s33 offen offset:1024 lds"]
    def w2dma(i, j):
        for t in w2txt(i, j): e(t)
    vm.reset()
    e("ds_read_b64 v[14:15], v49 offset:32")
    R6, M6 = cs_groups(6)
    for r in R6: e(r)
    e("s_cmp_eq_u32 s29, 3\ns_cbranch_scc1 B_K6\ns_waitcnt vmcnt(0)")
    e.label("B_K6")
    sid = vm.op(f"buffer_load_dwordx2 v[124:125], v57, s[8:11], s70 offen offset:{WS_STATS} sc1")
    vm.op("buffer_load_dwordx4 v[60:63], v51, s[8:11], s36 offen sc1"); vm.op("buffer_load_dwordx4 v[68:71], v51, s[8:11], s36 offen offset:16 sc1")
    e("s_mov_b64 exec, 1")
    vm.op("buffer_load_dwordx2 v[58:59], v52, s[8:11], s36 offen sc1"); uid = vm.op("buffer_load_dwordx2 v[66:67], v52, s[8:11], s36 offen offset:16 sc1")
    e("s_mov_b64 exec, -1")
    e("s_waitcnt lgkmcnt(0)")
    for m in M6: e(m)
    for i in range(N6): w2dma(i, i)
    endstage(7, 63)
    ACC = 192; WT = [16, 24]; HR = 32
    def wreg(i): return 96 + 8 * i if i < 12 else 88 - 8 * (i - 12)
    def wread(j, dst):
        for dt in range(2):
            for jj in range(2):
                e(f"ds_read_b64_tr_b16 {vr(dst+4*dt+2*jj,2)}, v{(6 if j < 6 else 8)+dt} offset:{2048*(j%6)+1024*jj}")
    vm.wait(sid)
    e(f"ds_write_b64 v43, v[124:125]")
    def post7():
        e("v_cmp_eq_u32 vcc, 0, v27")
        for r in (58, 59, 66, 67):
            e(f"v_cndmask_b32 v{r}, v{r}, v232, vcc\nv_mov_b32_dpp v{r}, v{r+4} wave_shr:1 row_mask:0xf bank_mask:0xf")
        for h in range(2):
            Dd = 60 + 8 * h
            V1, V2, V3 = 200 + 12 * h, 204 + 12 * h, 208 + 12 * h
            for i in range(4):
                e(f"v_alignbit_b32 v{V1+i}, v{Dd+i}, v{Dd+i-1}, 16\nv_mov_b32 v{V2+i}, v{Dd+i-1}\nv_alignbit_b32 v{V3+i}, v{Dd+i-1}, v{Dd+i-2}, 16")
        e("v_cmp_gt_u32 s[68:69], 192, v27\nv_cmp_gt_u32 s[70:71], 15, v50".replace("192, v27", "s30, v27"))
    e("s_mov_b32 s30, 192")
    stage(7)
    for m in ("row_ror:4", "row_ror:8"):
        for i in range(4): e(f"v_add_f32_dpp v{20+i}, v{20+i}, v{20+i} {m} {DPP}")
    e("ds_write_b128 v48, v[20:23]")
    vm.wait(uid)
    merged(e, post7, sum([w2txt(i, i) for i in range(N6, N7)], []))
    e("s_waitcnt lgkmcnt(0)\ns_barrier")
    if DIAG == 1: e.stamp(9)
    if not DIAG: e.stamp(4)
    if DIAG == 4: e.stamp(1)
    def ucopies():
        for h in range(2):
            for delta, src in ((0, 60 + 8 * h), (1, 200 + 12 * h), (2, 204 + 12 * h), (3, 208 + 12 * h)):
                e(f"ds_write_b128 v46, {vr(src,4)} offset:{(3-delta)*UP + 384 + UCH*h}")
        e(f"s_mov_b64 exec, s[68:69]\nds_write_b128 v44, v[232:235] offset:{UB}")
        e(f"s_mov_b64 exec, s[70:71]\nds_write_b64 v45, v[232:233] offset:4096\nds_write_b64 v45, v[232:233] offset:{KS_OFF+4088}")
        e("s_mov_b64 exec, 1\nds_add_u32 v49, v47\ns_mov_b64 exec, -1")
    if UPOS == 0: ucopies()
    for i in range(N7, 12): w2dma(i, i)
    if UPOS == 1: ucopies()
    nd = [12]
    def refill(slots):
        for j in slots:
            if nd[0] < nres_end: w2dma(nd[0], j); nd[0] += 1
    vm.wait(wid[5])
    for i in range(6): wread(i, wreg(i))
    e("s_waitcnt lgkmcnt(0)")
    refill(range(6))
    if UPOS == 2: ucopies()
    vm.wait(wid[11])
    for i in range(6, 12): wread(i, wreg(i))
    e("s_waitcnt lgkmcnt(0)")
    refill(range(6, 12))
    if not DIAG: e.stamp(5)
    if PRIO: e("s_setprio 0")
    if NR > 12:
        vm.wait(wid[NR - 1], " lgkmcnt(0)")
        for i in range(12, NR): wread(slot_of[i], wreg(i))
        e("s_waitcnt lgkmcnt(0)")
        refill([slot_of[i] for i in range(12, NR)])
    if DIAG == 4: e.stamp(9)
    if not DIAG: e.stamp(6)
    e(f"v_lshrrev_b32 v10, 3, v1\nv_min_u32 v10, 6, v10\nv_lshlrev_b32 v10, 7, v10\nv_bfe_u32 v11, v1, 2, 1\nv_lshl_add_u32 v10, v11, 3, v10\ns_mul_i32 s31, s26, {28*128}\ns_mul_i32 s30, s29, {7*128}\ns_add_u32 s31, s31, s30\ns_add_u32 s31, s31, {WS_HF}")
    e(f"s_lshl_b32 s36, s26, 1\ns_mul_i32 s36, s36, 112\ns_mul_i32 s30, s29, 28\ns_add_u32 s36, s36, s30\ns_lshl_b32 s36, s36, 10\ns_add_u32 s36, s36, {WS_H}\ns_lshl_b32 s70, s27, 7\ns_add_u32 s70, s70, s36")
    srd(e, 20, 62, 0x200000)
    e(f"v_lshrrev_b32 v11, 1, v1\nv_lshlrev_b32 v11, 10, v11\nv_and_b32 v12, 1, v1\nv_mul_u32_u24 v12, {112*1024}, v12\nv_add_u32 v11, v11, v12")
    e("s_lshl_b32 s71, s26, 16\ns_lshl_b32 s30, s27, 7\ns_add_u32 s71, s71, s30\nv_bfe_u32 v12, v0, 2, 6\nv_lshlrev_b32 v12, 10, v12\nbuffer_load_dword v3, v12, s[4:7], s71 offen")
    e(f"s_mov_b32 s72, -1\ns_mov_b32 s73, 0xffffff\ns_mov_b32 s39, {SPIN}")
    e("s_waitcnt vmcnt(0)\ns_mov_b32 s33, s31\nv_mov_b32 v4, v10\nv_mov_b32 v5, v11\ns_mov_b64 s[74:75], 0")
    def need(j):
        if AB & 2: return
        bit = 8 * (j % 7) + 4 * (j // 7)
        w_, b_ = (72, bit) if bit < 32 else (73, bit - 32)
        e(f"s_bitcmp0_b32 s{w_}, {b_}\ns_cbranch_scc1 B_HF_D{j}")
        e.label(f"B_HF_L{j}")
        e("buffer_load_dwordx2 v[12:13], v4, s[8:11], s33 offen sc1\ns_cmp_eq_u64 s[74:75], 0")
        e(f"s_cbranch_scc1 B_HF_W{j}\ns_mov_b64 exec, s[74:75]\nbuffer_load_dword v3, v5, s[8:11], s70 offen sc1\ns_mov_b64 exec, -1\ns_waitcnt vmcnt(1)\ns_branch B_HF_X{j}")
        e.label(f"B_HF_W{j}")
        e("s_waitcnt vmcnt(0)")
        e.label(f"B_HF_X{j}")
        e("v_cmp_eq_u64 vcc, v[12:13], v[14:15]\ns_and_b64 s[74:75], vcc, s[72:73]\ns_andn2_b64 s[72:73], s[72:73], vcc")
        e(f"s_bitcmp0_b32 s{w_}, {b_}\ns_cbranch_scc1 B_HF_E{j}")
        e(f"s_sub_u32 s39, s39, 1\ns_cbranch_scc1 B_HF_E{j}\ns_sleep {env('HSL', 1)}\ns_branch B_HF_L{j}")
        e.label(f"B_HF_E{j}")
        e(f"s_cmp_eq_u64 s[74:75], 0\ns_cbranch_scc1 B_HF_D{j}\ns_mov_b64 exec, s[74:75]\nbuffer_load_dword v3, v5, s[8:11], s70 offen sc1\ns_mov_b64 exec, -1\ns_mov_b64 s[74:75], 0")
        e.label(f"B_HF_D{j}")
    for j in range(NW0): need(j)
    if not DIAG: e.stamp(7)
    if DIAG == 3: e.stamp(1)
    if G2P: e(f"s_setprio {G2P}")
    vm.reset()
    e(f"v_lshlrev_b32 v10, 4, v1\nv_add_u32 v11, {112*1024}, v10")
    free = [HR + 8 * i for i in range(RING)]
    pfc = [0]
    def hpf():
        if pfc[0] * CH < 28:
            e(f"s_mov_b64 exec, {hex((1 << (2*CH)) - 1)}")
            vm.op(f"buffer_load_dword v12, v13, s[8:11], s70 offen sc1\ns_add_u32 s70, s70, {1024*CH}\ns_mov_b64 exec, -1")
            pfc[0] += 1
    hreg = {}; hid = {}; nxt = [0]
    def hload(maxn=99):
        n = 0
        while nxt[0] < 28 and free and n < maxn:
            n += 1
            i = order[nxt[0]]; nxt[0] += 1
            b = free.pop(0); hreg[i] = b
            if posn[i] % 2 == 0 and posn[i] // 2 >= NW0: need(posn[i] // 2)
            e(f"s_add_u32 s31, s36, {0 if AB & 16 else 1024*phys[i]}")
            vm.op(f"buffer_load_dwordx4 {vr(b,4)}, v10, s[8:11], s31 offen sc1")
            hid[i] = vm.op(f"buffer_load_dwordx4 {vr(b+4,4)}, v11, s[8:11], s31 offen sc1")
    if HPF:
        e(f"v_lshrrev_b32 v13, 1, v1\nv_lshlrev_b32 v13, 10, v13\nv_and_b32 v12, 1, v1\nv_mul_u32_u24 v12, {112*1024}, v12\nv_add_u32 v13, v13, v12")
        for _ in range(HPF): hpf()
    hload()
    def is_lds(i): return i >= NR
    tcount = [0]; wt_of = {}
    def prefetch_w(pos):
        if pos < 28 and is_lds(order[pos]):
            i = order[pos]
            if i >= nres_end: vm.wait(wid[i])
            wt_of[i] = WT[tcount[0] % 2]; tcount[0] += 1
            wread(slot_of[i], wt_of[i])
    prefetch_w(0)
    streamed = nres_end
    fin = {}
    def at_loads(count):
        e(f"s_lshl_b32 s31, s27, 18\ns_lshl_b32 s30, s26, 7\ns_add_u32 s31, s31, s30\ns_add_u32 s31, s31, {WS_AT}")
        for j in range(4):
            t = f"buffer_load_dwordx2 {vr(fin['A']+2*j,2)}, v{fin['T']+3}, s[8:11], s31 offen sc1\ns_add_u32 s31, s31, 4096"
            if count: vm.op(t)
            else: e(t)
    AFPOS = env('AFPOS', 28 - RING - GROW); ATPOS = 27
    for pos, i in enumerate(order):
        if is_lds(i):
            e("s_waitcnt lgkmcnt(0)")
            if streamed < 28:
                w2dma(streamed, slot_of[i]); streamed += 1
        prefetch_w(pos + 1)
        vm.wait(hid[i])
        if DIAG == 3 and pos in (0, 4, 8, 12, 16, 20, 24, 27): e.stamp(2 + (0, 4, 8, 12, 16, 20, 24, 27).index(pos))
        wb = wt_of[i] if is_lds(i) else wreg(i)
        b = hreg[i]
        for dt in range(2):
            for mi in range(2):
                a = ACC + 16 * (2 * dt + mi)
                e(f"v_mfma_f32_32x32x16_bf16 {vr(a,16)}, {vr(wb+4*dt,4)}, {vr(b+4*mi,4)}, {'0' if pos == 0 else vr(a,16)}")
        free.append(b)
        if not is_lds(i): free.append(wb)
        hload(2 if pos < GROW else 1)
        if pos == AFPOS:
            assert len(free) >= 4
            fin['X'] = free.pop(); fin['A'] = free.pop(); T = fin['T'] = free.pop(0)
            e(f"v_bfe_u32 v{T}, v0, 4, 4\nv_and_b32 v{T+1}, 15, v0\nv_lshlrev_b32 v{T+2}, 12, v{T}\nv_lshl_add_u32 v{T+2}, v{T+1}, 3, v{T+2}\nv_lshlrev_b32 v{T+3}, 14, v{T+1}\nv_lshl_add_u32 v{T+3}, v{T}, 3, v{T+3}\nv_lshrrev_b32 v{T+4}, 1, v1\nv_lshlrev_b32 v{T+4}, 7, v{T+4}\nv_and_b32 v{T+5}, 1, v1\nv_lshl_add_u32 v{T+4}, v{T+5}, 4, v{T+4}")
            e(f"s_lshl_b32 s37, s27, 12\ns_lshr_b32 s30, s26, 4\ns_lshl_b32 s30, s30, 3\ns_add_u32 s37, s37, s30\ns_add_u32 s37, s37, {WS_AF}")
            e("s_lshl_b32 s71, s26, 16\ns_lshl_b32 s30, s27, 7\ns_add_u32 s71, s71, s30")
            afid = vm.op(f"buffer_load_dwordx2 v[12:13], v{T+4}, s[8:11], s37 offen sc1")
            for r in range(4): vm.op(f"buffer_load_dwordx2 {vr(fin['X']+2*r,2)}, v{T+2}, s[4:7], s71 offen offset:{1024*r}")
        if pos == ATPOS:
            vm.wait(afid)
            e("v_cmp_ne_u64 s[68:69], v[12:13], v[14:15]")
            at_loads(True)
    if not DIAG: e.stamp(8)
    T = fin['T']
    e(f"v_and_b32 v3, 31, v1\nv_mul_u32_u24 v3, 272, v3\nv_lshrrev_b32 v8, 5, v1\nv_lshl_add_u32 v3, v8, 4, v3\nv_add_u32 v4, s34, v3\nv_add_u32 v3, s35, v3")
    for dt in range(2):
        for mi in range(2):
            a = ACC + 16 * (2 * dt + mi)
            for g in range(4):
                e(f"ds_write_b128 v{3+mi}, {vr(a+4*g,4)} offset:{dt*128 + g*32}")
    e("s_cmp_eq_u64 s[68:69], 0\ns_cbranch_scc1 B_AF_OK")
    poll(e, "B_AF", f"buffer_load_dwordx2 v[12:13], v{T+4}, s[8:11], s37 offen sc1", "v_cmp_ne_u64 vcc, v[12:13], v[14:15]", sleep=2)
    at_loads(False)
    e.label("B_AF_OK")
    e(f"v_and_b32 v3, 7, v{T}\nv_mul_u32_u24 v3, 1088, v3\nv_lshl_add_u32 v3, v{T+1}, 4, v3\nv_lshrrev_b32 v4, 3, v{T}\nv_mul_u32_u24 v4, {2*STG}, v4\nv_add_u32 v3, v3, v4")
    e("s_waitcnt lgkmcnt(0)\ns_barrier")
    Pp = 192
    XR = fin['X']; AR = fin['A']
    for i in range(4):
        for w in range(4):
            e(f"ds_read_b128 {vr(Pp+16*i+4*w,4)}, v3 offset:{272*i + 12288*w}")
    e("s_waitcnt vmcnt(0)")
    XA = 16
    for i in range(4):
        for j in range(4):
            xs = XR + 2 * i + (j >> 1); as_ = AR + 2 * j + (i >> 1)
            e(f"v_lshlrev_b32 v{4+j}, 16, v{xs}" if j % 2 == 0 else f"v_and_b32 v{4+j}, s38, v{xs}")
            e(f"v_lshlrev_b32 v{8+j}, 16, v{as_}" if i % 2 == 0 else f"v_and_b32 v{8+j}, s38, v{as_}")
        e("v_pk_add_f32 v[4:5], v[4:5], v[8:9]\nv_pk_add_f32 v[6:7], v[6:7], v[10:11]")
        e(f"v_cvt_pk_bf16_f32 v8, v4, v5\nv_cvt_pk_bf16_f32 v9, v6, v7")
        for j in range(4):
            e(f"v_lshlrev_b32 v{XA+4*i+j}, 16, v{8+(j>>1)}" if j % 2 == 0 else f"v_and_b32 v{XA+4*i+j}, s38, v{8+(j>>1)}")
    for i in range(4):
        b = Pp + 16 * i
        e(f"s_waitcnt lgkmcnt({12-4*i})")
        for h in range(2):
            e(f"v_pk_add_f32 {vr(b+2*h,2)}, {vr(b+2*h,2)}, {vr(b+4+2*h,2)}")
            e(f"v_pk_add_f32 {vr(b+8+2*h,2)}, {vr(b+8+2*h,2)}, {vr(b+12+2*h,2)}")
        for h in range(2):
            e(f"v_pk_add_f32 {vr(b+2*h,2)}, {vr(b+2*h,2)}, {vr(b+8+2*h,2)}")
        e(f"v_cvt_pk_bf16_f32 v{b+4}, v{b}, v{b+1}\nv_cvt_pk_bf16_f32 v{b+5}, v{b+2}, v{b+3}")
        for j in range(4):
            e(f"v_lshlrev_b32 v{b+8+j}, 16, v{b+4+(j>>1)}" if j % 2 == 0 else f"v_and_b32 v{b+8+j}, s38, v{b+4+(j>>1)}")
        for h in range(2):
            e(f"v_pk_add_f32 {vr(b+8+2*h,2)}, {vr(b+8+2*h,2)}, {vr(XA+4*i+2*h,2)}")
        e(f"v_cvt_pk_bf16_f32 v{b}, v{b+8}, v{b+9}\nv_cvt_pk_bf16_f32 v{b+1}, v{b+10}, v{b+11}")
        e(f"buffer_store_dwordx2 {vr(b,2)}, v{T+2}, s[20:23], s71 offen offset:{1024*i} {os.environ.get('OST', 'sc1')}")
    if not DIAG: e.stamp(9)
    e.stamp_out("PB", env("PBT", 256), 1, vt=100)
    if env('DBG', 0): e.stamp_dbg("DB", 256, 9, 1, [1, 2, 3, 4, 6, 7, 8, 9], vt=100)
    e("s_endpgm")

def gen_ln(e):
    X = 128; A = 160; M = 164; SQ = 166; T = 172
    e("s_mov_b32 s30, 0x3f803f80")
    for j in range(4): e(f"v_mov_b32 v{A+j}, 0\nv_mov_b32 v{SQ+j}, 0")
    e(f"v_lshrrev_b32 v180, 3, v1\nv_and_b32 v181, 7, v1\nv_mul_u32_u24 v182, 1088, v180\nv_lshl_add_u32 v182, v181, 4, v182\nv_add_u32 v182, {SPARE}, v182")
    e(f"v_bfe_u32 v183, v1, 2, 2\nv_mul_u32_u24 v183, 1088, v183\nv_lshrrev_b32 v184, 4, v1\nv_lshl_add_u32 v183, v184, 5, v183\nv_and_b32 v184, 3, v1\nv_lshl_add_u32 v183, v184, 3, v183\nv_add_u32 v183, {SPARE}, v183")
    for i in range(8):
        e(f"s_waitcnt vmcnt({7-i})")
        for j in range(4): e(f"v_dot2_f32_bf16 v{A+j}, v{X+4*i+j}, s30, v{A+j}")
    def red(r):
        e(f"v_add_f32 v{r}, v{r}, v{r+1}\nv_add_f32 v{r+2}, v{r+2}, v{r+3}\nv_add_f32 v{r}, v{r}, v{r+2}")
        for m in ("quad_perm:[1,0,3,2]", "quad_perm:[2,3,0,1]", "row_half_mirror"):
            e(f"v_add_f32_dpp v{r}, v{r}, v{r} {m} {DPP}")
    red(A)
    e(f"v_mul_f32 v{A}, {f32(1/512)}, v{A}\nv_cvt_pk_bf16_f32 v{M}, v{A}, v{A}\nv_lshlrev_b32 v{M}, 16, v{M}")
    for j0 in range(0, 32, 4):
        for j in range(j0, j0 + 4):
            t = T + 2 * (j % 4); e(f"v_lshlrev_b32 v{t}, 16, v{X+j}\nv_and_b32 v{t+1}, s38, v{X+j}")
        for j in range(j0, j0 + 4):
            t = T + 2 * (j % 4)
            if LNV & 2: e(f"v_sub_f32 v{t}, v{t}, v{M}\nv_sub_f32 v{t+1}, v{t+1}, v{M}")
            else: e(f"v_pk_add_f32 {vr(t,2)}, {vr(t,2)}, {vr(M,2)} op_sel_hi:[1,0] neg_lo:[0,1] neg_hi:[0,1]")
        for j in range(j0, j0 + 4):
            t = T + 2 * (j % 4); q = SQ + 2 * (j % 2)
            if LNV & 2: e(f"v_fmac_f32 v{q}, v{t}, v{t}\nv_fmac_f32 v{q+1}, v{t+1}, v{t+1}\nv_cvt_pk_bf16_f32 v{X+j}, v{t}, v{t+1}")
            else: e(f"v_pk_fma_f32 {vr(q,2)}, {vr(t,2)}, {vr(t,2)}, {vr(q,2)}\nv_cvt_pk_bf16_f32 v{X+j}, v{t}, v{t+1}")
    red(SQ)
    e(f"v_sub_f32 v{A+1}, v{A}, v{M}\nv_mul_f32 v{A+1}, v{A+1}, v{A+1}\nv_mul_f32 v{SQ}, {f32(1/512)}, v{SQ}\nv_sub_f32 v{SQ}, v{SQ}, v{A+1}\nv_max_f32 v{SQ}, 0, v{SQ}")
    rb(e, SQ); e(f"v_add_f32 v{SQ}, {f32(1e-5)}, v{SQ}"); rb(e, SQ); e(f"v_sqrt_f32 v{SQ}, v{SQ}"); rb(e, SQ)
    e(f"v_rcp_f32 v{M+1}, v{SQ}")
    for j0 in range(0, 32, 4):
        for j in range(j0, j0 + 4):
            t = T + 2 * (j % 4); e(f"v_lshlrev_b32 v{t}, 16, v{X+j}\nv_and_b32 v{t+1}, s38, v{X+j}")
        for j in range(j0, j0 + 4):
            t = T + 2 * (j % 4)
            if LNV & 1: e(f"v_mul_f32 v{t}, v{t}, v{M+1}\nv_mul_f32 v{t+1}, v{t+1}, v{M+1}")
            else: e(f"v_pk_mul_f32 {vr(t,2)}, {vr(M,2)}, {vr(t,2)} op_sel:[1,0] op_sel_hi:[1,1]")
        for j in range(j0, j0 + 4):
            t = T + 2 * (j % 4); e(f"v_cvt_pk_bf16_f32 v{X+j}, v{t}, v{t+1}")
        if LNV & 8: e("s_nop 3")
        e(f"ds_write_b128 v182, {vr(X+j0,4)} offset:{32*j0}")
    if LNV & 4: e("s_waitcnt lgkmcnt(0)")
    for q in range(8):
        for j in range(2): e(f"ds_read_b64_tr_b16 {vr(X+4*q+2*j,2)}, v183 offset:{4352*j+128*q}")

def gen_ln_store(e):
    X = 128; M = 164
    e("v_lshrrev_b32 v180, 3, v1\nv_and_b32 v181, 7, v1")
    if XL: e("v_lshlrev_b32 v184, 15, v180\nv_lshl_add_u32 v184, v181, 4, v184\nv_lshlrev_b32 v185, 3, v180")
    else: e("v_lshrrev_b32 v184, 1, v1\nv_lshlrev_b32 v184, 13, v184\nv_and_b32 v185, 1, v1\nv_lshl_add_u32 v184, v185, 4, v184\nv_lshlrev_b32 v185, 3, v180")
    e(f"s_lshl_b32 s31, s2, 6\nv_cmp_eq_u32 vcc, 0, v181\ns_and_saveexec_b64 s[74:75], vcc")
    e(f"buffer_store_dwordx2 {vr(M,2)}, v185, s[8:11], s31 offen offset:{WS_STATS} sc1\ns_mov_b64 exec, s[74:75]")
    e(f"s_lshl_b32 s31, s2, {7 if XL else 5}\ns_add_u32 s31, s31, {WS_XN2}")
    for q in range(8):
        e(f"buffer_store_dwordx4 {vr(X+4*q,4)}, v184, s[8:11], s31 offen sc1\ns_add_u32 s31, s31, {32*8192}")

TA = 96; RA = 112
def gen_kaddr(e):
    e(f"v_lshlrev_b32 v48, 2, v1\nv_lshlrev_b32 v49, 12, v2\nv_add_u32 v49, {KTAB}, v49\nv_add_u32 v48, v48, v49")
    for r in range(8): e(f"v_xor_b32 v{TA+r}, {r<<5}, v48")
    T0 = [0,1,2,3,4,5,6,7,8,8,9,10,10,10,11,12]; T1 = [0,0,0,1,1,1,2,2,3,3,3,4,4,4,5,5]
    T2 = [6 + 2 * (i >> 2) + (i & 1) for i in range(16)]
    def pack4(L): return sum(v << (4 * i) for i, v in enumerate(L))
    e("v_and_b32 v50, 15, v1\nv_lshrrev_b32 v51, 4, v1\nv_and_b32 v52, 7, v50\nv_lshlrev_b32 v52, 2, v52\nv_cmp_lt_u32 vcc, 7, v50")
    e(f"v_mov_b32 v{RA}, v50")
    for x, T in ((1, T0), (2, T1), (3, T2)):
        e(f"v_mov_b32 v53, {hex(pack4(T[:8]))}\nv_mov_b32 v54, {hex(pack4(T[8:]))}\nv_cndmask_b32 v53, v53, v54, vcc\nv_lshrrev_b32 v53, v52, v53\nv_and_b32 v{RA+x}, 15, v53")
    for x in range(4):
        e(f"v_and_b32 v53, 14, v{RA+x}\nv_xor_b32 v53, v51, v53\nv_lshlrev_b32 v53, 4, v53\nv_lshl_add_u32 v53, v{RA+x}, 8, v53\nv_add_u32 v{RA+x}, v53, v49")
        for q in range(1, 4): e(f"v_xor_b32 v{RA+4+3*x+q-1}, {q<<6}, v{RA+x}")

def gen_kgen(e):
    P = 40
    for r in range(P, P + 7): e(f"v_lshlrev_b32 v{r}, 16, v{r}")
    def exp_bf(dst, src, t1, t2):
        e(f"v_mul_f32 v{t1}, {f32(L2E_HI)}, v{src}")
        e(f"s_mov_b32 s30, {f32(L2E_HI)}\nv_fma_f32 v{t2}, v{src}, s30, -v{t1}\nv_fmac_f32 v{t2}, {f32(L2E_LO)}, v{src}")
        e(f"v_exp_f32 v{t1}, v{t1}\nv_mul_f32 v{t2}, {f32(LN2)}, v{t2}\nv_fma_f32 v{dst}, v{t1}, v{t2}, v{t1}")
        rb(e, dst)
    exp_bf(46, 46, 48, 49); exp_bf(40, 40, 50, 51)
    e("v_mul_f32 v40, v40, v46\nv_mul_f32 v41, v41, v46")
    e("v_max_f32 v48, abs(v42), abs(v43)\nv_max3_f32 v48, abs(v44), abs(v45), v48")
    for m in ("quad_perm:[1,0,3,2]", "quad_perm:[2,3,0,1]", "row_ror:4", "row_ror:8"):
        e(f"v_max_f32_dpp v48, v48, v48 {m} {DPP}")
    e("v_readlane_b32 s30, v48, 0\nv_readlane_b32 s31, v48, 16\nv_readlane_b32 s71, v48, 32\nv_readlane_b32 s72, v48, 48")
    e("s_max_u32 s30, s30, s31\ns_max_u32 s71, s71, s72\ns_max_u32 s30, s30, s71\ns_and_b32 s30, s30, 0x7f800000\ns_sub_u32 s31, 0x7f000000, s30")
    e("v_mul_f32 v42, s31, v42\nv_mul_f32 v43, s31, v43")
    e("v_mul_f32 v46, s30, v46\nv_add_f32 v46, v46, v46")
    W1, W8, W256, W2_, W4, W16 = 56, 58, 60, 62, 64, 66
    def wexp(dst, p, t):
        e(f"v_mul_f32 v{t}, {f32(-L2E_HI*p)}, v40\nv_exp_f32 v{t}, v{t}")
        e(f"v_mul_f32 v{t+1}, {f32(float(p))}, v41")
        e(f"v_mul_f32 v{t+2}, {f32(I2PI_HI)}, v{t+1}\ns_mov_b32 s30, {f32(I2PI_HI)}\nv_fma_f32 v{t+3}, v{t+1}, s30, -v{t+2}\nv_fmac_f32 v{t+3}, {f32(I2PI_LO)}, v{t+1}")
        e(f"v_fract_f32 v{t+2}, v{t+2}\nv_add_f32 v{t+2}, v{t+2}, v{t+3}")
        e(f"v_cos_f32 v{dst}, v{t+2}\nv_sin_f32 v{dst+1}, v{t+2}")
        e(f"v_mul_f32 v{dst}, v{dst}, v{t}\nv_mul_f32 v{dst+1}, v{dst+1}, v{t}")
    C0 = 42
    old = e.lines; parts = []
    for dst, p, t in ((W8, 8, 48), (W256, 256, 52), (W1, 1, 68)):
        e.lines = []; wexp(dst, p, t); parts.append(e.lines)
    e.lines = old
    for i in range(len(parts[0])):
        for P_ in parts: e.lines.append(P_[i])
    def cm1(d, a, b): return f"v_pk_mul_f32 {vr(d,2)}, {vr(a,2)}, {vr(b,2)} op_sel_hi:[1,0]"
    def cm2(d, a, b): return f"v_pk_fma_f32 {vr(d,2)}, {vr(a,2)}, {vr(b,2)}, {vr(d,2)} op_sel:[1,1,0] op_sel_hi:[0,1,1] neg_lo:[1,0,0]"
    RF = 128; LF = 160; D = 208
    W24, W32, W512 = 68, 70, 72
    Lr = {i: 160 + 2 * i for i in range(27)}; Lr[0] = C0
    PR = 216; PL = 128
    ONE = 74
    e(f"v_mov_b32 v{ONE}, 1.0\nv_mov_b32 v{ONE+1}, 0")
    Rr = {0: ONE, 1: W8, 2: W16, 3: W24}
    for b in range(4, 32): Rr[b] = 76 + 4 * (b % 4) + 2 * ((b // 4) % 2)
    Rr[4] = W32
    G = {1: 8, 2: 13, 3: 16, 4: 19, 5: 21, 6: 23, 7: 25}
    groups = [
        [(W16, W8, W8, ('R', 2)), (Lr[8], C0, W256, ('L', 8)), (W2_, W1, W1, None), (W512, W256, W256, None), (Lr[1], C0, W1, ('L', 1))],
        [(W32, W16, W16, ('R', 4)), (W24, W16, W8, ('R', 3)), (W4, W2_, W2_, None), (Lr[13], Lr[8], W256, ('L', 13)), (Lr[16], Lr[8], W512, ('L', 16)), (Lr[2], C0, W2_, ('L', 2))],
    ]
    rest = [(Lr[19], Lr[13], W512, ('L', 19)), (Lr[21], Lr[16], W512, ('L', 21)), (Lr[3], Lr[1], W2_, ('L', 3)),
            (Lr[4], C0, W4, ('L', 4)), (Lr[5], Lr[1], W4, ('L', 5)), (Lr[6], Lr[2], W4, ('L', 6)),
            (Lr[23], Lr[19], W512, ('L', 23)), (Lr[25], Lr[21], W512, ('L', 25)), (Lr[7], Lr[3], W4, ('L', 7)),
            (Lr[9], Lr[8], W2_, ('L', 9)), (Lr[10], Lr[8], W4, ('L', 10)), (Lr[12], Lr[8], W8, ('L', 12)),
            (Lr[11], Lr[9], W4, ('L', 11)), (Lr[14], Lr[13], W4, ('L', 14)), (Lr[15], Lr[13], W8, ('L', 15)),
            (Lr[17], Lr[16], W4, ('L', 17)), (Lr[18], Lr[16], W8, ('L', 18)), (Lr[20], Lr[19], W8, ('L', 20)),
            (Lr[22], Lr[21], W8, ('L', 22)), (Lr[24], Lr[23], W8, ('L', 24)), (Lr[26], Lr[25], W8, ('L', 26))]
    for j in range(7):
        g = [(Rr[b], Rr[b - 4], W32, ('R', b)) for b in range(4 * j + 4, 4 * j + 8) if b != 4]
        g += rest[3 * j:3 * j + 3]
        groups.append(g)
    done = set()
    def cvt(tag):
        kind, i = tag
        src = Rr[i] if kind == 'R' else Lr[i]; dst = (PR if kind == 'R' else PL) + i
        e(f"v_cvt_pk_f16_f32 v{dst}, v{src}, {'-' if kind == 'L' else ''}v{src+1}"); done.add(tag)
    def fragread(x, dst):
        for q in range(4): e(f"ds_read_b128 {vr(dst+4*q,4)}, v{RA+x if q == 0 else RA+4+3*x+q-1}")
    Q = []
    def wr(kind, base, n, first):
        for r in range(0, n, 2):
            p = (PR if kind == 'R' else PL) + first + r
            if r + 1 < n: Q.append(({(kind, first + r), (kind, first + r + 1)}, f"ds_write2st64_b32 v{TA+r//2}, v{p}, v{p+1} offset0:{r} offset1:{r+1}"))
            else: Q.append(({(kind, first + r)}, f"ds_write_b32 v{TA+r//2}, v{p} offset:{256*r}"))
    RFa, RFb = 32, 92
    wr('R', 0, 16, 0); Q.append((set(), ('fr', 0, 0)))
    wr('R', 0, 16, 16); Q.append((set(), ('fr', 0, 1)))
    wr('L', 0, 13, 0); Q.append((set(), ('fr', 1, 2)))
    wr('L', 0, 14, 13); Q.append((set(), ('fr', 2, 3))); Q.append((set(), ('fr', 3, 4)))
    FD = {0: 216, 1: 232, 2: 160, 3: 176, 4: 192}
    allc = {('L', i) for i in range(27)}
    def drain(maxn=99):
        n = 0
        while Q and n < maxn:
            needs, t = Q[0]
            if isinstance(t, tuple):
                if t[2] >= 2 and not allc <= done: break
                fragread(t[1], FD[t[2]])
            else:
                if not needs <= done: break
                e(t)
            Q.pop(0); n += 1
    for tag in (('R', 0), ('R', 1), ('L', 0)): cvt(tag)
    prev = []
    for g in groups:
        for (d, a, b, tag) in g: e(cm1(d, a, b))
        for tag in prev: cvt(tag)
        drain(3)
        for (d, a, b, tag) in g: e(cm2(d, a, b))
        prev = [tag for (_, _, _, tag) in g if tag]
    for tag in prev: cvt(tag)
    drain()
    assert not Q
    DD = KD
    def kmfma(ti):
        for q in range(4):
            for ct in range(2):
                d = DD + 8 * ti + 4 * ct
                e(f"v_mfma_f32_16x16x32_f16 {vr(d,4)}, {vr(FD[2+ti]+4*q,4)}, {vr(FD[ct]+4*q,4)}, {'0' if q == 0 else vr(d,4)}")
    e("v_mov_b32 v31, v46\ns_waitcnt lgkmcnt(15)")
    kmfma(0)
    e("s_waitcnt lgkmcnt(4)")
    kmfma(1)
    e("s_waitcnt lgkmcnt(0)")
    kmfma(2)

KD = 64
def gen_kfin(e):
    D = KD
    e(f"v_mul_u32_u24 v8, 3072, v2\nv_lshl_add_u32 v8, v1, 4, v8\nv_add_u32 v8, {KX}, v8\nv_xor_b32 v9, 1, v2\nv_mul_u32_u24 v9, 3072, v9\nv_lshl_add_u32 v9, v1, 4, v9\nv_add_u32 v9, {KX}, v9")
    e(f"v_lshlrev_b32 v10, 2, v2\nv_add_u32 v10, {LCNT+16}, v10\nv_xor_b32 v11, 4, v10\nv_mov_b32 v12, 1")
    e("s_and_b32 s30, s29, 1\ns_cmp_eq_u32 s30, 1\ns_nop 7\ns_cbranch_scc1 A_KX1")
    for ti in range(3): e(f"ds_write_b128 v8, {vr(D+8*ti+4,4)} offset:{1024*ti}")
    e("s_branch A_KXD")
    e.label("A_KX1")
    for ti in range(3): e(f"ds_write_b128 v8, {vr(D+8*ti,4)} offset:{1024*ti}")
    for ti in range(3):
        for q in range(4 if ti < 2 else 2): e(f"v_mov_b32 v{D+8*ti+q}, v{D+8*ti+4+q}")
    e.label("A_KXD")
    e("ds_write_b32 v10, v12")
    e("v_and_b32 v48, 15, v1\nv_lshrrev_b32 v49, 4, v1\nv_and_b32 v52, 1, v2\nv_lshl_add_u32 v52, v52, 4, v48")
    e(f"v_and_b32 v53, 1, v49\nv_lshlrev_b32 v53, 2, v53\nv_lshl_add_u32 v53, v52, 3, v53\nv_lshrrev_b32 v56, 1, v49\nv_lshl_add_u32 v53, v56, 8, v53")
    e(f"v_lshlrev_b32 v53, 1, v53\nv_mul_u32_u24 v55, {KCH}, v28\nv_add_u32 v55, {KB}, v55\nv_sub_u32 v53, v55, v53\nv_add_u32 v53, {2*(2040-512)}, v53")
    e(f"v_lshlrev_b32 v56, 3, v52\nv_lshl_add_u32 v56, v49, 8, v56\nv_lshlrev_b32 v56, 1, v56\nv_sub_u32 v56, v55, v56\nv_add_u32 v56, {2*(2040-1024)}, v56")
    lds_poll(e, "A_KXP", "v11", 0, 1, 7)
    for ti in range(3): e(f"ds_read_b128 {vr(D+8*ti+4,4)}, v9 offset:{1024*ti}")
    e("s_waitcnt lgkmcnt(0)")
    for ti in range(3):
        for q in range(4 if ti < 2 else 2): e(f"v_add_f32 v{D+8*ti+q}, v{D+8*ti+q}, v{D+8*ti+4+q}\nv_mul_f32 v{D+8*ti+q}, v31, v{D+8*ti+q}")
    for ti in range(2):
        d = D + 8 * ti; o = KP + 2 * ti
        e(f"v_cvt_pk_bf16_f32 v{o}, v{d+3}, v{d+2}\nv_cvt_pk_bf16_f32 v{o+1}, v{d+1}, v{d}")
    f0, f8 = D + 16, D + 17
    e(f"v_and_b32 v57, 1, v52\nv_cmp_eq_u32 vcc, 1, v57\nv_cndmask_b32 v57, v{f0}, v{f8}, vcc")
    e(f"v_cvt_pk_bf16_f32 v{KP+4}, v{f8}, v{f8}\nv_cvt_pk_bf16_f32 v{KP+5}, v{f8}, v57\nv_cvt_pk_bf16_f32 v{KP+6}, v{f0}, v{f0}\nv_mov_b32 v{KP+7}, v{KP+6}")
    e(f"v_mov_b32 v{KP+8}, v53\nv_mov_b32 v{KP+9}, v56")

KP = 112
def gen_kwrite(e):
    for ti in range(2):
        o = KP + 2 * ti; off = 1024 if ti == 0 else 0
        e(f"ds_write_b64 v{KP+8}, {vr(o,2)} offset:{off+8}\nds_write_b64 v{KP+8}, {vr(o,2)} offset:{off+KS_OFF}")
    e(f"ds_write_b128 v{KP+9}, {vr(KP+4,4)}\nds_write_b64 v{KP+9}, {vr(KP+4,2)} offset:{KS_OFF-8}\nds_write_b64 v{KP+9}, {vr(KP+6,2)} offset:{KS_OFF}")
    e(f"v_mov_b32 v6, {LCNT}\nv_mov_b32 v12, 1\ns_mov_b64 exec, 1\nds_add_u32 v6, v12\ns_mov_b64 exec, -1")

def gen_A(e):
    srd(e, 8, 66, WS_SIZE)
    e("s_mov_b32 s38, 0xffff0000")
    e("s_cmp_lg_u32 s2, 255\ns_cbranch_scc1 A_NOZ\ns_cmp_lg_u32 s3, 0\ns_cbranch_scc1 A_NOZ")
    e(f"v_mov_b32 v3, 0\ns_mov_b32 s31, {WS_EPW}\nbuffer_load_dword v4, v3, s[8:11], s31 offen sc1\ns_waitcnt vmcnt(0)")
    e("v_add_u32 v4, 1, v4\nv_max_u32 v4, 1, v4\nv_cmp_eq_u32 vcc, 0, v1\ns_and_saveexec_b64 s[74:75], vcc")
    e("global_store_dword v3, v4, s[64:65] sc1\nbuffer_store_dword v4, v3, s[8:11], s31 offen sc1\ns_mov_b64 exec, s[74:75]\ns_waitcnt vmcnt(0)")
    e.label("A_NOZ")
    e("v_bfe_u32 v3, v1, 4, 1\nv_lshrrev_b32 v12, 5, v1\nv_bfe_u32 v13, v1, 2, 2\nv_and_b32 v15, 3, v1")
    e("v_lshl_add_u32 v12, v12, 3, v13\nv_lshlrev_b32 v12, 7, v12\nv_lshl_add_u32 v12, v3, 13, v12\nv_lshl_add_u32 v12, v15, 3, v12\nv_add_u32 v12, 32768, v12")
    e("v_lshrrev_b32 v13, 1, v13\nv_lshl_add_u32 v13, v3, 1, v13\nv_lshl_add_u32 v20, v13, 5, v12")
    for t in range(1, 4): e(f"v_xor_b32 v{20+t}, {t<<5}, v20")
    e("v_and_b32 v3, 31, v1\nv_lshrrev_b32 v12, 5, v1\nv_bfe_u32 v13, v3, 1, 3\nv_xor_b32 v13, v12, v13")
    e("v_lshl_add_u32 v3, v2, 6, v3\nv_lshlrev_b32 v3, 7, v3\nv_lshl_add_u32 v24, v13, 4, v3")
    for s in range(1, 4): e(f"v_xor_b32 v{24+s}, {s<<5}, v24")
    gen_kaddr(e)
    e(f"v_and_b32 v18, 31, v1\nv_lshl_add_u32 v18, v2, 6, v18\nv_lshlrev_b32 v18, 3, v18\nv_add_u32 v18, {LSTAT}, v18\nv_mov_b32 v19, {LCNT}")
    e.stamp(1)
    e("s_waitcnt vmcnt(1)")
    e.stamp(2)
    if not env('NOKG', 0): gen_kgen(e)
    gen_kfin(e)
    e("s_waitcnt vmcnt(0) lgkmcnt(0)")
    e.stamp(3)
    ACC = 128
    FA = [32, 56]
    e("s_cmp_eq_u32 s28, 1\ns_cbranch_scc1 A_G1")
    for i in range(3): e("s_barrier")
    srd(e, 16, 60, 0 if AB & 1 else 0x1c0000)
    e("v_lshlrev_b32 v3, 10, v1\ns_lshr_b32 s31, s2, 3\ns_sub_u32 s31, s31, 28\ns_mul_i32 s31, s31, 458752\ns_add_u32 s32, s31, 393216\ns_lshl_b32 s30, s29, 17\ns_add_u32 s31, s31, s30\ns_add_u32 s33, s31, 65536")
    e("s_cmp_eq_u32 s29, 3\ns_cselect_b32 s34, 512, 0\ns_cselect_b32 s33, s32, s33\ns_sub_u32 s33, s33, s34")
    e("buffer_load_dword v15, v3, s[16:19], s33 offen offset:896\nbuffer_load_dword v15, v3, s[16:19], s31 offen offset:896")
    for i in range(6): e("s_barrier")
    e("s_waitcnt vmcnt(0)")
    e("ds_read_b64 v[16:17], v19 offset:32")
    gen_kwrite(e)
    e("s_branch A_CONV")
    e.label("A_G1")
    def reads(buf, s):
        L = []
        for mi in range(2): L.append(f"ds_read_b128 {vr(FA[buf]+16+4*mi,4)}, v{24+s} offset:{4096*mi}")
        for t in range(4):
            for j in range(2): L.append(f"ds_read_b64_tr_b16 {vr(FA[buf]+4*t+2*j,2)}, v{20+t} offset:{2048*s+512*j}")
        return L
    def mfmas(buf, zero=False):
        if env('M16', 0):
            L = []
            for t in range(4):
                for mi in range(2):
                    a = ACC + 16 * (2 * t + mi) + 8 * (buf % 2)
                    L.append("\n".join(f"v_mfma_f32_16x16x32_bf16 {vr(a+4*h,4)}, {vr(FA[buf]+4*t,4)}, {vr(FA[buf]+16+4*(mi^h),4)}, {vr(a+4*h,4)}" for h in range(2)))
            return L
        return [f"v_mfma_f32_32x32x16_bf16 {vr(ACC+16*(2*t+mi),16)}, {vr(FA[buf]+4*t,4)}, {vr(FA[buf]+16+4*mi,4)}, {'0' if zero else vr(ACC+16*(2*t+mi),16)}" for t in range(4) for mi in range(2)]
    def interleave(M, F, per=2):
        k = 0; n = len(F)
        for i, m in enumerate(M):
            if not (AB & 32): e(m)
            cnt = -(-(n - k) // (len(M) - i)) if n - k > per * (len(M) - i) else min(per, n - k)
            for _ in range(cnt): e(F[k]); k += 1
        assert k == n
    e(f"s_mov_b32 s37, 0\ns_mov_b32 s36, 0\ns_mov_b32 s38, {STG}")
    e("s_barrier")
    e.stamp(4)
    for r in reads(0, 0): e(r)
    e("s_waitcnt lgkmcnt(0)")
    interleave(mfmas(0, True), reads(1, 1))
    e("s_branch A_K1")
    e.label("A_LOOP")
    for s in range(3):
        if s == 1: e.label("A_K1")
        e("s_waitcnt lgkmcnt(0)")
        F = reads((s + 1) % 2, s + 1)
        if s == 2:
            F = F + [f"s_cmp_eq_u32 s36, {2*STG}\ns_cselect_b32 s39, {(-2*STG) & 0xffffffff}, s38"] + [f"v_add_u32 v{20+i}, s39, v{20+i}\nv_add_u32 v{21+i}, s39, v{21+i}" for i in range(0, 8, 2)]
        interleave(mfmas(s % 2), F)
    e("s_waitcnt lgkmcnt(0)\ns_barrier")
    interleave(mfmas(1), reads(0, 0) + ["s_add_u32 s36, s36, s39\ns_add_u32 s37, s37, 1\ns_cmp_lt_u32 s37, 8"])
    e("s_cbranch_scc1 A_LOOP")
    e.stamp(5)
    if APRIO: e(f"s_setprio {APRIO}")
    e(f"v_lshrrev_b32 v12, 5, v1\nv_lshlrev_b32 v12, 4, v12\nv_add_u32 v12, {LCS}, v12")
    e("s_waitcnt lgkmcnt(0)")
    CS = 32
    e("ds_read_b64 v[4:5], v18\nds_read_b64 v[6:7], v18 offset:256\nds_read_b64 v[16:17], v19 offset:32")
    for t in range(4):
        for g in range(2):
            e(f"ds_read_b128 {vr(CS+16*t+4*g,4)}, v12 offset:{64*t+32*g}")
            e(f"ds_read_b128 {vr(CS+16*t+8+4*g,4)}, v12 offset:{256+64*t+32*g}")
    e(f"s_lshl_b32 s31, s24, 3\ns_lshl_b32 s30, s29, 1\ns_add_u32 s31, s31, s30\ns_mul_i32 s31, s31, 112\ns_lshl_b32 s30, s25, 2\ns_add_u32 s31, s31, s30\ns_lshl_b32 s31, s31, 10\ns_add_u32 s31, s31, {WS_H}\ns_add_u32 s30, s31, {112*1024}")
    e(f"s_lshl_b32 s35, s24, 2\ns_add_u32 s35, s35, s29\ns_mul_i32 s35, s35, 28\ns_add_u32 s35, s35, s25\ns_lshl_b32 s35, s35, 7\ns_add_u32 s35, s35, {WS_HF}")
    e("v_lshlrev_b32 v3, 4, v1\nv_mov_b32 v15, 0")
    e("s_waitcnt lgkmcnt(0)")
    for mi in range(2):
        b = 8 + 4 * mi; s = 4 + 2 * mi
        e(f"v_sub_f32 v{b}, 0, v{s}\nv_mul_f32 v{b+1}, {f32(-LOG2E)}, v{s+1}\nv_mul_f32 v{b+2}, v{s+1}, v{s+1}\nv_rcp_f32 v{b+2}, v{b+2}")
    TM = 96
    for t in range(4):
        for mi in range(2):
            a = ACC + 16 * (2 * t + mi); b = 8 + 4 * mi
            o = a + 8
            for p in range(4):
                G = a + 2 * p; U = a + 8 + 2 * p; cg = CS + 16 * t + 2 * p; cu = CS + 16 * t + 8 + 2 * p
                z = TM + 2 * p
                e(f"v_pk_fma_f32 {vr(G,2)}, {vr(cg,2)}, {vr(b,2)}, {vr(G,2)} op_sel_hi:[1,0,1]")
                e(f"v_pk_fma_f32 {vr(U,2)}, {vr(cu,2)}, {vr(b,2)}, {vr(U,2)} op_sel_hi:[1,0,1]")
                e(f"v_pk_mul_f32 {vr(z,2)}, {vr(b,2)}, {vr(G,2)} op_sel:[1,0] op_sel_hi:[1,1]")
            for p in range(4):
                z = TM + 2 * p
                e(f"v_exp_f32 v{z}, v{z}\nv_exp_f32 v{z+1}, v{z+1}")
            for p in range(4):
                G = a + 2 * p; U = a + 8 + 2 * p; z = TM + 2 * p
                e(f"v_pk_mul_f32 {vr(G,2)}, {vr(G,2)}, {vr(U,2)}")
                e(f"v_pk_fma_f32 {vr(z,2)}, {vr(z,2)}, {vr(b+2,2)}, {vr(b+2,2)} op_sel_hi:[1,0,0]")
            for p in range(4):
                z = TM + 2 * p
                e(f"v_rcp_f32 v{z}, v{z}\nv_rcp_f32 v{z+1}, v{z+1}")
            for p in range(4):
                G = a + 2 * p; z = TM + 2 * p
                e(f"v_pk_mul_f32 {vr(G,2)}, {vr(G,2)}, {vr(z,2)}")
            for p in range(4):
                G = a + 2 * p
                e(f"v_cvt_pk_bf16_f32 v{o+p}, v{G}, v{G+1}")
            e(f"buffer_store_dwordx4 {vr(o,4)}, v3, s[8:11], {'s31' if mi == 0 else 's30'} offen offset:{1024*t}" + ("" if AB & 4 else " sc1"))
            if 2 * t + mi == F1AT:
                e(f"s_waitcnt vmcnt({F1AT-3})\ns_mov_b64 exec, 1\nbuffer_store_dwordx2 v[16:17], v15, s[8:11], s35 offen sc1\ns_mov_b64 exec, -1")
    e.stamp(6)
    gen_kwrite(e)
    if APRIO: e("s_setprio 0")
    e.label("A_CONV")
    e("v_and_b32 v24, 15, v1\nv_lshrrev_b32 v25, 4, v1")
    e(f"v_and_b32 v26, 3, v24\nv_mul_u32_u24 v26, {UP}, v26\nv_lshrrev_b32 v27, 2, v24\nv_lshl_add_u32 v26, v27, 7, v26\nv_lshl_add_u32 v26, v25, 4, v26")
    e(f"v_mul_u32_u24 v27, {UCH}, v28\nv_add_u32 v26, v26, v27\nv_and_b32 v31, 1, v2\nv_lshl_add_u32 v26, v31, 8, v26\nv_add_u32 v26, {UB}, v26")
    e(f"v_mul_u32_u24 v5, {KCH}, v28\nv_add_u32 v5, {KB}, v5")
    e(f"v_lshrrev_b32 v27, 1, v24\nv_sub_u32 v27, v25, v27\nv_add_u32 v27, 7, v27\nv_lshl_add_u32 v27, v27, 4, v5\nv_lshl_add_u32 v27, v31, 8, v27")
    e(f"v_and_b32 v29, 1, v24\nv_xor_b32 v29, 1, v29\nv_mul_u32_u24 v29, {KS_OFF}, v29\nv_add_u32 v27, v27, v29")
    e(f"v_mov_b32 v6, {LCNT}")
    lds_poll(e, "A_KU", "v6", 0, 8, 7)
    CA = 200
    FU = [32, 96]
    def creads(buf, s):
        L = []
        for p in range(8):
            L.append(f"ds_read_b128 {vr(FU[buf]+32+4*p,4)}, v27 offset:{512*(7-p)+64*s}")
            L.append(f"ds_read_b128 {vr(FU[buf]+4*p,4)}, v26 offset:{512*p+64*s}")
        return L
    for r in creads(0, 0): e(r)
    for s in range(4):
        if s == HFS:
            e("s_cmp_eq_u32 s28, 0\ns_cbranch_scc1 A_NOHF\nv_mov_b32 v3, 0\ns_waitcnt vmcnt(0)\ns_mov_b64 exec, 1\nbuffer_store_dwordx2 v[16:17], v3, s[8:11], s35 offen offset:8 sc1\ns_mov_b64 exec, -1")
            e.label("A_NOHF")
            e.stamp(7)
        e("s_waitcnt lgkmcnt(0)")
        if s < 3: nxt = creads((s + 1) % 2, s + 1)
        else:
            nxt = [f"v_lshlrev_b32 v10, 2, v2\nv_add_u32 v10, {LCNT+16}, v10\nv_mov_b32 v12, 2\nds_write_b32 v10, v12",
                   f"v_mul_u32_u24 v26, {UCH}, v28\nv_add_u32 v26, {UB}, v26\nv_lshl_add_u32 v8, v1, 4, v26\nv_lshl_add_u32 v26, v1, 3, v26",
                   f"v_lshl_add_u32 v26, v31, 11, v26\n" + "\n".join(f"ds_read_b64 {vr(48+2*i,2)}, v26 offset:{3*UP+384+512*i}" for i in range(4)),
                   f"s_mov_b32 s33, {UP}\nv_xor_b32 v9, 1, v31\nv_mad_u32_u24 v9, v9, s33, v8\nv_mad_u32_u24 v8, v31, s33, v8",
                   f"v_xor_b32 v11, 4, v10\nv_mov_b32 v13, 3\nv_lshlrev_b32 v27, 3, v1\nv_lshl_add_u32 v27, v2, 11, v27",
                   f"s_lshl_b32 s31, s77, 13\ns_add_u32 s31, s31, {WS_AT}\ns_mov_b32 s38, 0xffff0000\nv_lshlrev_b32 v30, 16, v30\ns_waitcnt lgkmcnt(0)"]
            for i in range(4):
                x = 48 + 2 * i; t = 64 + 4 * i
                nxt.append("\n".join((f"v_lshlrev_b32 v{t+q}, 16, v{x+(q>>1)}" if q % 2 == 0 else f"v_and_b32 v{t+q}, s38, v{x+(q>>1)}") for q in range(4)))
                nxt.append("\n".join(f"v_mul_f32 v{t+q}, v30, v{t+q}" for q in range(4)) + f"\nv_cvt_pk_bf16_f32 v{x}, v{t}, v{t+1}\nv_cvt_pk_bf16_f32 v{x+1}, v{t+2}, v{t+3}")
                nxt.append("\n".join((f"v_lshlrev_b32 v{t+q}, 16, v{x+(q>>1)}" if q % 2 == 0 else f"v_and_b32 v{t+q}, s38, v{x+(q>>1)}") for q in range(4)))
        k = 0; cnt = 0
        for q in range(8):
            for t in range(q, 8):
                a = CA + 4 * t
                c = "0" if (s == 0 and q == 0) else vr(a, 4)
                if not (AB & 8): e(f"v_mfma_f32_16x16x32_bf16 {vr(a,4)}, {vr(FU[s%2]+4*(t-q),4)}, {vr(FU[s%2]+32+4*q,4)}, {c}")
                cnt += 1
                if k < len(nxt) and cnt % 2 == 0: e(nxt[k]); k += 1
        assert k == len(nxt)
    e.stamp(8)
    lds_poll(e, "A_P0", "v11", 0, 2, 7)
    e("s_and_b32 s30, s29, 1\ns_cmp_eq_u32 s30, 1\ns_nop 3\ns_cbranch_scc1 A_ODD")
    for i in range(4): e(f"ds_write_b128 v8, {vr(CA+16+4*i,4)} offset:{1024*i}")
    e("ds_write_b32 v10, v13\ns_branch A_J")
    e.label("A_ODD")
    for i in range(4): e(f"ds_write_b128 v8, {vr(CA+4*i,4)} offset:{1024*i}")
    e("ds_write_b32 v10, v13")
    for i in range(16): e(f"v_mov_b32 v{CA+i}, v{CA+16+i}")
    e.label("A_J")
    lds_poll(e, "A_PR", "v11", 0, 3, 7)
    for i in range(4): e(f"ds_read_b128 {vr(32+4*i,4)}, v9 offset:{1024*i}")
    for i in range(4):
        a = CA + 4 * i; b = 32 + 4 * i; t = 64 + 4 * i
        e(f"s_waitcnt lgkmcnt({3-i})")
        for q in range(4): e(f"v_add_f32 v{a+q}, v{a+q}, v{b+q}")
        e(f"v_cvt_pk_bf16_f32 v{b}, v{a}, v{a+1}\nv_cvt_pk_bf16_f32 v{b+1}, v{a+2}, v{a+3}")
        for q in range(4):
            e(f"v_lshlrev_b32 v{a+q}, 16, v{b+(q>>1)}" if q % 2 == 0 else f"v_and_b32 v{a+q}, s38, v{b+(q>>1)}")
        for q in range(4): e(f"v_add_f32 v{a+q}, v{a+q}, v{t+q}")
        e(f"v_cvt_pk_bf16_f32 v{b}, v{a}, v{a+1}\nv_cvt_pk_bf16_f32 v{b+1}, v{a+2}, v{a+3}")
        e(f"buffer_store_dwordx2 {vr(b,2)}, v27, s[8:11], s31 offen offset:{512*i} sc1")
    e(f"s_lshl_b32 s31, s77, 7\ns_lshl_b32 s30, s29, 3\ns_add_u32 s31, s31, s30\ns_add_u32 s31, s31, {WS_AF}")
    e("v_mov_b32 v3, 0\nv_cmp_eq_u32 vcc, 0, v1\ns_waitcnt vmcnt(0)\ns_and_saveexec_b64 s[74:75], vcc")
    e("buffer_store_dwordx2 v[16:17], v3, s[8:11], s31 offen sc1\ns_mov_b64 exec, s[74:75]")
    e.stamp(9)
    e.stamp_out("PA", 0, 0, vt=100)
    if env('DBG', 0): e.stamp_dbg("DA", 0, 9, 10, [2, 3, 6, 7, 9], vt=100)

NAME = "parallel_sum__ssm_conv_s4d__glu_gated_swiglu__prompt_kernel"
if __name__ == "__main__":
    Asm.PROFILE = len(sys.argv) > 2
    out = ["; @launch grid=(256,1,1) block=(512,1,1) lds=163840", '.amdgcn_target "amdgcn-amd-amdhsa--gfx950"\n.text']
    out.append(kernel_header(NAME) + gen())
    out.append('.section .rodata,"a"\n.p2align 6\n' + kernel_desc(NAME, 256, 256))
    open(sys.argv[1], "w").write("\n".join(out))
```

```python
import sys, math, os
import numpy as np
from asmlib import *

def env(n, d): return int(os.environ.get(n, str(d)))
DIAG = env('DIAG', 0); PRIO = env('PRIO', 3); PREF = env('PREF', 1); SLEEP = env('SLEEP', 8); ROT = env('ROT', 1); ROT2 = env('ROT2', 1)
APRIO = env('APRIO', 3); W2PF = env('W2PF', 1); XL = 1; PFR = env('PFR', 0); LNE = env('LNE', 0); GROW = env('GROW', 1); D1G = env('D1G', 4); G2P = env('G2P', 0); UPOS = env('UPOS', 1); TLBW = env('TLBW', 0); F1AT = env('F1AT', 6); LNV = env('LNV', 0); HFS = env('HFS', 1); NW0 = env('NW0', 2); RING = env('RING', 4); PACE = env('PACE', 1); PACEM = env('PACEM', 99); HPF = env('HPF', 0); CH = env('CH', 7); N6 = env('N6', 0); N7 = env('N7', 3); PFS = [int(c) for c in os.environ.get('PFS', '021111')]; SPIN = env('SPIN', 20000)
AB = env('AB', 0)
WS_STATS = 0x0
WS_EPW = 0x8000
WS_LNF = 0x40000
WS_HF = 0x50000
WS_AF = 0x80000
WS_XN2 = 0x100000
WS_H = 0x400000
WS_AT = 0xC00000
WS_SIZE = 0x1000000
STG = 49152
SPARE = 153600
KTAB = 2 * STG + 32768
KX = 2 * STG
UP = 4640; UCH = 4 * UP; UB = STG
KB = UB + 2 * UCH; KS_OFF = 4224; KCH = 147456 - KB
LCS = 163072; LCNT = LCS + 512; LSTAT = 160768
PLANE = 17408

LOG2E = math.log2(math.e)
L2E_HI = float(np.float32(LOG2E)); L2E_LO = float(np.float32(LOG2E - L2E_HI))
I2PI = 1 / (2 * math.pi)
I2PI_HI = float(np.float32(I2PI)); I2PI_LO = float(np.float32(I2PI - I2PI_HI))
LN2 = math.log(2)
DPP = "row_mask:0xf bank_mask:0xf"

def srd(e, d, ptr, nbytes):
    e(f"s_mov_b32 s{d}, s{ptr}\ns_mov_b32 s{d+1}, s{ptr+1}\ns_mov_b32 s{d+2}, {hex(nbytes)}\ns_mov_b32 s{d+3}, 0x00020000")

def poll(e, tag, load, check, sleep=None):
    e(f"s_mov_b32 s39, {SPIN}")
    e.label(f"{tag}_L")
    e(load); e("s_waitcnt vmcnt(0)"); e(check)
    e(f"s_cbranch_vccz {tag}_D\ns_sub_u32 s39, s39, 1\ns_cbranch_scc1 {tag}_D\ns_sleep {sleep or SLEEP}\ns_branch {tag}_L")
    e.label(f"{tag}_D")

def lds_poll(e, tag, vaddr, off, target, vt):
    e(f"s_mov_b32 s39, {SPIN*16}")
    e.label(f"{tag}_L")
    e(f"ds_read_b32 v{vt}, {vaddr} offset:{off}\ns_waitcnt lgkmcnt(0)\nv_cmp_gt_u32 vcc, {target}, v{vt}")
    e(f"s_cbranch_vccz {tag}_D\ns_sub_u32 s39, s39, 1\ns_cbranch_scc1 {tag}_D\ns_sleep 1\ns_branch {tag}_L")
    e.label(f"{tag}_D")

def merged(e, work, fillers, lead=0):
    old = e.lines; e.lines = []; work(); W = e.lines; e.lines = old
    n = len(W); m = len(fillers); k = 0
    for i in range(n + 1):
        while k < m and k * max(n - lead, 1) <= i * m: e(fillers[k]); k += 1
        if i < n: e.lines.append(W[i])
    assert k == m

def rb(e, r): e(f"v_cvt_pk_bf16_f32 v{r}, v{r}, v{r}\nv_lshlrev_b32 v{r}, 16, v{r}")

def gen():
    e = Asm()
    e("s_cmp_ge_u32 s2, 256\ns_cbranch_scc1 END")
    e.label("KSTART")
    e("s_getpc_b64 s[76:77]")
    e("s_load_dwordx16 s[40:55], s[0:1], 0\ns_load_dwordx8 s[56:63], s[0:1], 64\ns_load_dwordx4 s[64:67], s[0:1], 96")
    e.stamp(0)
    e("v_and_b32 v1, 63, v0\nv_lshrrev_b32 v2, 6, v0\nv_readfirstlane_b32 s3, v2\nv_and_b32 v2, 3, v2")
    if PREF:
        e("v_lshlrev_b32 v3, 6, v0\nv_min_u32 v3, KEND-KSTART-8, v3\ns_cmp_ge_u32 s3, 7\ns_cbranch_scc1 NOPF\nglobal_load_dword v31, v3, s[76:77]")
        e.label("NOPF")
    e(f"v_mov_b32 v6, 0\nv_mov_b32 v7, 0\nv_lshlrev_b32 v5, 3, v2\nv_add_u32 v5, {LCNT}, v5\nds_write_b64 v5, v[6:7]")
    e("s_and_b32 s30, s2, 7\ns_lshr_b32 s31, s2, 3")
    e("s_and_b32 s24, s30, 1\ns_lshl_b32 s24, s24, 2\ns_and_b32 s32, s31, 3\ns_add_u32 s24, s24, s32")
    e("s_lshr_b32 s25, s30, 1\ns_mul_i32 s25, s25, 7\ns_lshr_b32 s27, s31, 2\ns_add_u32 s25, s25, s27")
    e("s_lshl_b32 s26, s30, 2\ns_add_u32 s26, s26, s32")
    e("s_cmp_lt_u32 s2, 224\ns_cselect_b32 s28, 1, 0\ns_and_b32 s29, s3, 3\ns_lshl_b32 s77, s30, 5\ns_add_u32 s77, s77, s31")
    e("s_cmp_ge_u32 s3, 4\ns_cbranch_scc1 ROLE_B")
    e("v_lshrrev_b32 v28, 1, v2\nv_lshlrev_b32 v29, 1, v28\ns_lshl_b32 s36, s77, 2\nv_add_u32 v29, s36, v29")
    e("v_lshlrev_b32 v4, 1, v0\ns_lshl_b32 s36, s77, 9\nv_add_u32 v4, s36, v4\nv_xor_b32 v5, 128, v4")
    e("s_waitcnt lgkmcnt(0)")
    for i, (off, base) in enumerate(((4, 42), (4, 44), (4, 46), (4, 48), (5, 46), (5, 48), (29, 50))):
        e(f"global_load_ushort v{40+i}, v{off}, s[{base}:{base+1}]")
    e("global_load_ushort v30, v29, s[52:53]")
    e("s_barrier\ns_branch ROLE_A")
    e.label("ROLE_B")
    e("s_cmp_lg_u32 s3, 7\ns_cbranch_scc1 B_NOX")
    e("v_lshrrev_b32 v25, 3, v1\nv_lshlrev_b32 v25, 10, v25\nv_and_b32 v16, 7, v1\nv_lshl_add_u32 v25, v16, 4, v25\ns_lshl_b32 s31, s2, 13\nv_add_u32 v25, s31, v25\ns_waitcnt lgkmcnt(0)")
    for i in range(8): e(f"global_load_dwordx4 {vr(128+4*i,4)}, v25, s[40:41] offset:{128*i}")
    e.label("B_NOX")
    gen_B(e)
    e.label("ROLE_A")
    gen_A(e)
    e.label("END")
    e("s_endpgm")
    e.label("KEND")
    return e.text()

def dma_stage(e, groups=range(4)):
    for g in groups:
        e(f"s_add_u32 m0, s36, {4096*g}")
        for i in range(4):
            e(f"buffer_load_dwordx4 v{(4 if g < 2 else 8)+i}, {'s[12:15]' if g < 2 else 's[20:23]'}, s{32+g} offen offset:{1024*i} lds")
    if 3 not in groups: return
    e("s_add_u32 s37, s37, 1\ns_cmp_eq_u32 s37, 8\ns_cselect_b32 s37, 0, s37\ns_cselect_b32 s31, s69, s68")
    for g in range(4): e(f"s_add_u32 s{32+g}, s{32+g}, s31")
    e(f"s_add_u32 s36, s36, {STG}\ns_cmp_ge_u32 s36, {3*STG}\ns_cselect_b32 s31, {3*STG}, 0\ns_sub_u32 s36, s36, s31")

def cs_groups(k):
    base = (k % 3) * STG
    a = "v24" if base < 65536 - 8192 else "v26"; off0 = base if base < 65536 - 8192 else 0
    R = [f"ds_read_b128 {vr(240+4*i,4)}, {a} offset:{off0 + 2048*i}" for i in range(4)]
    M = [f"v_mfma_f32_16x16x32_bf16 v[20:23], v[16:19], {vr(240+4*i,4)}, v[20:23]" for i in range(4)]
    if env('CSOFF', 0) and k >= 2: return [], []
    return R, M

def gen_B(e):
    VM.INORDER = bool(env('INORD', 1))
    vm = VM(e)
    e("v_lshrrev_b32 v12, 3, v1\nv_and_b32 v16, 7, v1\nv_lshrrev_b32 v17, 4, v1\nv_lshrrev_b32 v3, 1, v2\nv_and_b32 v19, 1, v2")
    e("s_lshr_b32 s37, s2, 3\ns_and_b32 s37, s37, 3\ns_lshl_b32 s37, s37, 1\ns_add_u32 s37, s37, s27\ns_and_b32 s37, s37, 7" if ROT else "s_mov_b32 s37, 0")
    e("s_lshl_b32 s36, s29, 14\ns_mov_b32 s15, 0x00020000\ns_mov_b32 s23, 0x00020000")
    e("s_cmp_eq_u32 s29, 2\ns_cbranch_scc1 B_WOFF")
    e("v_xor_b32 v17, v16, v17\nv_lshlrev_b32 v12, 10, v12\nv_lshl_add_u32 v4, v17, 4, v12\nv_xor_b32 v18, 64, v4")
    for i in range(1, 4): e(f"v_add_u32 v{4+i}, {8192*i - 1024*i}, {'v4' if i % 2 == 0 else 'v18'}")
    for i in range(4): e(f"v_mov_b32 v{8+i}, v{4+i}")
    e(f"s_lshl_b32 s32, s24, 18\ns_lshl_b32 s31, s29, 17\ns_add_u32 s32, s32, s31\ns_lshl_b32 s31, s37, 7\ns_add_u32 s32, s32, s31\ns_add_u32 s33, s32, 32768\ns_add_u32 s34, s32, 65536\ns_add_u32 s35, s32, 98304")
    e(f"s_mov_b32 s68, 128\ns_mov_b32 s69, {(128-1024) & 0xffffffff}\ns_lshl_b32 s14, s28, 21\ns_lshl_b32 s22, s28, 21")
    e("s_waitcnt lgkmcnt(0)\ns_mov_b32 s12, s40\ns_mov_b32 s13, s41\ns_mov_b32 s20, s40\ns_mov_b32 s21, s41\ns_branch B_OFFD")
    e.label("B_WOFF")
    e("v_and_b32 v17, 1, v17\nv_lshlrev_b32 v17, 1, v17\nv_xor_b32 v17, v16, v17\nv_mul_u32_u24 v12, 3584, v12\nv_lshl_add_u32 v4, v17, 4, v12\nv_xor_b32 v17, 4, v17\nv_lshl_add_u32 v8, v17, 4, v12")
    for i in range(1, 4): e(f"v_add_u32 v{4+i}, {8*3584*i - 1024*i}, v4\nv_add_u32 v{8+i}, {8*3584*i - 1024*i}, v8")
    e(f"s_lshl_b32 s32, s25, 7\ns_mul_i32 s31, s37, {64*3584}\ns_add_u32 s32, s32, s31\ns_add_u32 s33, s32, {32*3584}\ns_mov_b32 s34, s32\ns_mov_b32 s35, s33")
    e(f"s_mov_b32 s68, {64*3584}\ns_mov_b32 s69, {(64*3584-512*3584) & 0xffffffff}\ns_mul_i32 s14, s28, 0x1c0000\ns_mul_i32 s22, s28, 0x1c0000")
    e("s_waitcnt lgkmcnt(0)\ns_mov_b32 s12, s56\ns_mov_b32 s13, s57\ns_mov_b32 s20, s58\ns_mov_b32 s21, s59")
    e.label("B_OFFD")
    e("s_barrier")
    srd(e, 8, 66, WS_SIZE); srd(e, 16, 60, 0 if AB & 1 else 0x1c0000)
    e("s_mov_b32 s38, 0xffff0000\nv_mov_b32 v54, 0")
    e("s_cmp_eq_u32 s29, 3\ns_cbranch_scc1 B_LN")
    e("s_cmp_eq_u32 s28, 1\ns_cbranch_scc1 B_LOAD")
    e("v_lshlrev_b32 v25, 10, v1\ns_lshr_b32 s31, s2, 3\ns_sub_u32 s31, s31, 28\ns_mul_i32 s31, s31, 458752\ns_lshl_b32 s30, s29, 17\ns_add_u32 s31, s31, s30")
    for i in range(2): e("buffer_load_dword v236, v25, s[16:19], s31 offen offset:384\ns_add_u32 s31, s31, 65536")
    e.label("B_LOAD")
    dma_stage(e); dma_stage(e, range(D1G))
    e("s_branch B_JOIN")
    e.label("B_LN")
    gen_ln(e)
    if LNE == 1: e("s_waitcnt lgkmcnt(0)"); gen_ln_store(e)
    e.label("B_JOIN")
    srd(e, 4, 40, 0x200000)
    e("v_and_b32 v27, 255, v0")
    e("v_and_b32 v24, 3, v1\nv_lshl_add_u32 v24, v3, 2, v24\nv_bfe_u32 v25, v1, 3, 1\nv_lshl_add_u32 v25, v19, 1, v25\nv_lshlrev_b32 v25, 1, v25\nv_xor_b32 v24, v24, v25\nv_lshlrev_b32 v24, 4, v24")
    e(f"v_lshrrev_b32 v25, 2, v1\nv_lshl_add_u32 v24, v25, 7, v24\nv_lshl_add_u32 v24, v19, 13, v24\nv_add_u32 v24, 32768, v24\nv_add_u32 v26, {2*STG}, v24")
    e("v_and_b32 v20, 1, v1\nv_lshlrev_b32 v20, 4, v20\nv_mov_b32 v21, 0x3f80\nv_lshlrev_b32 v21, v20, v21\nv_bfe_u32 v22, v1, 1, 2")
    for j in range(4): e(f"v_cmp_eq_u32 vcc, {j}, v22\nv_cndmask_b32 v{16+j}, 0, v21, vcc")
    for i in range(4): e(f"v_mov_b32 v{20+i}, 0\nv_mov_b32 v{232+i}, 0")
    e("v_lshlrev_b32 v123, 10, v1\ns_lshr_b32 s70, s2, 3\ns_lshl_b32 s70, s70, 16")
    e("s_and_b32 s73, s2, 7\ns_cmp_ge_u32 s73, 6\ns_cselect_b32 s31, 6, 0\ns_sub_u32 s73, s73, s31")
    lab = [0]
    def stage(k, aux=lambda: None, work=lambda: None, fill=None):
        R, M = cs_groups(k)
        for r in R: e(r)
        if k + 2 < 8:
            lab[0] += 1; n = lab[0]
            e(f"s_cmp_eq_u32 s29, 3\ns_cbranch_scc1 B_AUX{n}")
            if k == 0 and D1G < 4: dma_stage(e, range(D1G, 4))
            dma_stage(e)
            e(f"s_branch B_AJ{n}")
            e.label(f"B_AUX{n}")
            aux()
            e.label(f"B_AJ{n}")
        def w2():
            work()
            e("s_waitcnt lgkmcnt(0)")
            for m in M: e(m)
        merged(e, w2, fill or [])
    def endstage(k, n=16):
        lab[0] += 1
        e(f"s_cmp_eq_u32 s29, 3\ns_cbranch_scc1 B_NW{lab[0]}\ns_waitcnt vmcnt({n})")
        e.label(f"B_NW{lab[0]}")
        e("s_waitcnt lgkmcnt(0)\ns_barrier")
        if DIAG == 1: e.stamp(k + 1)
    pfl = [0, 1, 2, 4, 5, 6]
    def pf(n):
        for _ in range(n):
            if PFR:
                e("s_add_u32 s73, s73, 1\ns_cmp_ge_u32 s73, 6\ns_cselect_b32 s73, 0, s73\ns_cmp_ge_u32 s73, 3\ns_addc_u32 s31, s73, 0\ns_lshl_b32 s31, s31, 7\ns_add_u32 s31, s31, s70\nbuffer_load_dword v236, v123, s[16:19], s31 offen")
            else: e(f"buffer_load_dword v236, v123, s[16:19], s70 offen offset:{128*pfl.pop(0)}")
    if not DIAG: e.stamp(1)
    endstage(0, 4 * D1G)
    if not DIAG: e.stamp(2)
    if PRIO: e(f"s_setprio {PRIO}")
    chk2 = "v_cmp_ne_u64 vcc, v[112:113], v[126:127]\nv_cmp_ne_u64 s[74:75], v[114:115], v[126:127]\ns_or_b64 vcc, vcc, s[74:75]\nv_cmp_ne_u64 s[74:75], v[116:117], v[126:127]\ns_or_b64 vcc, vcc, s[74:75]\nv_cmp_ne_u64 s[74:75], v[118:119], v[126:127]\ns_or_b64 vcc, vcc, s[74:75]"
    lfl = f"s_mov_b32 s72, {WS_LNF}\nv_lshlrev_b32 v122, 4, v1\n" + "\n".join(f"buffer_load_dwordx2 v[{112+2*q}:{113+2*q}], v122, s[8:11], s72 offen offset:{1024*q} sc1" for q in range(4))
    def aux0():
        if LNE != 1: gen_ln_store(e)
        e("global_load_dword v126, v54, s[64:65] sc1")
    def aux1():
        e("s_waitcnt vmcnt(0)\nv_cmp_eq_u32 vcc, 0, v126\ns_cbranch_vccz B_RDY_D")
        poll(e, "B_RDY", "global_load_dword v126, v54, s[64:65] sc1", "v_cmp_eq_u32 vcc, 0, v126")
        e(f"v_not_b32 v127, v126\ns_lshl_b32 s31, s2, 4\ns_add_u32 s31, s31, {WS_LNF}")
        e("s_mov_b64 exec, 1\nbuffer_store_dwordx2 v[126:127], v54, s[8:11], s31 offen sc1\ns_mov_b64 exec, -1")
        if TLBW:
            e("v_and_b32 v122, 15, v1\nv_lshlrev_b32 v122, 20, v122\ns_lshl_b32 s31, s2, 7\ns_add_u32 s31, s31, 0x30000")
            e("buffer_load_dword v236, v122, s[8:11], s31 offen sc1\nglobal_load_dword v236, v54, s[62:63]")
        pf(PFS[2])
    def aux4(): e(lfl); pf(PFS[4])
    def aux5():
        e(f"s_waitcnt vmcnt({PFS[4]})\n" + chk2 + "\ns_cbranch_vccz B_LNF_D")
        poll(e, "B_LNF", lfl, chk2, sleep=16)
        e(f"v_mov_b32 v49, {LCNT}\nds_write_b64 v49, v[126:127] offset:32")
        pf(PFS[5])
    stage(0, aux0); endstage(1)
    if LNE:
        stage(1, lambda: (aux1(), pf(PFS[1] - PFS[2]))); endstage(2)
        stage(2, lambda: pf(PFS[2])); endstage(3)
    else:
        stage(1, lambda: pf(PFS[1])); endstage(2)
        stage(2, aux1); endstage(3)
    stage(3, lambda: pf(PFS[3])); endstage(4)
    stage(4, aux4); endstage(5)
    def addr5():
        e("v_and_b32 v50, 127, v27\nv_lshlrev_b32 v51, 7, v27\nv_subrev_u32 v52, 120, v51\nv_max_i32 v52, 0, v52\nv_lshlrev_b32 v57, 3, v27")
        e(f"v_mul_u32_u24 v44, 2731, v27\nv_lshrrev_b32 v44, 16, v44\nv_mul_u32_u24 v49, 24, v44\nv_sub_u32 v49, v27, v49\nv_mul_u32_u24 v44, {UP}, v44\nv_lshl_add_u32 v44, v49, 4, v44")
        e(f"v_mul_u32_u24 v55, {KCH}, v3\nv_add_u32 v55, {KB}, v55\nv_lshl_add_u32 v45, v50, 3, v55\nv_lshlrev_b32 v46, 4, v27\nv_add_u32 v46, {UB}, v46")
        e(f"v_and_b32 v48, 3, v1\nv_lshl_add_u32 v48, v3, 2, v48\nv_lshlrev_b32 v48, 5, v48\nv_and_b32 v49, 1, v2\nv_lshl_add_u32 v48, v49, 8, v48\nv_bfe_u32 v49, v1, 4, 1\nv_lshl_add_u32 v48, v49, 4, v48\nv_add_u32 v48, {LCS}, v48")
        e(f"v_mov_b32 v49, {LCNT}\nv_mov_b32 v47, 1\nv_add_u32 v43, {LSTAT}, v57")
        e("v_lshrrev_b32 v40, 3, v1\nv_and_b32 v41, 7, v1\nv_bfe_u32 v42, v1, 4, 1\nv_lshlrev_b32 v42, 2, v42\nv_xor_b32 v41, v41, v42\nv_lshlrev_b32 v40, 10, v40\nv_lshl_add_u32 v40, v41, 4, v40\nv_add_u32 v41, 7168, v40")
        e("v_lshrrev_b32 v38, 5, v1\nv_bfe_u32 v39, v1, 2, 2\nv_lshl_add_u32 v38, v38, 2, v39\nv_lshlrev_b32 v38, 7, v38")
        e("v_lshrrev_b32 v39, 1, v39\nv_lshl_add_u32 v38, v39, 6, v38\nv_bfe_u32 v39, v1, 4, 1\nv_lshl_add_u32 v38, v39, 5, v38\nv_and_b32 v39, 3, v1\nv_lshl_add_u32 v38, v39, 3, v38\nv_xor_b32 v39, 64, v38")
    stage(5, aux5, addr5)
    if env('NTX', 4): e(f"s_xor_b32 s27, s27, {env('NTX', 4)}")
    e("s_mul_i32 s32, s29, 458752\ns_lshl_b32 s31, s27, 7\ns_add_u32 s32, s32, s31")
    NR = 20 - RING; nres_end = min(28, NR + 12); nstream = 28 - nres_end
    order = list(range(NR, NR + nstream)) + list(range(0, NR)) + list(range(NR + nstream, nres_end)) + list(range(nres_end, 28))
    phys = {i: 4 * ((p % 14) // 2) + 2 * (p // 14) + (p & 1) for p, i in enumerate(order)}
    posn = {i: p for p, i in enumerate(order)}
    e(f"s_mul_i32 s35, s29, 12288\ns_add_u32 s34, s35, {2*STG}")
    e("v_mov_b32 v4, v40\nv_mov_b32 v5, v41\nv_add_u32 v6, s34, v38\nv_add_u32 v7, s34, v39\nv_add_u32 v8, s35, v38\nv_add_u32 v9, s35, v39")
    if not XL: e(f"s_lshl_b32 s36, s77, 13\ns_add_u32 s36, s36, {WS_XN2}\ns_add_u32 s30, s36, 4096\ns_sub_u32 s71, s30, 24\ns_lshl_b32 s70, s24, 11")
    if XL: e(f"s_lshr_b32 s36, s77, 2\ns_lshl_b32 s36, s36, 15\ns_and_b32 s30, s77, 3\ns_lshl_b32 s30, s30, 5\ns_add_u32 s36, s36, s30\ns_add_u32 s36, s36, {WS_XN2}\ns_add_u32 s30, s36, 16384\ns_sub_u32 s71, s30, 120\ns_lshl_b32 s70, s24, 11")
    endstage(6)
    if not DIAG: e.stamp(3)
    wid = {}; slot_of = {}
    def w2txt(i, j):
        slot_of[i] = j
        wid[i] = vm.add('d', 2)
        return [f"s_add_u32 m0, {'s34' if j < 6 else 's35'}, {2048*(j%6)}\ns_add_u32 s33, s32, {16384*phys[i]}\nbuffer_load_dwordx4 v4, s[16:19], s33 offen lds",
                f"buffer_load_dwordx4 v5, s[16:19], s33 offen offset:1024 lds"]
    def w2dma(i, j):
        for t in w2txt(i, j): e(t)
    vm.reset()
    e("ds_read_b64 v[14:15], v49 offset:32")
    R6, M6 = cs_groups(6)
    for r in R6: e(r)
    e("s_cmp_eq_u32 s29, 3\ns_cbranch_scc1 B_K6\ns_waitcnt vmcnt(0)")
    e.label("B_K6")
    sid = vm.op(f"buffer_load_dwordx2 v[124:125], v57, s[8:11], s70 offen offset:{WS_STATS} sc1")
    vm.op("buffer_load_dwordx4 v[60:63], v51, s[8:11], s36 offen sc1"); vm.op("buffer_load_dwordx4 v[68:71], v51, s[8:11], s36 offen offset:16 sc1")
    e("s_mov_b64 exec, 1")
    vm.op("buffer_load_dwordx2 v[58:59], v52, s[8:11], s36 offen sc1"); uid = vm.op("buffer_load_dwordx2 v[66:67], v52, s[8:11], s36 offen offset:16 sc1")
    e("s_mov_b64 exec, -1")
    e("s_waitcnt lgkmcnt(0)")
    for m in M6: e(m)
    for i in range(N6): w2dma(i, i)
    endstage(7, 63)
    ACC = 192; WT = [16, 24]; HR = 32
    def wreg(i): return 96 + 8 * i if i < 12 else 88 - 8 * (i - 12)
    def wread(j, dst):
        for dt in range(2):
            for jj in range(2):
                e(f"ds_read_b64_tr_b16 {vr(dst+4*dt+2*jj,2)}, v{(6 if j < 6 else 8)+dt} offset:{2048*(j%6)+1024*jj}")
    vm.wait(sid)
    e(f"ds_write_b64 v43, v[124:125]")
    def post7():
        e("v_cmp_eq_u32 vcc, 0, v27")
        for r in (58, 59, 66, 67):
            e(f"v_cndmask_b32 v{r}, v{r}, v232, vcc\nv_mov_b32_dpp v{r}, v{r+4} wave_shr:1 row_mask:0xf bank_mask:0xf")
        for h in range(2):
            Dd = 60 + 8 * h
            V1, V2, V3 = 200 + 12 * h, 204 + 12 * h, 208 + 12 * h
            for i in range(4):
                e(f"v_alignbit_b32 v{V1+i}, v{Dd+i}, v{Dd+i-1}, 16\nv_mov_b32 v{V2+i}, v{Dd+i-1}\nv_alignbit_b32 v{V3+i}, v{Dd+i-1}, v{Dd+i-2}, 16")
        e("v_cmp_gt_u32 s[68:69], 192, v27\nv_cmp_gt_u32 s[70:71], 15, v50".replace("192, v27", "s30, v27"))
    e("s_mov_b32 s30, 192")
    stage(7)
    for m in ("row_ror:4", "row_ror:8"):
        for i in range(4): e(f"v_add_f32_dpp v{20+i}, v{20+i}, v{20+i} {m} {DPP}")
    e("ds_write_b128 v48, v[20:23]")
    vm.wait(uid)
    merged(e, post7, sum([w2txt(i, i) for i in range(N6, N7)], []))
    e("s_waitcnt lgkmcnt(0)\ns_barrier")
    if DIAG == 1: e.stamp(9)
    if not DIAG: e.stamp(4)
    if DIAG == 4: e.stamp(1)
    def ucopies():
        for h in range(2):
            for delta, src in ((0, 60 + 8 * h), (1, 200 + 12 * h), (2, 204 + 12 * h), (3, 208 + 12 * h)):
                e(f"ds_write_b128 v46, {vr(src,4)} offset:{(3-delta)*UP + 384 + UCH*h}")
        e(f"s_mov_b64 exec, s[68:69]\nds_write_b128 v44, v[232:235] offset:{UB}")
        e(f"s_mov_b64 exec, s[70:71]\nds_write_b64 v45, v[232:233] offset:4096\nds_write_b64 v45, v[232:233] offset:{KS_OFF+4088}")
        e("s_mov_b64 exec, 1\nds_add_u32 v49, v47\ns_mov_b64 exec, -1")
    if UPOS == 0: ucopies()
    for i in range(N7, 12): w2dma(i, i)
    if UPOS == 1: ucopies()
    nd = [12]
    def refill(slots):
        for j in slots:
            if nd[0] < nres_end: w2dma(nd[0], j); nd[0] += 1
    vm.wait(wid[5])
    for i in range(6): wread(i, wreg(i))
    e("s_waitcnt lgkmcnt(0)")
    refill(range(6))
    if UPOS == 2: ucopies()
    vm.wait(wid[11])
    for i in range(6, 12): wread(i, wreg(i))
    e("s_waitcnt lgkmcnt(0)")
    refill(range(6, 12))
    if not DIAG: e.stamp(5)
    if PRIO: e("s_setprio 0")
    e(f"v_lshrrev_b32 v10, 3, v1\nv_min_u32 v10, 6, v10\nv_lshlrev_b32 v10, 7, v10\nv_bfe_u32 v11, v1, 2, 1\nv_lshl_add_u32 v10, v11, 3, v10\ns_mul_i32 s37, s26, {28*128}\ns_mul_i32 s30, s29, {7*128}\ns_add_u32 s37, s37, s30\ns_add_u32 s37, s37, {WS_HF}")
    e(f"s_lshl_b32 s36, s26, 1\ns_mul_i32 s36, s36, 112\ns_mul_i32 s30, s29, 28\ns_add_u32 s36, s36, s30\ns_lshl_b32 s36, s36, 10\ns_add_u32 s36, s36, {WS_H}\ns_lshl_b32 s70, s27, 7\ns_add_u32 s70, s70, s36")
    srd(e, 20, 62, 0x200000)
    e(f"v_lshrrev_b32 v11, 1, v1\nv_lshlrev_b32 v11, 10, v11\nv_and_b32 v12, 1, v1\nv_mul_u32_u24 v12, {112*1024}, v12\nv_add_u32 v11, v11, v12")
    e("s_lshl_b32 s71, s26, 16\ns_lshl_b32 s30, s27, 7\ns_add_u32 s71, s71, s30\nv_bfe_u32 v12, v0, 2, 6\nv_lshlrev_b32 v12, 10, v12")
    vm.op("buffer_load_dword v3, v12, s[4:7], s71 offen")
    e(f"s_mov_b32 s72, -1\ns_mov_b32 s73, 0xffffff\ns_mov_b32 s39, {SPIN}")
    vm.wait(wid[NR - 1], " lgkmcnt(0)")
    for i in range(12, NR): wread(slot_of[i], wreg(i))
    f0 = vm.op("buffer_load_dwordx2 v[12:13], v10, s[8:11], s37 offen sc1")
    e("s_waitcnt lgkmcnt(0)")
    refill([slot_of[i] for i in range(12, NR)])
    if not DIAG: e.stamp(6)
    e("s_mov_b32 s33, s37\nv_mov_b32 v4, v10\nv_mov_b32 v5, v11")
    vm.wait(f0)
    e("v_cmp_eq_u64 vcc, v[12:13], v[14:15]\ns_and_b64 s[74:75], vcc, s[72:73]\ns_andn2_b64 s[72:73], s[72:73], vcc")
    e("s_cmp_eq_u64 s[74:75], 0\ns_cbranch_scc1 B_F0\ns_mov_b64 exec, s[74:75]\nbuffer_load_dword v3, v5, s[8:11], s70 offen sc1\ns_mov_b64 exec, -1\ns_mov_b64 s[74:75], 0")
    e.label("B_F0")
    def need(j):
        if AB & 2: return
        bit = 8 * (j % 7) + 4 * (j // 7)
        w_, b_ = (72, bit) if bit < 32 else (73, bit - 32)
        e(f"s_bitcmp0_b32 s{w_}, {b_}\ns_cbranch_scc1 B_HF_D{j}")
        e.label(f"B_HF_L{j}")
        e("buffer_load_dwordx2 v[12:13], v4, s[8:11], s33 offen sc1\ns_cmp_eq_u64 s[74:75], 0")
        e(f"s_cbranch_scc1 B_HF_W{j}\ns_mov_b64 exec, s[74:75]\nbuffer_load_dword v3, v5, s[8:11], s70 offen sc1\ns_mov_b64 exec, -1\ns_waitcnt vmcnt(1)\ns_branch B_HF_X{j}")
        e.label(f"B_HF_W{j}")
        e("s_waitcnt vmcnt(0)")
        e.label(f"B_HF_X{j}")
        e("v_cmp_eq_u64 vcc, v[12:13], v[14:15]\ns_and_b64 s[74:75], vcc, s[72:73]\ns_andn2_b64 s[72:73], s[72:73], vcc")
        e(f"s_bitcmp0_b32 s{w_}, {b_}\ns_cbranch_scc1 B_HF_E{j}")
        e(f"s_sub_u32 s39, s39, 1\ns_cbranch_scc1 B_HF_E{j}\ns_sleep {env('HSL', 1)}\ns_branch B_HF_L{j}")
        e.label(f"B_HF_E{j}")
        e(f"s_cmp_eq_u64 s[74:75], 0\ns_cbranch_scc1 B_HF_D{j}\ns_mov_b64 exec, s[74:75]\nbuffer_load_dword v3, v5, s[8:11], s70 offen sc1\ns_mov_b64 exec, -1\ns_mov_b64 s[74:75], 0")
        e.label(f"B_HF_D{j}")
    for j in range(NW0): need(j)
    if not DIAG: e.stamp(7)
    if DIAG == 3: e.stamp(1)
    if G2P: e(f"s_setprio {G2P}")
    vm.reset()
    e(f"v_lshlrev_b32 v10, 4, v1\nv_add_u32 v11, {112*1024}, v10")
    free = [HR + 8 * i for i in range(RING)]
    pfc = [0]
    def hpf():
        if pfc[0] * CH < 28:
            e(f"s_mov_b64 exec, {hex((1 << (2*CH)) - 1)}")
            vm.op(f"buffer_load_dword v12, v13, s[8:11], s70 offen sc1\ns_add_u32 s70, s70, {1024*CH}\ns_mov_b64 exec, -1")
            pfc[0] += 1
    hreg = {}; hid = {}; nxt = [0]
    def hload(maxn=99):
        n = 0
        while nxt[0] < 28 and free and n < maxn:
            n += 1
            i = order[nxt[0]]; nxt[0] += 1
            b = free.pop(0); hreg[i] = b
            if posn[i] % 2 == 0 and posn[i] // 2 >= NW0: need(posn[i] // 2)
            e(f"s_add_u32 s31, s36, {0 if AB & 16 else 1024*phys[i]}")
            vm.op(f"buffer_load_dwordx4 {vr(b,4)}, v10, s[8:11], s31 offen sc1")
            hid[i] = vm.op(f"buffer_load_dwordx4 {vr(b+4,4)}, v11, s[8:11], s31 offen sc1")
    if HPF:
        e(f"v_lshrrev_b32 v13, 1, v1\nv_lshlrev_b32 v13, 10, v13\nv_and_b32 v12, 1, v1\nv_mul_u32_u24 v12, {112*1024}, v12\nv_add_u32 v13, v13, v12")
        for _ in range(HPF): hpf()
    hload()
    def is_lds(i): return i >= NR
    tcount = [0]; wt_of = {}
    def prefetch_w(pos):
        if pos < 28 and is_lds(order[pos]):
            i = order[pos]
            if i >= nres_end: vm.wait(wid[i])
            wt_of[i] = WT[tcount[0] % 2]; tcount[0] += 1
            wread(slot_of[i], wt_of[i])
    prefetch_w(0)
    streamed = nres_end
    fq = {}; FPOS = [int(c, 16) for c in os.environ.get('FPOS', '')]
    fin = {}
    def at_loads(count):
        e(f"s_lshl_b32 s31, s27, 18\ns_lshl_b32 s30, s26, 7\ns_add_u32 s31, s31, s30\ns_add_u32 s31, s31, {WS_AT}")
        for j in range(4):
            t = f"buffer_load_dwordx2 {vr(fin['A']+2*j,2)}, v{fin['T']+3}, s[8:11], s31 offen sc1\ns_add_u32 s31, s31, 4096"
            if count: vm.op(t)
            else: e(t)
    AFPOS = env('AFPOS', 28 - RING - GROW); ATPOS = 27
    for pos, i in enumerate(order):
        if is_lds(i):
            e("s_waitcnt lgkmcnt(0)")
            if streamed < 28:
                w2dma(streamed, slot_of[i]); streamed += 1
        prefetch_w(pos + 1)
        vm.wait(hid[i])
        for fp_, fid in list(fq.items()):
            if hid[i] > fid:
                del fq[fp_]
                e(f"v_cmp_eq_u64 vcc, v[12:13], v[14:15]\ns_and_b64 s[74:75], vcc, s[72:73]\ns_cbranch_scc0 B_FR{fp_}\ns_andn2_b64 s[72:73], s[72:73], vcc\ns_mov_b64 exec, s[74:75]\nbuffer_load_dword v3, v5, s[8:11], s70 offen sc1\ns_mov_b64 exec, -1\ns_mov_b64 s[74:75], 0")
                e.label(f"B_FR{fp_}")
        if DIAG == 3 and pos in (0, 4, 8, 12, 16, 20, 24, 27): e.stamp(2 + (0, 4, 8, 12, 16, 20, 24, 27).index(pos))
        wb = wt_of[i] if is_lds(i) else wreg(i)
        b = hreg[i]
        for dt in range(2):
            for mi in range(2):
                a = ACC + 16 * (2 * dt + mi)
                e(f"v_mfma_f32_32x32x16_bf16 {vr(a,16)}, {vr(wb+4*dt,4)}, {vr(b+4*mi,4)}, {'0' if pos == 0 else vr(a,16)}")
        free.append(b)
        if not is_lds(i): free.append(wb)
        if pos in FPOS: fq[pos] = vm.op("buffer_load_dwordx2 v[12:13], v4, s[8:11], s33 offen sc1")
        hload(2 if pos < GROW else 1)
        if pos == AFPOS:
            assert len(free) >= 4
            fin['X'] = free.pop(); fin['A'] = free.pop(); T = fin['T'] = free.pop(0)
            e(f"v_bfe_u32 v{T}, v0, 4, 4\nv_and_b32 v{T+1}, 15, v0\nv_lshlrev_b32 v{T+2}, 12, v{T}\nv_lshl_add_u32 v{T+2}, v{T+1}, 3, v{T+2}\nv_lshlrev_b32 v{T+3}, 14, v{T+1}\nv_lshl_add_u32 v{T+3}, v{T}, 3, v{T+3}\nv_lshrrev_b32 v{T+4}, 1, v1\nv_lshlrev_b32 v{T+4}, 7, v{T+4}\nv_and_b32 v{T+5}, 1, v1\nv_lshl_add_u32 v{T+4}, v{T+5}, 4, v{T+4}")
            e(f"s_lshl_b32 s37, s27, 12\ns_lshr_b32 s30, s26, 4\ns_lshl_b32 s30, s30, 3\ns_add_u32 s37, s37, s30\ns_add_u32 s37, s37, {WS_AF}")
            e("s_lshl_b32 s71, s26, 16\ns_lshl_b32 s30, s27, 7\ns_add_u32 s71, s71, s30")
            afid = vm.op(f"buffer_load_dwordx2 v[12:13], v{T+4}, s[8:11], s37 offen sc1")
            for r in range(4): vm.op(f"buffer_load_dwordx2 {vr(fin['X']+2*r,2)}, v{T+2}, s[4:7], s71 offen offset:{1024*r}")
        if pos == ATPOS:
            vm.wait(afid)
            e("v_cmp_ne_u64 s[68:69], v[12:13], v[14:15]")
            at_loads(True)
    if not DIAG: e.stamp(8)
    T = fin['T']
    e(f"v_and_b32 v3, 31, v1\nv_mul_u32_u24 v3, 272, v3\nv_lshrrev_b32 v8, 5, v1\nv_lshl_add_u32 v3, v8, 4, v3\nv_add_u32 v4, s34, v3\nv_add_u32 v3, s35, v3")
    for dt in range(2):
        for mi in range(2):
            a = ACC + 16 * (2 * dt + mi)
            for g in range(4):
                e(f"ds_write_b128 v{3+mi}, {vr(a+4*g,4)} offset:{dt*128 + g*32}")
    e("s_cmp_eq_u64 s[68:69], 0\ns_cbranch_scc1 B_AF_OK")
    poll(e, "B_AF", f"buffer_load_dwordx2 v[12:13], v{T+4}, s[8:11], s37 offen sc1", "v_cmp_ne_u64 vcc, v[12:13], v[14:15]", sleep=2)
    at_loads(False)
    e.label("B_AF_OK")
    e(f"v_and_b32 v3, 7, v{T}\nv_mul_u32_u24 v3, 1088, v3\nv_lshl_add_u32 v3, v{T+1}, 4, v3\nv_lshrrev_b32 v4, 3, v{T}\nv_mul_u32_u24 v4, {2*STG}, v4\nv_add_u32 v3, v3, v4")
    e("s_waitcnt lgkmcnt(0)\ns_barrier")
    Pp = 192
    XR = fin['X']; AR = fin['A']
    for i in range(4):
        for w in range(4):
            e(f"ds_read_b128 {vr(Pp+16*i+4*w,4)}, v3 offset:{272*i + 12288*w}")
    e("s_waitcnt vmcnt(0)")
    XA = 16
    for i in range(4):
        for j in range(4):
            xs = XR + 2 * i + (j >> 1); as_ = AR + 2 * j + (i >> 1)
            e(f"v_lshlrev_b32 v{4+j}, 16, v{xs}" if j % 2 == 0 else f"v_and_b32 v{4+j}, s38, v{xs}")
            e(f"v_lshlrev_b32 v{8+j}, 16, v{as_}" if i % 2 == 0 else f"v_and_b32 v{8+j}, s38, v{as_}")
        e("v_pk_add_f32 v[4:5], v[4:5], v[8:9]\nv_pk_add_f32 v[6:7], v[6:7], v[10:11]")
        e(f"v_cvt_pk_bf16_f32 v8, v4, v5\nv_cvt_pk_bf16_f32 v9, v6, v7")
        for j in range(4):
            e(f"v_lshlrev_b32 v{XA+4*i+j}, 16, v{8+(j>>1)}" if j % 2 == 0 else f"v_and_b32 v{XA+4*i+j}, s38, v{8+(j>>1)}")
    for i in range(4):
        b = Pp + 16 * i
        e(f"s_waitcnt lgkmcnt({12-4*i})")
        for h in range(2):
            e(f"v_pk_add_f32 {vr(b+2*h,2)}, {vr(b+2*h,2)}, {vr(b+4+2*h,2)}")
            e(f"v_pk_add_f32 {vr(b+8+2*h,2)}, {vr(b+8+2*h,2)}, {vr(b+12+2*h,2)}")
        for h in range(2):
            e(f"v_pk_add_f32 {vr(b+2*h,2)}, {vr(b+2*h,2)}, {vr(b+8+2*h,2)}")
        e(f"v_cvt_pk_bf16_f32 v{b+4}, v{b}, v{b+1}\nv_cvt_pk_bf16_f32 v{b+5}, v{b+2}, v{b+3}")
        for j in range(4):
            e(f"v_lshlrev_b32 v{b+8+j}, 16, v{b+4+(j>>1)}" if j % 2 == 0 else f"v_and_b32 v{b+8+j}, s38, v{b+4+(j>>1)}")
        for h in range(2):
            e(f"v_pk_add_f32 {vr(b+8+2*h,2)}, {vr(b+8+2*h,2)}, {vr(XA+4*i+2*h,2)}")
        e(f"v_cvt_pk_bf16_f32 v{b}, v{b+8}, v{b+9}\nv_cvt_pk_bf16_f32 v{b+1}, v{b+10}, v{b+11}")
        e(f"buffer_store_dwordx2 {vr(b,2)}, v{T+2}, s[20:23], s71 offen offset:{1024*i} {os.environ.get('OST', 'sc1')}")
    if not DIAG: e.stamp(9)
    e.stamp_out("PB", env("PBT", 256), 1, vt=100)
    if env('DBG', 0): e.stamp_dbg("DB", 256, 9, 1, [1, 2, 3, 4, 6, 7, 8, 9], vt=100)
    e("s_endpgm")

def gen_ln(e):
    X = 128; A = 160; M = 164; SQ = 166; T = 172
    e("s_mov_b32 s30, 0x3f803f80")
    for j in range(4): e(f"v_mov_b32 v{A+j}, 0\nv_mov_b32 v{SQ+j}, 0")
    e(f"v_lshrrev_b32 v180, 3, v1\nv_and_b32 v181, 7, v1\nv_mul_u32_u24 v182, 1088, v180\nv_lshl_add_u32 v182, v181, 4, v182\nv_add_u32 v182, {SPARE}, v182")
    e(f"v_bfe_u32 v183, v1, 2, 2\nv_mul_u32_u24 v183, 1088, v183\nv_lshrrev_b32 v184, 4, v1\nv_lshl_add_u32 v183, v184, 5, v183\nv_and_b32 v184, 3, v1\nv_lshl_add_u32 v183, v184, 3, v183\nv_add_u32 v183, {SPARE}, v183")
    for i in range(8):
        e(f"s_waitcnt vmcnt({7-i})")
        for j in range(4): e(f"v_dot2_f32_bf16 v{A+j}, v{X+4*i+j}, s30, v{A+j}")
    def red(r):
        e(f"v_add_f32 v{r}, v{r}, v{r+1}\nv_add_f32 v{r+2}, v{r+2}, v{r+3}\nv_add_f32 v{r}, v{r}, v{r+2}")
        for m in ("quad_perm:[1,0,3,2]", "quad_perm:[2,3,0,1]", "row_half_mirror"):
            e(f"v_add_f32_dpp v{r}, v{r}, v{r} {m} {DPP}")
    red(A)
    e(f"v_mul_f32 v{A}, {f32(1/512)}, v{A}\nv_cvt_pk_bf16_f32 v{M}, v{A}, v{A}\nv_lshlrev_b32 v{M}, 16, v{M}")
    for j0 in range(0, 32, 4):
        for j in range(j0, j0 + 4):
            t = T + 2 * (j % 4); e(f"v_lshlrev_b32 v{t}, 16, v{X+j}\nv_and_b32 v{t+1}, s38, v{X+j}")
        for j in range(j0, j0 + 4):
            t = T + 2 * (j % 4)
            if LNV & 2: e(f"v_sub_f32 v{t}, v{t}, v{M}\nv_sub_f32 v{t+1}, v{t+1}, v{M}")
            else: e(f"v_pk_add_f32 {vr(t,2)}, {vr(t,2)}, {vr(M,2)} op_sel_hi:[1,0] neg_lo:[0,1] neg_hi:[0,1]")
        for j in range(j0, j0 + 4):
            t = T + 2 * (j % 4); q = SQ + 2 * (j % 2)
            if LNV & 2: e(f"v_fmac_f32 v{q}, v{t}, v{t}\nv_fmac_f32 v{q+1}, v{t+1}, v{t+1}\nv_cvt_pk_bf16_f32 v{X+j}, v{t}, v{t+1}")
            else: e(f"v_pk_fma_f32 {vr(q,2)}, {vr(t,2)}, {vr(t,2)}, {vr(q,2)}\nv_cvt_pk_bf16_f32 v{X+j}, v{t}, v{t+1}")
    red(SQ)
    e(f"v_sub_f32 v{A+1}, v{A}, v{M}\nv_mul_f32 v{A+1}, v{A+1}, v{A+1}\nv_mul_f32 v{SQ}, {f32(1/512)}, v{SQ}\nv_sub_f32 v{SQ}, v{SQ}, v{A+1}\nv_max_f32 v{SQ}, 0, v{SQ}")
    rb(e, SQ); e(f"v_add_f32 v{SQ}, {f32(1e-5)}, v{SQ}"); rb(e, SQ); e(f"v_sqrt_f32 v{SQ}, v{SQ}"); rb(e, SQ)
    e(f"v_rcp_f32 v{M+1}, v{SQ}")
    for j0 in range(0, 32, 4):
        for j in range(j0, j0 + 4):
            t = T + 2 * (j % 4); e(f"v_lshlrev_b32 v{t}, 16, v{X+j}\nv_and_b32 v{t+1}, s38, v{X+j}")
        for j in range(j0, j0 + 4):
            t = T + 2 * (j % 4)
            if LNV & 1: e(f"v_mul_f32 v{t}, v{t}, v{M+1}\nv_mul_f32 v{t+1}, v{t+1}, v{M+1}")
            else: e(f"v_pk_mul_f32 {vr(t,2)}, {vr(M,2)}, {vr(t,2)} op_sel:[1,0] op_sel_hi:[1,1]")
        for j in range(j0, j0 + 4):
            t = T + 2 * (j % 4); e(f"v_cvt_pk_bf16_f32 v{X+j}, v{t}, v{t+1}")
        if LNV & 8: e("s_nop 3")
        e(f"ds_write_b128 v182, {vr(X+j0,4)} offset:{32*j0}")
    if LNV & 4: e("s_waitcnt lgkmcnt(0)")
    for q in range(8):
        for j in range(2): e(f"ds_read_b64_tr_b16 {vr(X+4*q+2*j,2)}, v183 offset:{4352*j+128*q}")

def gen_ln_store(e):
    X = 128; M = 164
    e("v_lshrrev_b32 v180, 3, v1\nv_and_b32 v181, 7, v1")
    if XL: e("v_lshlrev_b32 v184, 15, v180\nv_lshl_add_u32 v184, v181, 4, v184\nv_lshlrev_b32 v185, 3, v180")
    else: e("v_lshrrev_b32 v184, 1, v1\nv_lshlrev_b32 v184, 13, v184\nv_and_b32 v185, 1, v1\nv_lshl_add_u32 v184, v185, 4, v184\nv_lshlrev_b32 v185, 3, v180")
    e(f"s_lshl_b32 s31, s2, 6\nv_cmp_eq_u32 vcc, 0, v181\ns_and_saveexec_b64 s[74:75], vcc")
    e(f"buffer_store_dwordx2 {vr(M,2)}, v185, s[8:11], s31 offen offset:{WS_STATS} sc1\ns_mov_b64 exec, s[74:75]")
    e(f"s_lshl_b32 s31, s2, {7 if XL else 5}\ns_add_u32 s31, s31, {WS_XN2}")
    for q in range(8):
        e(f"buffer_store_dwordx4 {vr(X+4*q,4)}, v184, s[8:11], s31 offen sc1\ns_add_u32 s31, s31, {32*8192}")

TA = 96; RA = 112
def gen_kaddr(e):
    e(f"v_lshlrev_b32 v48, 2, v1\nv_lshlrev_b32 v49, 12, v2\nv_add_u32 v49, {KTAB}, v49\nv_add_u32 v48, v48, v49")
    for r in range(8): e(f"v_xor_b32 v{TA+r}, {r<<5}, v48")
    T0 = [0,1,2,3,4,5,6,7,8,8,9,10,10,10,11,12]; T1 = [0,0,0,1,1,1,2,2,3,3,3,4,4,4,5,5]
    T2 = [6 + 2 * (i >> 2) + (i & 1) for i in range(16)]
    def pack4(L): return sum(v << (4 * i) for i, v in enumerate(L))
    e("v_and_b32 v50, 15, v1\nv_lshrrev_b32 v51, 4, v1\nv_and_b32 v52, 7, v50\nv_lshlrev_b32 v52, 2, v52\nv_cmp_lt_u32 vcc, 7, v50")
    e(f"v_mov_b32 v{RA}, v50")
    for x, T in ((1, T0), (2, T1), (3, T2)):
        e(f"v_mov_b32 v53, {hex(pack4(T[:8]))}\nv_mov_b32 v54, {hex(pack4(T[8:]))}\nv_cndmask_b32 v53, v53, v54, vcc\nv_lshrrev_b32 v53, v52, v53\nv_and_b32 v{RA+x}, 15, v53")
    for x in range(4):
        e(f"v_and_b32 v53, 14, v{RA+x}\nv_xor_b32 v53, v51, v53\nv_lshlrev_b32 v53, 4, v53\nv_lshl_add_u32 v53, v{RA+x}, 8, v53\nv_add_u32 v{RA+x}, v53, v49")
        for q in range(1, 4): e(f"v_xor_b32 v{RA+4+3*x+q-1}, {q<<6}, v{RA+x}")

def gen_kgen(e):
    P = 40
    for r in range(P, P + 7): e(f"v_lshlrev_b32 v{r}, 16, v{r}")
    def exp_bf(dst, src, t1, t2):
        e(f"v_mul_f32 v{t1}, {f32(L2E_HI)}, v{src}")
        e(f"s_mov_b32 s30, {f32(L2E_HI)}\nv_fma_f32 v{t2}, v{src}, s30, -v{t1}\nv_fmac_f32 v{t2}, {f32(L2E_LO)}, v{src}")
        e(f"v_exp_f32 v{t1}, v{t1}\nv_mul_f32 v{t2}, {f32(LN2)}, v{t2}\nv_fma_f32 v{dst}, v{t1}, v{t2}, v{t1}")
        rb(e, dst)
    exp_bf(46, 46, 48, 49); exp_bf(40, 40, 50, 51)
    e("v_mul_f32 v40, v40, v46\nv_mul_f32 v41, v41, v46")
    e("v_max_f32 v48, abs(v42), abs(v43)\nv_max3_f32 v48, abs(v44), abs(v45), v48")
    for m in ("quad_perm:[1,0,3,2]", "quad_perm:[2,3,0,1]", "row_ror:4", "row_ror:8"):
        e(f"v_max_f32_dpp v48, v48, v48 {m} {DPP}")
    e("v_readlane_b32 s30, v48, 0\nv_readlane_b32 s31, v48, 16\nv_readlane_b32 s71, v48, 32\nv_readlane_b32 s72, v48, 48")
    e("s_max_u32 s30, s30, s31\ns_max_u32 s71, s71, s72\ns_max_u32 s30, s30, s71\ns_and_b32 s30, s30, 0x7f800000\ns_sub_u32 s31, 0x7f000000, s30")
    e("v_mul_f32 v42, s31, v42\nv_mul_f32 v43, s31, v43")
    e("v_mul_f32 v46, s30, v46\nv_add_f32 v46, v46, v46")
    W1, W8, W256, W2_, W4, W16 = 56, 58, 60, 62, 64, 66
    def wexp(dst, p, t):
        e(f"v_mul_f32 v{t}, {f32(-L2E_HI*p)}, v40\nv_exp_f32 v{t}, v{t}")
        e(f"v_mul_f32 v{t+1}, {f32(float(p))}, v41")
        e(f"v_mul_f32 v{t+2}, {f32(I2PI_HI)}, v{t+1}\ns_mov_b32 s30, {f32(I2PI_HI)}\nv_fma_f32 v{t+3}, v{t+1}, s30, -v{t+2}\nv_fmac_f32 v{t+3}, {f32(I2PI_LO)}, v{t+1}")
        e(f"v_fract_f32 v{t+2}, v{t+2}\nv_add_f32 v{t+2}, v{t+2}, v{t+3}")
        e(f"v_cos_f32 v{dst}, v{t+2}\nv_sin_f32 v{dst+1}, v{t+2}")
        e(f"v_mul_f32 v{dst}, v{dst}, v{t}\nv_mul_f32 v{dst+1}, v{dst+1}, v{t}")
    C0 = 42
    old = e.lines; parts = []
    for dst, p, t in ((W8, 8, 48), (W256, 256, 52), (W1, 1, 68)):
        e.lines = []; wexp(dst, p, t); parts.append(e.lines)
    e.lines = old
    for i in range(len(parts[0])):
        for P_ in parts: e.lines.append(P_[i])
    def cm1(d, a, b): return f"v_pk_mul_f32 {vr(d,2)}, {vr(a,2)}, {vr(b,2)} op_sel_hi:[1,0]"
    def cm2(d, a, b): return f"v_pk_fma_f32 {vr(d,2)}, {vr(a,2)}, {vr(b,2)}, {vr(d,2)} op_sel:[1,1,0] op_sel_hi:[0,1,1] neg_lo:[1,0,0]"
    RF = 128; LF = 160; D = 208
    W24, W32, W512 = 68, 70, 72
    Lr = {i: 160 + 2 * i for i in range(27)}; Lr[0] = C0
    PR = 216; PL = 128
    ONE = 74
    e(f"v_mov_b32 v{ONE}, 1.0\nv_mov_b32 v{ONE+1}, 0")
    Rr = {0: ONE, 1: W8, 2: W16, 3: W24}
    for b in range(4, 32): Rr[b] = 76 + 4 * (b % 4) + 2 * ((b // 4) % 2)
    Rr[4] = W32
    G = {1: 8, 2: 13, 3: 16, 4: 19, 5: 21, 6: 23, 7: 25}
    groups = [
        [(W16, W8, W8, ('R', 2)), (Lr[8], C0, W256, ('L', 8)), (W2_, W1, W1, None), (W512, W256, W256, None), (Lr[1], C0, W1, ('L', 1))],
        [(W32, W16, W16, ('R', 4)), (W24, W16, W8, ('R', 3)), (W4, W2_, W2_, None), (Lr[13], Lr[8], W256, ('L', 13)), (Lr[16], Lr[8], W512, ('L', 16)), (Lr[2], C0, W2_, ('L', 2))],
    ]
    rest = [(Lr[19], Lr[13], W512, ('L', 19)), (Lr[21], Lr[16], W512, ('L', 21)), (Lr[3], Lr[1], W2_, ('L', 3)),
            (Lr[4], C0, W4, ('L', 4)), (Lr[5], Lr[1], W4, ('L', 5)), (Lr[6], Lr[2], W4, ('L', 6)),
            (Lr[23], Lr[19], W512, ('L', 23)), (Lr[25], Lr[21], W512, ('L', 25)), (Lr[7], Lr[3], W4, ('L', 7)),
            (Lr[9], Lr[8], W2_, ('L', 9)), (Lr[10], Lr[8], W4, ('L', 10)), (Lr[12], Lr[8], W8, ('L', 12)),
            (Lr[11], Lr[9], W4, ('L', 11)), (Lr[14], Lr[13], W4, ('L', 14)), (Lr[15], Lr[13], W8, ('L', 15)),
            (Lr[17], Lr[16], W4, ('L', 17)), (Lr[18], Lr[16], W8, ('L', 18)), (Lr[20], Lr[19], W8, ('L', 20)),
            (Lr[22], Lr[21], W8, ('L', 22)), (Lr[24], Lr[23], W8, ('L', 24)), (Lr[26], Lr[25], W8, ('L', 26))]
    for j in range(7):
        g = [(Rr[b], Rr[b - 4], W32, ('R', b)) for b in range(4 * j + 4, 4 * j + 8) if b != 4]
        g += rest[3 * j:3 * j + 3]
        groups.append(g)
    done = set()
    def cvt(tag):
        kind, i = tag
        src = Rr[i] if kind == 'R' else Lr[i]; dst = (PR if kind == 'R' else PL) + i
        e(f"v_cvt_pk_f16_f32 v{dst}, v{src}, {'-' if kind == 'L' else ''}v{src+1}"); done.add(tag)
    def fragread(x, dst):
        for q in range(4): e(f"ds_read_b128 {vr(dst+4*q,4)}, v{RA+x if q == 0 else RA+4+3*x+q-1}")
    Q = []
    def wr(kind, base, n, first):
        for r in range(0, n, 2):
            p = (PR if kind == 'R' else PL) + first + r
            if r + 1 < n: Q.append(({(kind, first + r), (kind, first + r + 1)}, f"ds_write2st64_b32 v{TA+r//2}, v{p}, v{p+1} offset0:{r} offset1:{r+1}"))
            else: Q.append(({(kind, first + r)}, f"ds_write_b32 v{TA+r//2}, v{p} offset:{256*r}"))
    RFa, RFb = 32, 92
    wr('R', 0, 16, 0); Q.append((set(), ('fr', 0, 0)))
    wr('R', 0, 16, 16); Q.append((set(), ('fr', 0, 1)))
    wr('L', 0, 13, 0); Q.append((set(), ('fr', 1, 2)))
    wr('L', 0, 14, 13); Q.append((set(), ('fr', 2, 3))); Q.append((set(), ('fr', 3, 4)))
    FD = {0: 216, 1: 232, 2: 160, 3: 176, 4: 192}
    allc = {('L', i) for i in range(27)}
    def drain(maxn=99):
        n = 0
        while Q and n < maxn:
            needs, t = Q[0]
            if isinstance(t, tuple):
                if t[2] >= 2 and not allc <= done: break
                fragread(t[1], FD[t[2]])
            else:
                if not needs <= done: break
                e(t)
            Q.pop(0); n += 1
    for tag in (('R', 0), ('R', 1), ('L', 0)): cvt(tag)
    prev = []
    for g in groups:
        for (d, a, b, tag) in g: e(cm1(d, a, b))
        for tag in prev: cvt(tag)
        drain(3)
        for (d, a, b, tag) in g: e(cm2(d, a, b))
        prev = [tag for (_, _, _, tag) in g if tag]
    for tag in prev: cvt(tag)
    drain()
    assert not Q
    DD = KD
    def kmfma(ti):
        for q in range(4):
            for ct in range(2):
                d = DD + 8 * ti + 4 * ct
                e(f"v_mfma_f32_16x16x32_f16 {vr(d,4)}, {vr(FD[2+ti]+4*q,4)}, {vr(FD[ct]+4*q,4)}, {'0' if q == 0 else vr(d,4)}")
    e("v_mov_b32 v31, v46\ns_waitcnt lgkmcnt(15)")
    kmfma(0)
    e("s_waitcnt lgkmcnt(4)")
    kmfma(1)
    e("s_waitcnt lgkmcnt(0)")
    kmfma(2)

KD = 64
def gen_kfin(e):
    D = KD
    e(f"v_mul_u32_u24 v8, 3072, v2\nv_lshl_add_u32 v8, v1, 4, v8\nv_add_u32 v8, {KX}, v8\nv_xor_b32 v9, 1, v2\nv_mul_u32_u24 v9, 3072, v9\nv_lshl_add_u32 v9, v1, 4, v9\nv_add_u32 v9, {KX}, v9")
    e(f"v_lshlrev_b32 v10, 2, v2\nv_add_u32 v10, {LCNT+16}, v10\nv_xor_b32 v11, 4, v10\nv_mov_b32 v12, 1")
    e("s_and_b32 s30, s29, 1\ns_cmp_eq_u32 s30, 1\ns_nop 7\ns_cbranch_scc1 A_KX1")
    for ti in range(3): e(f"ds_write_b128 v8, {vr(D+8*ti+4,4)} offset:{1024*ti}")
    e("s_branch A_KXD")
    e.label("A_KX1")
    for ti in range(3): e(f"ds_write_b128 v8, {vr(D+8*ti,4)} offset:{1024*ti}")
    for ti in range(3):
        for q in range(4 if ti < 2 else 2): e(f"v_mov_b32 v{D+8*ti+q}, v{D+8*ti+4+q}")
    e.label("A_KXD")
    e("ds_write_b32 v10, v12")
    e("v_and_b32 v48, 15, v1\nv_lshrrev_b32 v49, 4, v1\nv_and_b32 v52, 1, v2\nv_lshl_add_u32 v52, v52, 4, v48")
    e(f"v_and_b32 v53, 1, v49\nv_lshlrev_b32 v53, 2, v53\nv_lshl_add_u32 v53, v52, 3, v53\nv_lshrrev_b32 v56, 1, v49\nv_lshl_add_u32 v53, v56, 8, v53")
    e(f"v_lshlrev_b32 v53, 1, v53\nv_mul_u32_u24 v55, {KCH}, v28\nv_add_u32 v55, {KB}, v55\nv_sub_u32 v53, v55, v53\nv_add_u32 v53, {2*(2040-512)}, v53")
    e(f"v_lshlrev_b32 v56, 3, v52\nv_lshl_add_u32 v56, v49, 8, v56\nv_lshlrev_b32 v56, 1, v56\nv_sub_u32 v56, v55, v56\nv_add_u32 v56, {2*(2040-1024)}, v56")
    lds_poll(e, "A_KXP", "v11", 0, 1, 7)
    for ti in range(3): e(f"ds_read_b128 {vr(D+8*ti+4,4)}, v9 offset:{1024*ti}")
    e("s_waitcnt lgkmcnt(0)")
    for ti in range(3):
        for q in range(4 if ti < 2 else 2): e(f"v_add_f32 v{D+8*ti+q}, v{D+8*ti+q}, v{D+8*ti+4+q}\nv_mul_f32 v{D+8*ti+q}, v31, v{D+8*ti+q}")
    for ti in range(2):
        d = D + 8 * ti; o = KP + 2 * ti
        e(f"v_cvt_pk_bf16_f32 v{o}, v{d+3}, v{d+2}\nv_cvt_pk_bf16_f32 v{o+1}, v{d+1}, v{d}")
    f0, f8 = D + 16, D + 17
    e(f"v_and_b32 v57, 1, v52\nv_cmp_eq_u32 vcc, 1, v57\nv_cndmask_b32 v57, v{f0}, v{f8}, vcc")
    e(f"v_cvt_pk_bf16_f32 v{KP+4}, v{f8}, v{f8}\nv_cvt_pk_bf16_f32 v{KP+5}, v{f8}, v57\nv_cvt_pk_bf16_f32 v{KP+6}, v{f0}, v{f0}\nv_mov_b32 v{KP+7}, v{KP+6}")
    e(f"v_mov_b32 v{KP+8}, v53\nv_mov_b32 v{KP+9}, v56")

KP = 112
def gen_kwrite(e):
    for ti in range(2):
        o = KP + 2 * ti; off = 1024 if ti == 0 else 0
        e(f"ds_write_b64 v{KP+8}, {vr(o,2)} offset:{off+8}\nds_write_b64 v{KP+8}, {vr(o,2)} offset:{off+KS_OFF}")
    e(f"ds_write_b128 v{KP+9}, {vr(KP+4,4)}\nds_write_b64 v{KP+9}, {vr(KP+4,2)} offset:{KS_OFF-8}\nds_write_b64 v{KP+9}, {vr(KP+6,2)} offset:{KS_OFF}")
    e(f"v_mov_b32 v6, {LCNT}\nv_mov_b32 v12, 1\ns_mov_b64 exec, 1\nds_add_u32 v6, v12\ns_mov_b64 exec, -1")

def gen_A(e):
    srd(e, 8, 66, WS_SIZE)
    e("s_mov_b32 s38, 0xffff0000")
    e("s_cmp_lg_u32 s2, 255\ns_cbranch_scc1 A_NOZ\ns_cmp_lg_u32 s3, 0\ns_cbranch_scc1 A_NOZ")
    e(f"v_mov_b32 v3, 0\ns_mov_b32 s31, {WS_EPW}\nbuffer_load_dword v4, v3, s[8:11], s31 offen sc1\ns_waitcnt vmcnt(0)")
    e("v_add_u32 v4, 1, v4\nv_max_u32 v4, 1, v4\nv_cmp_eq_u32 vcc, 0, v1\ns_and_saveexec_b64 s[74:75], vcc")
    e("global_store_dword v3, v4, s[64:65] sc1\nbuffer_store_dword v4, v3, s[8:11], s31 offen sc1\ns_mov_b64 exec, s[74:75]\ns_waitcnt vmcnt(0)")
    e.label("A_NOZ")
    e("v_bfe_u32 v3, v1, 4, 1\nv_lshrrev_b32 v12, 5, v1\nv_bfe_u32 v13, v1, 2, 2\nv_and_b32 v15, 3, v1")
    e("v_lshl_add_u32 v12, v12, 3, v13\nv_lshlrev_b32 v12, 7, v12\nv_lshl_add_u32 v12, v3, 13, v12\nv_lshl_add_u32 v12, v15, 3, v12\nv_add_u32 v12, 32768, v12")
    e("v_lshrrev_b32 v13, 1, v13\nv_lshl_add_u32 v13, v3, 1, v13\nv_lshl_add_u32 v20, v13, 5, v12")
    for t in range(1, 4): e(f"v_xor_b32 v{20+t}, {t<<5}, v20")
    e("v_and_b32 v3, 31, v1\nv_lshrrev_b32 v12, 5, v1\nv_bfe_u32 v13, v3, 1, 3\nv_xor_b32 v13, v12, v13")
    e("v_lshl_add_u32 v3, v2, 6, v3\nv_lshlrev_b32 v3, 7, v3\nv_lshl_add_u32 v24, v13, 4, v3")
    for s in range(1, 4): e(f"v_xor_b32 v{24+s}, {s<<5}, v24")
    gen_kaddr(e)
    e(f"v_and_b32 v18, 31, v1\nv_lshl_add_u32 v18, v2, 6, v18\nv_lshlrev_b32 v18, 3, v18\nv_add_u32 v18, {LSTAT}, v18\nv_mov_b32 v19, {LCNT}")
    e.stamp(1)
    e("s_waitcnt vmcnt(1)")
    e.stamp(2)
    if not env('NOKG', 0): gen_kgen(e)
    gen_kfin(e)
    e("s_waitcnt vmcnt(0) lgkmcnt(0)")
    e.stamp(3)
    ACC = 128
    FA = [32, 56]
    e("s_cmp_eq_u32 s28, 1\ns_cbranch_scc1 A_G1")
    for i in range(3): e("s_barrier")
    srd(e, 16, 60, 0 if AB & 1 else 0x1c0000)
    e("v_lshlrev_b32 v3, 10, v1\ns_lshr_b32 s31, s2, 3\ns_sub_u32 s31, s31, 28\ns_mul_i32 s31, s31, 458752\ns_add_u32 s32, s31, 393216\ns_lshl_b32 s30, s29, 17\ns_add_u32 s31, s31, s30\ns_add_u32 s33, s31, 65536")
    e("s_cmp_eq_u32 s29, 3\ns_cselect_b32 s34, 512, 0\ns_cselect_b32 s33, s32, s33\ns_sub_u32 s33, s33, s34")
    e("buffer_load_dword v15, v3, s[16:19], s33 offen offset:896\nbuffer_load_dword v15, v3, s[16:19], s31 offen offset:896")
    for i in range(6): e("s_barrier")
    e("s_waitcnt vmcnt(0)")
    e("ds_read_b64 v[16:17], v19 offset:32")
    gen_kwrite(e)
    e("s_branch A_CONV")
    e.label("A_G1")
    def reads(buf, s):
        L = []
        for mi in range(2): L.append(f"ds_read_b128 {vr(FA[buf]+16+4*mi,4)}, v{24+s} offset:{4096*mi}")
        for t in range(4):
            for j in range(2): L.append(f"ds_read_b64_tr_b16 {vr(FA[buf]+4*t+2*j,2)}, v{20+t} offset:{2048*s+512*j}")
        return L
    def mfmas(buf, zero=False):
        if env('M16', 0):
            L = []
            for t in range(4):
                for mi in range(2):
                    a = ACC + 16 * (2 * t + mi) + 8 * (buf % 2)
                    L.append("\n".join(f"v_mfma_f32_16x16x32_bf16 {vr(a+4*h,4)}, {vr(FA[buf]+4*t,4)}, {vr(FA[buf]+16+4*(mi^h),4)}, {vr(a+4*h,4)}" for h in range(2)))
            return L
        return [f"v_mfma_f32_32x32x16_bf16 {vr(ACC+16*(2*t+mi),16)}, {vr(FA[buf]+4*t,4)}, {vr(FA[buf]+16+4*mi,4)}, {'0' if zero else vr(ACC+16*(2*t+mi),16)}" for t in range(4) for mi in range(2)]
    def interleave(M, F, per=2):
        k = 0; n = len(F)
        for i, m in enumerate(M):
            if not (AB & 32): e(m)
            cnt = -(-(n - k) // (len(M) - i)) if n - k > per * (len(M) - i) else min(per, n - k)
            for _ in range(cnt): e(F[k]); k += 1
        assert k == n
    e(f"s_mov_b32 s37, 0\ns_mov_b32 s36, 0\ns_mov_b32 s38, {STG}")
    e("s_barrier")
    e.stamp(4)
    for r in reads(0, 0): e(r)
    e("s_waitcnt lgkmcnt(0)")
    interleave(mfmas(0, True), reads(1, 1))
    e("s_branch A_K1")
    e.label("A_LOOP")
    for s in range(3):
        if s == 1: e.label("A_K1")
        e("s_waitcnt lgkmcnt(0)")
        F = reads((s + 1) % 2, s + 1)
        if s == 2:
            F = F + [f"s_cmp_eq_u32 s36, {2*STG}\ns_cselect_b32 s39, {(-2*STG) & 0xffffffff}, s38"] + [f"v_add_u32 v{20+i}, s39, v{20+i}\nv_add_u32 v{21+i}, s39, v{21+i}" for i in range(0, 8, 2)]
        interleave(mfmas(s % 2), F)
    e("s_waitcnt lgkmcnt(0)\ns_barrier")
    interleave(mfmas(1), reads(0, 0) + ["s_add_u32 s36, s36, s39\ns_add_u32 s37, s37, 1\ns_cmp_lt_u32 s37, 8"])
    e("s_cbranch_scc1 A_LOOP")
    e.stamp(5)
    if APRIO: e(f"s_setprio {APRIO}")
    e(f"v_lshrrev_b32 v12, 5, v1\nv_lshlrev_b32 v12, 4, v12\nv_add_u32 v12, {LCS}, v12")
    e("s_waitcnt lgkmcnt(0)")
    CS = 32
    e("ds_read_b64 v[4:5], v18\nds_read_b64 v[6:7], v18 offset:256\nds_read_b64 v[16:17], v19 offset:32")
    for t in range(4):
        for g in range(2):
            e(f"ds_read_b128 {vr(CS+16*t+4*g,4)}, v12 offset:{64*t+32*g}")
            e(f"ds_read_b128 {vr(CS+16*t+8+4*g,4)}, v12 offset:{256+64*t+32*g}")
    e(f"s_lshl_b32 s31, s24, 3\ns_lshl_b32 s30, s29, 1\ns_add_u32 s31, s31, s30\ns_mul_i32 s31, s31, 112\ns_lshl_b32 s30, s25, 2\ns_add_u32 s31, s31, s30\ns_lshl_b32 s31, s31, 10\ns_add_u32 s31, s31, {WS_H}\ns_add_u32 s30, s31, {112*1024}")
    e(f"s_lshl_b32 s35, s24, 2\ns_add_u32 s35, s35, s29\ns_mul_i32 s35, s35, 28\ns_add_u32 s35, s35, s25\ns_lshl_b32 s35, s35, 7\ns_add_u32 s35, s35, {WS_HF}")
    e("v_lshlrev_b32 v3, 4, v1\nv_mov_b32 v15, 0")
    e("s_waitcnt lgkmcnt(0)")
    for mi in range(2):
        b = 8 + 4 * mi; s = 4 + 2 * mi
        e(f"v_sub_f32 v{b}, 0, v{s}\nv_mul_f32 v{b+1}, {f32(-LOG2E)}, v{s+1}\nv_mul_f32 v{b+2}, v{s+1}, v{s+1}\nv_rcp_f32 v{b+2}, v{b+2}")
    TM = 96
    for t in range(4):
        for mi in range(2):
            a = ACC + 16 * (2 * t + mi); b = 8 + 4 * mi
            o = a + 8
            for p in range(4):
                G = a + 2 * p; U = a + 8 + 2 * p; cg = CS + 16 * t + 2 * p; cu = CS + 16 * t + 8 + 2 * p
                z = TM + 2 * p
                e(f"v_pk_fma_f32 {vr(G,2)}, {vr(cg,2)}, {vr(b,2)}, {vr(G,2)} op_sel_hi:[1,0,1]")
                e(f"v_pk_fma_f32 {vr(U,2)}, {vr(cu,2)}, {vr(b,2)}, {vr(U,2)} op_sel_hi:[1,0,1]")
                e(f"v_pk_mul_f32 {vr(z,2)}, {vr(b,2)}, {vr(G,2)} op_sel:[1,0] op_sel_hi:[1,1]")
            for p in range(4):
                z = TM + 2 * p
                e(f"v_exp_f32 v{z}, v{z}\nv_exp_f32 v{z+1}, v{z+1}")
            for p in range(4):
                G = a + 2 * p; U = a + 8 + 2 * p; z = TM + 2 * p
                e(f"v_pk_mul_f32 {vr(G,2)}, {vr(G,2)}, {vr(U,2)}")
                e(f"v_pk_fma_f32 {vr(z,2)}, {vr(z,2)}, {vr(b+2,2)}, {vr(b+2,2)} op_sel_hi:[1,0,0]")
            for p in range(4):
                z = TM + 2 * p
                e(f"v_rcp_f32 v{z}, v{z}\nv_rcp_f32 v{z+1}, v{z+1}")
            for p in range(4):
                G = a + 2 * p; z = TM + 2 * p
                e(f"v_pk_mul_f32 {vr(G,2)}, {vr(G,2)}, {vr(z,2)}")
            for p in range(4):
                G = a + 2 * p
                e(f"v_cvt_pk_bf16_f32 v{o+p}, v{G}, v{G+1}")
            e(f"buffer_store_dwordx4 {vr(o,4)}, v3, s[8:11], {'s31' if mi == 0 else 's30'} offen offset:{1024*t}" + ("" if AB & 4 else " sc1"))
            if 2 * t + mi == F1AT:
                e(f"s_waitcnt vmcnt({F1AT-3})\ns_mov_b64 exec, 1\nbuffer_store_dwordx2 v[16:17], v15, s[8:11], s35 offen sc1\ns_mov_b64 exec, -1")
    e.stamp(6)
    gen_kwrite(e)
    if APRIO: e("s_setprio 0")
    e.label("A_CONV")
    e("v_and_b32 v24, 15, v1\nv_lshrrev_b32 v25, 4, v1")
    e(f"v_and_b32 v26, 3, v24\nv_mul_u32_u24 v26, {UP}, v26\nv_lshrrev_b32 v27, 2, v24\nv_lshl_add_u32 v26, v27, 7, v26\nv_lshl_add_u32 v26, v25, 4, v26")
    e(f"v_mul_u32_u24 v27, {UCH}, v28\nv_add_u32 v26, v26, v27\nv_and_b32 v31, 1, v2\nv_lshl_add_u32 v26, v31, 8, v26\nv_add_u32 v26, {UB}, v26")
    e(f"v_mul_u32_u24 v5, {KCH}, v28\nv_add_u32 v5, {KB}, v5")
    e(f"v_lshrrev_b32 v27, 1, v24\nv_sub_u32 v27, v25, v27\nv_add_u32 v27, 7, v27\nv_lshl_add_u32 v27, v27, 4, v5\nv_lshl_add_u32 v27, v31, 8, v27")
    e(f"v_and_b32 v29, 1, v24\nv_xor_b32 v29, 1, v29\nv_mul_u32_u24 v29, {KS_OFF}, v29\nv_add_u32 v27, v27, v29")
    e(f"v_mov_b32 v6, {LCNT}")
    lds_poll(e, "A_KU", "v6", 0, 8, 7)
    CA = 200
    FU = [32, 96]
    def creads(buf, s):
        L = []
        for p in range(8):
            L.append(f"ds_read_b128 {vr(FU[buf]+32+4*p,4)}, v27 offset:{512*(7-p)+64*s}")
            L.append(f"ds_read_b128 {vr(FU[buf]+4*p,4)}, v26 offset:{512*p+64*s}")
        return L
    for r in creads(0, 0): e(r)
    for s in range(4):
        if s == HFS:
            e("s_cmp_eq_u32 s28, 0\ns_cbranch_scc1 A_NOHF\nv_mov_b32 v3, 0\ns_waitcnt vmcnt(0)\ns_mov_b64 exec, 1\nbuffer_store_dwordx2 v[16:17], v3, s[8:11], s35 offen offset:8 sc1\ns_mov_b64 exec, -1")
            e.label("A_NOHF")
            e.stamp(7)
        e("s_waitcnt lgkmcnt(0)")
        if s < 3: nxt = creads((s + 1) % 2, s + 1)
        else:
            nxt = [f"v_lshlrev_b32 v10, 2, v2\nv_add_u32 v10, {LCNT+16}, v10\nv_mov_b32 v12, 2\nds_write_b32 v10, v12",
                   f"v_mul_u32_u24 v26, {UCH}, v28\nv_add_u32 v26, {UB}, v26\nv_lshl_add_u32 v8, v1, 4, v26\nv_lshl_add_u32 v26, v1, 3, v26",
                   f"v_lshl_add_u32 v26, v31, 11, v26\n" + "\n".join(f"ds_read_b64 {vr(48+2*i,2)}, v26 offset:{3*UP+384+512*i}" for i in range(4)),
                   f"s_mov_b32 s33, {UP}\nv_xor_b32 v9, 1, v31\nv_mad_u32_u24 v9, v9, s33, v8\nv_mad_u32_u24 v8, v31, s33, v8",
                   f"v_xor_b32 v11, 4, v10\nv_mov_b32 v13, 3\nv_lshlrev_b32 v27, 3, v1\nv_lshl_add_u32 v27, v2, 11, v27",
                   f"s_lshl_b32 s31, s77, 13\ns_add_u32 s31, s31, {WS_AT}\ns_mov_b32 s38, 0xffff0000\nv_lshlrev_b32 v30, 16, v30\ns_waitcnt lgkmcnt(0)"]
            for i in range(4):
                x = 48 + 2 * i; t = 64 + 4 * i
                nxt.append("\n".join((f"v_lshlrev_b32 v{t+q}, 16, v{x+(q>>1)}" if q % 2 == 0 else f"v_and_b32 v{t+q}, s38, v{x+(q>>1)}") for q in range(4)))
                nxt.append("\n".join(f"v_mul_f32 v{t+q}, v30, v{t+q}" for q in range(4)) + f"\nv_cvt_pk_bf16_f32 v{x}, v{t}, v{t+1}\nv_cvt_pk_bf16_f32 v{x+1}, v{t+2}, v{t+3}")
                nxt.append("\n".join((f"v_lshlrev_b32 v{t+q}, 16, v{x+(q>>1)}" if q % 2 == 0 else f"v_and_b32 v{t+q}, s38, v{x+(q>>1)}") for q in range(4)))
        k = 0; cnt = 0
        for q in range(8):
            for t in range(q, 8):
                a = CA + 4 * t
                c = "0" if (s == 0 and q == 0) else vr(a, 4)
                if not (AB & 8): e(f"v_mfma_f32_16x16x32_bf16 {vr(a,4)}, {vr(FU[s%2]+4*(t-q),4)}, {vr(FU[s%2]+32+4*q,4)}, {c}")
                cnt += 1
                if k < len(nxt) and cnt % 2 == 0: e(nxt[k]); k += 1
        assert k == len(nxt)
    e.stamp(8)
    lds_poll(e, "A_P0", "v11", 0, 2, 7)
    e("s_and_b32 s30, s29, 1\ns_cmp_eq_u32 s30, 1\ns_nop 3\ns_cbranch_scc1 A_ODD")
    for i in range(4): e(f"ds_write_b128 v8, {vr(CA+16+4*i,4)} offset:{1024*i}")
    e("ds_write_b32 v10, v13\ns_branch A_J")
    e.label("A_ODD")
    for i in range(4): e(f"ds_write_b128 v8, {vr(CA+4*i,4)} offset:{1024*i}")
    e("ds_write_b32 v10, v13")
    for i in range(16): e(f"v_mov_b32 v{CA+i}, v{CA+16+i}")
    e.label("A_J")
    lds_poll(e, "A_PR", "v11", 0, 3, 7)
    for i in range(4): e(f"ds_read_b128 {vr(32+4*i,4)}, v9 offset:{1024*i}")
    for i in range(4):
        a = CA + 4 * i; b = 32 + 4 * i; t = 64 + 4 * i
        e(f"s_waitcnt lgkmcnt({3-i})")
        for q in range(4): e(f"v_add_f32 v{a+q}, v{a+q}, v{b+q}")
        e(f"v_cvt_pk_bf16_f32 v{b}, v{a}, v{a+1}\nv_cvt_pk_bf16_f32 v{b+1}, v{a+2}, v{a+3}")
        for q in range(4):
            e(f"v_lshlrev_b32 v{a+q}, 16, v{b+(q>>1)}" if q % 2 == 0 else f"v_and_b32 v{a+q}, s38, v{b+(q>>1)}")
        for q in range(4): e(f"v_add_f32 v{a+q}, v{a+q}, v{t+q}")
        e(f"v_cvt_pk_bf16_f32 v{b}, v{a}, v{a+1}\nv_cvt_pk_bf16_f32 v{b+1}, v{a+2}, v{a+3}")
        e(f"buffer_store_dwordx2 {vr(b,2)}, v27, s[8:11], s31 offen offset:{512*i} sc1")
    e(f"s_lshl_b32 s31, s77, 7\ns_lshl_b32 s30, s29, 3\ns_add_u32 s31, s31, s30\ns_add_u32 s31, s31, {WS_AF}")
    e("v_mov_b32 v3, 0\nv_cmp_eq_u32 vcc, 0, v1\ns_waitcnt vmcnt(0)\ns_and_saveexec_b64 s[74:75], vcc")
    e("buffer_store_dwordx2 v[16:17], v3, s[8:11], s31 offen sc1\ns_mov_b64 exec, s[74:75]")
    e.stamp(9)
    e.stamp_out("PA", 0, 0, vt=100)
    if env('DBG', 0): e.stamp_dbg("DA", 0, 9, 10, [2, 3, 6, 7, 9], vt=100)

NAME = "parallel_sum__ssm_conv_s4d__glu_gated_swiglu__prompt_kernel"
if __name__ == "__main__":
    Asm.PROFILE = len(sys.argv) > 2
    out = ["; @launch grid=(256,1,1) block=(512,1,1) lds=163840", '.amdgcn_target "amdgcn-amd-amdhsa--gfx950"\n.text']
    out.append(kernel_header(NAME) + gen())
    out.append('.section .rodata,"a"\n.p2align 6\n' + kernel_desc(NAME, 256, 256))
    open(sys.argv[1], "w").write("\n".join(out))
```
